```python
import torch

def _softmax(x, axis=-1):
    return torch.softmax(x, dim=axis)

def _gelu(x):
    return torch.nn.functional.gelu(x, approximate='tanh')

def _silu(x):
    return torch.nn.functional.silu(x)

def _sigmoid(x):
    return torch.sigmoid(x)

def _layernorm(x, axis=-1, eps=1e-05):
    m = x.mean(dim=axis, keepdim=True)
    v = x.var(dim=axis, keepdim=True, unbiased=False)
    return (x - m) / torch.sqrt(v + eps)

def _scatter_add(tgt, idx, src, axis=0):
    return tgt.clone().index_add_(axis, idx, src)

def _segment_sum(src, seg, n):
    out = torch.zeros((n,) + src.shape[1:], dtype=src.dtype)
    return out.index_add_(0, seg, src)

def _pad(x, pw):
    flat = tuple((v for pair in reversed(pw) for v in pair))
    return torch.nn.functional.pad(x, flat)
kernel_name = 'parallel_sum__memory_aug_recurrent_mem_tr__dense_activation_mish__prompt'

def setup_inputs():

    _w = lambda a: (lambda t: t.to(torch.bfloat16) if t.is_floating_point() else t)(torch.as_tensor(a))

    def _A_setup():
        B, S, Dm = (1, 2048, 640)
        H, Dh = (32, 128)
        M, seg = (8, 32)
        seg = min(seg, S)
        S = S // seg * seg
        return {'x': _w((lambda *s: torch.randn(*s, dtype=torch.bfloat16) * 0.05)(B, S, Dm)), 'mem0': _w((lambda *s: torch.randn(*s, dtype=torch.bfloat16) * 0.2)(B, M, Dm)), 'Wq': _w((lambda *s: torch.randn(*s, dtype=torch.bfloat16) * 1.6)(Dm, H, Dh) * Dm ** (-0.5)), 'Wk': _w((lambda *s: torch.randn(*s, dtype=torch.bfloat16) * 1.6)(Dm, H, Dh) * Dm ** (-0.5)), 'Wv': _w((lambda *s: torch.randn(*s, dtype=torch.bfloat16) * 0.2)(Dm, H, Dh) * Dm ** (-0.5)), 'Wo': _w((lambda *s: torch.randn(*s, dtype=torch.bfloat16) * 0.2)(H, Dh, Dm) * (H * Dh) ** (-0.5)), 'seg_len': seg}
    _A_in = _A_setup()

    def _B_setup():
        B, S, D, F = (1, 2048, 640, 1728)
        return {'x': _w((lambda *s: torch.randn(*s, dtype=torch.bfloat16) * 0.05)(B, S, D)), 'w1': _w((lambda *s: torch.randn(*s, dtype=torch.bfloat16) * 0.8)(D, F) * D ** (-0.5)), 'b1': _w((lambda *s: torch.randn(*s, dtype=torch.bfloat16) * 0.2)(F)), 'w2': _w((lambda *s: torch.randn(*s, dtype=torch.bfloat16) * 0.1)(F, D) * F ** (-0.5))}
    _B_in = _B_setup()
    return {'A_x': _A_in['x'], 'A_mem0': _A_in['mem0'], 'A_Wq': _A_in['Wq'], 'A_Wk': _A_in['Wk'], 'A_Wv': _A_in['Wv'], 'A_Wo': _A_in['Wo'], 'A_seg_len': _A_in['seg_len'], 'B_x': _B_in['x'], 'B_w1': _B_in['w1'], 'B_b1': _B_in['b1'], 'B_w2': _B_in['w2']}

def reference(A_x, A_mem0, A_Wq, A_Wk, A_Wv, A_Wo, A_seg_len, B_x, B_w1, B_b1, B_w2):

    def _A_ref(x, mem0, Wq, Wk, Wv, Wo, seg_len):
        B, S, Dm = x.shape
        H, Dh = (Wq.shape[1], Wq.shape[2])
        M = mem0.shape[1]
        scale = Dh ** (-0.5)
        n_seg = S // seg_len
        L = M + seg_len
        idx = torch.arange(L)
        mask = (idx[:, None] < M) | (idx[:, None] >= idx[None, :])
        mem = mem0
        outs = []
        for s in range(n_seg):
            xs = x[:, s * seg_len:(s + 1) * seg_len, :].clone()
            h = torch.concatenate([mem, xs], axis=1)
            q = torch.einsum('btd,dhe->bhte', h, Wq)
            k = torch.einsum('btd,dhe->bhte', h, Wk)
            v = torch.einsum('btd,dhe->bhte', h, Wv)
            scores = torch.einsum('bhqe,bhke->bhqk', q, k) * scale
            scores = torch.where(mask[None, None], scores, -1000000000.0)
            p = _softmax(scores, axis=-1)
            o = torch.einsum('bhqk,bhke->bhqe', p, v)
            o = torch.einsum('bhte,hed->btd', o, Wo)
            mem = o[:, :M, :].clone()
            outs.append(o[:, M:, :])
        return torch.concatenate(outs, axis=1)

    def _B_ref(x, w1, b1, w2):
        h = torch.einsum('bsd,df->bsf', x, w1) + b1
        sp = torch.log1p(torch.exp(-torch.abs(h))) + torch.where(h > 0, h, torch.zeros_like(h))
        act = h * torch.tanh(sp)
        return torch.einsum('bsf,fd->bsd', act, w2)
    x = A_x
    xn = _layernorm(x, axis=-1)
    return x + _A_ref(xn, A_mem0, A_Wq, A_Wk, A_Wv, A_Wo, A_seg_len) + _B_ref(xn, B_w1, B_b1, B_w2)
```

```python
import re

class Tok:
    __slots__ = ("kind", "idx")
    def __init__(self, kind, idx): self.kind = kind; self.idx = idx

class Asm:
    def __init__(self):
        self.lines = []
        self.vm_n = 0
        self.vm_done = 0
        self.lg_n = 0
        self.lg_done = 0
        self._lab = 0
    def __call__(self, s):
        for ln in s.split("\n"):
            ln = ln.strip()
            if ln: self.lines.append(ln)
    def label(self, name): self.lines.append(name + ":")
    def newlabel(self, base="L"):
        self._lab += 1
        return f"{base}_{self._lab}"
    def comment(self, s): self.lines.append("; " + s)
    def vm(self, s):
        self(s); self.vm_n += 1
        return Tok("vm", self.vm_n - 1)
    def lg(self, s):
        self(s); self.lg_n += 1
        return Tok("lg", self.lg_n - 1)
    def wait(self, *toks, force=False):
        vmc = None; lgc = None
        for t in toks:
            if t is None: continue
            if t.kind == "vm":
                if t.idx >= self.vm_done or force:
                    c = self.vm_n - 1 - t.idx
                    vmc = c if vmc is None else min(vmc, c)
            else:
                if t.idx >= self.lg_done or force:
                    c = self.lg_n - 1 - t.idx
                    lgc = c if lgc is None else min(lgc, c)
        parts = []
        if vmc is not None:
            vmc = min(vmc, 63); assert vmc >= 0
            parts.append(f"vmcnt({vmc})"); self.vm_done = max(self.vm_done, self.vm_n - vmc)
        if lgc is not None:
            lgc = min(lgc, 15); assert lgc >= 0
            parts.append(f"lgkmcnt({lgc})"); self.lg_done = max(self.lg_done, self.lg_n - lgc)
        if parts: self("s_waitcnt " + " ".join(parts))
    def wait_all_vm(self):
        self("s_waitcnt vmcnt(0)"); self.vm_done = self.vm_n
    def wait_all_lg(self):
        self("s_waitcnt lgkmcnt(0)"); self.lg_done = self.lg_n
    def wait_all(self):
        self("s_waitcnt vmcnt(0) lgkmcnt(0)"); self.vm_done = self.vm_n; self.lg_done = self.lg_n
    def assume_outstanding(self, vm=0, lg=0):
        self.vm_n += vm; self.lg_n += lg
    def state(self): return (self.vm_n, self.vm_done, self.lg_n, self.lg_done)
    def set_state(self, st): self.vm_n, self.vm_done, self.lg_n, self.lg_done = st
    def text(self, fix=True):
        lines = fix_hazards(self.lines) if fix else self.lines
        out = []
        for ln in lines:
            if ln.endswith(":") and not ln.startswith(";"): out.append(ln)
            else: out.append("  " + ln)
        return "\n".join(out) + "\n"

_reg_re = re.compile(r"(?<![\w.])([vas])\[(\d+):(\d+)\]|(?<![\w.\[])([vas])(\d+)(?![\w\[])|(?<![\w.])(vcc_lo|vcc_hi|vcc|exec_lo|exec_hi|exec|m0|scc)(?![\w])")
def regs_of(op):
    out = []
    for m in _reg_re.finditer(op):
        if m.group(1):
            out += [(m.group(1), k) for k in range(int(m.group(2)), int(m.group(3)) + 1)]
        elif m.group(4):
            out.append((m.group(4), int(m.group(5))))
        else:
            n = m.group(6)
            if n.startswith("vcc"): out.append(("x", "vcc"))
            elif n.startswith("exec"): out.append(("x", "exec"))
            else: out.append(("x", n))
    return out

TRANS = ("v_exp_", "v_log_", "v_rcp_", "v_rsq_", "v_sqrt_", "v_sin_", "v_cos_")
def split_ops(rest):
    ops = []; depth = 0; cur = ""
    for ch in rest:
        if ch == "[" or ch == "(": depth += 1
        if ch == "]" or ch == ")": depth -= 1
        if ch == "," and depth == 0:
            ops.append(cur.strip()); cur = ""
        else: cur += ch
    if cur.strip(): ops.append(cur.strip())
    return ops

class Ins:
    __slots__ = ("txt", "mn", "kind", "dst", "src", "passes", "states", "srcc", "wide_data", "is_dpp", "sgpr_src_const")
def mfma_passes(mn):
    if "32x32" in mn: return 8
    if "16x16" in mn: return 4
    if "4x4" in mn: return 2
    raise ValueError(mn)
def parse(ln):
    I = Ins(); I.txt = ln; I.dst = []; I.src = []; I.passes = 0; I.states = 1; I.srcc = []; I.wide_data = []; I.is_dpp = False
    code = ln.split(";")[0].strip()
    parts = code.split(None, 1)
    mn = parts[0]; I.mn = mn
    rest = parts[1] if len(parts) > 1 else ""
    ops = split_ops(rest)
    if mn == "s_nop":
        I.kind = "nop"; I.states = int(ops[0], 0) + 1; return I
    if mn.startswith("v_mfma") or mn.startswith("v_smfmac"):
        I.kind = "mfma"; I.passes = mfma_passes(mn)
        I.dst = regs_of(ops[0])
        a, b, c = regs_of(ops[1]), regs_of(ops[2]), regs_of(ops[3].split()[0])
        if mn.startswith("v_smfmac"):
            I.src = a + b + c; I.srcc = list(I.dst)
        else:
            I.src = a + b; I.srcc = c
        return I
    if mn.startswith("v_"):
        I.kind = "valu"
        if "dpp" in mn or "row_" in rest or "quad_perm" in rest: I.is_dpp = True
        if mn.startswith("v_cmp"):
            I.dst = regs_of(ops[0]); I.src = sum((regs_of(o) for o in ops[1:]), [])
            if mn.startswith("v_cmpx"): I.dst.append(("x", "exec"))
        elif mn.startswith("v_permlane") and "swap" in mn:
            I.dst = regs_of(ops[0]) + regs_of(ops[1]); I.src = list(I.dst)
        elif mn.startswith(("v_add_co", "v_sub_co", "v_addc_co", "v_subb_co", "v_subrev_co")):
            I.dst = regs_of(ops[0]) + regs_of(ops[1]); I.src = sum((regs_of(o) for o in ops[2:]), [])
        else:
            I.dst = regs_of(ops[0]); I.src = sum((regs_of(o) for o in ops[1:]), [])
            if mn.startswith(("v_fmac", "v_mac", "v_pk_fmac", "v_dot2c", "v_writelane")): I.src += I.dst
            if mn.startswith("v_cndmask") and len(ops) == 3: I.src.append(("x", "vcc"))
            if I.is_dpp: I.src += I.dst
        return I
    if mn.startswith("ds_"):
        I.kind = "ds"
        if mn.startswith("ds_read") or mn.startswith("ds_bpermute") or mn.startswith("ds_swizzle") or mn.startswith("ds_permute"):
            I.dst = regs_of(ops[0]); I.src = sum((regs_of(o) for o in ops[1:]), [])
        else:
            I.src = sum((regs_of(o) for o in ops), [])
        return I
    if mn.startswith("buffer_") or mn.startswith("global_") or mn.startswith("flat_"):
        I.kind = "vmem"
        allr = [regs_of(o) for o in ops]
        is_lds = (" lds" in (" " + rest)) or "load_lds" in mn
        if mn in ("buffer_wbl2", "buffer_inv"): return I
        if "load" in mn and not is_lds:
            I.dst = allr[0]; I.src = sum(allr[1:], [])
        elif "atomic" in mn:
            I.src = sum(allr, [])
            if " sc0" in (" " + rest):
                I.dst = allr[0]
        elif "store" in mn:
            I.src = sum(allr, [])
            data = allr[0] if mn.startswith("buffer_") else allr[1]
            if mn.endswith("x4") or mn.endswith("x3"): I.wide_data = data
        else:
            I.src = sum(allr, [])
            if is_lds: I.src.append(("x", "m0"))
        if is_lds and ("x", "m0") not in I.src: I.src.append(("x", "m0"))
        return I
    if mn.startswith("s_"):
        I.kind = "salu"
        if mn.startswith(("s_waitcnt", "s_barrier", "s_branch", "s_cbranch", "s_endpgm", "s_setprio", "s_sleep", "s_setpc")):
            if mn.startswith("s_cbranch_vcc"): I.src = [("x", "vcc")]
            return I
        if mn.startswith("s_getpc"):
            I.dst = regs_of(ops[0]); return I
        if mn.startswith("s_cmp") or mn.startswith("s_bitcmp"):
            I.src = sum((regs_of(o) for o in ops), []); return I
        if ops:
            I.dst = regs_of(ops[0]); I.src = sum((regs_of(o) for o in ops[1:]), [])
            if "saveexec" in mn: I.dst.append(("x", "exec"))
        return I
    raise ValueError("cannot parse: " + ln)

def is_sg(r): return r[0] == "s" or r == ("x", "vcc")
def is_vg(r): return r[0] in ("v", "a")

def need_states(p, c):
    n = 0
    pd = set(p.dst)
    if p.kind == "valu":
        vd = {r for r in pd if is_vg(r)}
        sd = {r for r in pd if is_sg(r)}
        cs = set(c.src) | set(c.srcc)
        if c.kind == "mfma" and vd & cs: n = max(n, 2)
        if c.kind == "valu":
            if vd & set(c.src):
                if c.mn.startswith("v_permlane"): n = max(n, 2)
                if c.is_dpp: n = max(n, 2)
                if c.mn.startswith(("v_readlane", "v_readfirstlane")): n = max(n, 1)
                if p.mn.startswith(TRANS) and not c.mn.startswith(TRANS): n = max(n, 1)
                if p.mn.startswith(TRANS) and c.mn.startswith(TRANS): n = max(n, 1)
                if "sdwa" in p.txt or "op_sel" in p.txt: n = max(n, 1)
            if sd & set(c.src):
                n = max(n, 4 if c.mn.startswith(("v_readlane", "v_writelane")) else 2)
            if p.mn.startswith("v_dot") and vd & (set(c.src) | set(c.dst)):
                if c.mn == p.mn:
                    ops = split_ops(c.txt.split(None, 1)[1])
                    ab = set(regs_of(ops[1]) + regs_of(ops[2]))
                    if vd & ab: n = max(n, 3)
                else: n = max(n, 3)
            if ("x", "exec") in pd:
                if c.mn.startswith(("v_readlane", "v_readfirstlane", "v_writelane", "v_permlane")): n = max(n, 4)
                if c.is_dpp: n = max(n, 5)
        if c.kind == "mfma" and ("x", "exec") in pd: n = max(n, 4)
        if p.mn.startswith("v_dot") and c.kind in ("ds", "vmem", "mfma") and vd & cs: n = max(n, 3)
        if c.kind == "vmem" and sd & set(c.src): n = max(n, 5)
        if c.kind == "salu" and sd & set(c.src): n = max(n, 1)
    if p.kind == "mfma":
        big = {2: 5, 4: 8, 8: 12, 16: 20}[p.passes]
        ovl = {2: 4, 4: 6, 8: 10, 16: 18}[p.passes]
        war = {2: 1, 4: 3, 8: 7, 16: 15}[p.passes]
        if c.kind == "mfma":
            if pd & set(c.src): n = max(n, big)
            if pd & set(c.srcc):
                same = (set(c.srcc) == pd and c.passes == p.passes)
                if not same: n = max(n, ovl)
                elif p.passes == 2: n = max(n, 2)
            if (pd & set(c.dst)) and not (pd & set(c.srcc)):
                n = max(n, big)
        elif c.kind in ("valu",):
            if pd & (set(c.src) | set(c.dst)): n = max(n, big)
            if set(p.srcc) & set(c.dst): n = max(n, war)
        elif c.kind in ("ds", "vmem"):
            if pd & (set(c.src) | set(c.dst)): n = max(n, big)
    if p.kind == "vmem" and p.wide_data:
        wd = set(p.wide_data)
        if wd & set(c.dst): n = max(n, 2 if c.kind == "valu" else 1)
    if p.kind == "salu" and ("x", "m0") in pd:
        if c.kind in ("vmem", "ds") and ("x", "m0") in c.src: n = max(n, 1)
    return n

LOOKBACK = 22
def fix_hazards(lines):
    items = []
    for ln in lines:
        if ln.startswith(";") or ln.startswith(".") or ln.endswith(":"): items.append((ln, None))
        else: items.append((ln, parse(ln)))
    labels = {ln[:-1]: k for k, (ln, I) in enumerate(items) if I is None and ln.endswith(":") and not ln.startswith(";")}
    out = []
    def required(hist, c):
        need = 0; dist = 0
        for p in reversed(hist):
            r = need_states(p, c)
            if r > dist: need = max(need, r - dist)
            dist += p.states
            if dist > LOOKBACK: break
        return need
    hist = []
    branch_hist = {}
    def run(record_only):
        nonlocal hist
        res = []; hist = []
        for k, (ln, I) in enumerate(items):
            if I is None:
                if ln.endswith(":") and not ln.startswith(";"):
                    lab = ln[:-1]
                    res.append((ln, None, lab));
                    cur_alts[0] = [list(h) for h in branch_hist.get(lab, [])]
                    cur_alts[1] = 0
                else: res.append((ln, None, None))
                continue
            need = required(hist, I)
            for alt in cur_alts[0]:
                need = max(need, required(alt, I))
            if need > 0:
                left = need
                while left > 0:
                    n = min(left, 16); nop = parse(f"s_nop {n-1}")
                    res.append((nop.txt, nop, None)); hist.append(nop)
                    for alt in cur_alts[0]: alt.append(nop)
                    left -= n
            res.append((ln, I, None)); hist.append(I)
            for alt in cur_alts[0]: alt.append(I)
            cur_alts[1] += I.states
            if cur_alts[1] > LOOKBACK: cur_alts[0] = []
            if len(hist) > 64: hist = hist[-40:]
            if I.mn.startswith(("s_branch", "s_cbranch")):
                tgt = ln.split()[-1]
                branch_hist.setdefault(tgt, [])
                snap = list(hist[-LOOKBACK:])
                new_branch_hist.setdefault(tgt, []).append(snap)
                if I.mn == "s_branch": hist = []
            if I.mn in ("s_endpgm", "s_setpc_b64"): hist = []
        return res
    cur_alts = [[], 0]
    res = None
    for it in range(3):
        new_branch_hist = {}
        cur_alts = [[], 0]
        res = run(False)
        branch_hist = new_branch_hist
    return [r[0] for r in res]
```

```python
from asmlib import *
from layout import *

LDS_M, LDS_TQ, LDS_TK, LDS_TO, LDS_KX, LDS_L = 0, 10240, 12288, 14336, 16384, 24576
LDS_TOTAL = 163840

S_WS = 4
S_W = 8
sH, sW, sStep, sTag = 12, 13, 14, 15
sMrd, sMwr, sMpo = 16, 17, 18
sP0, sP1, sPl = 19, 20, 21
sPrd, sRedM, sIsRed = 22, 23, 24
sKV, sKVM = 25, 26
sKM, sVM, sVX = 75, 27, 54
sFlK, sFlV, sPF, sKXb = 95, 71, 73, 72
sKMo, sFlPub = 69, 70
sKX0, sFlagCur = 55, 96
sSWb = 90
sSel = 28
sLo32 = 36
sC, sOnes, sHalf, sFE = 38, 39, 40, 41
sW2560, sW512, sLb, sSW, sW2048 = 42, 43, 44, 45, 46
sT0, sT1, sT2, sT3 = 47, 48, 49, 50
sFlagOff = 51
sHi32 = 52
sWq, sWk, sWv, sWo, sMem0 = 56, 58, 60, 62, 64
sDbg = 66
sSpin = 74
def spin(a):
    a(f"s_sub_u32 s{sSpin}, s{sSpin}, 1")
    a("s_cbranch_scc1 L_TIMEOUT")
vL16, vAoff, vIdx, vTr, vTw, vPst, vLb, vFl = 0, 1, 2, 3, 4, 5, 6, 7

def vr(b, n): return f"v[{b}:{b+n-1}]"
def rtile(idx):
    if idx < 32: return f"a[{8*idx}:{8*idx+7}]", ("a", 8 * idx)
    b = 80 + 8 * (idx - 32)
    return f"v[{b}:{b+7}]", ("v", b)

S_TILES = [("q", 0), ("k", 0), ("q", 6), ("k", 7), ("q", 15), ("k", 16), ("q", 18), ("k", 19), ("v", 19)]
L_TILES = [("k", j) for j in (1, 2, 3, 4, 5, 6, 8, 9)] + \
          [("o", n // 4, n % 4) for n in (1, 3, 5, 7, 9, 11, 13, 15, 17)]
ALL_TILES = [("q", j) for j in range(20)] + [("k", j) for j in range(20)] + [("v", j) for j in range(20)] + \
            [("o", p, m) for p in range(5) for m in range(4)]
R_TILES = [t for t in ALL_TILES if t not in S_TILES and t not in L_TILES]
assert len(R_TILES) == 54 and len(L_TILES) == 17 and len(S_TILES) == 9
R_IDX = {t: i for i, t in enumerate(R_TILES)}
L_IDX = {t: i for i, t in enumerate(L_TILES)}
S_IDX = {t: i for i, t in enumerate(S_TILES)}

def srd(a, s, lo, nbytes):
    a(f"s_mov_b32 s{s}, s{lo}")
    a(f"s_and_b32 s{s+1}, s{lo+1}, 0xffff")
    a(f"s_mov_b32 s{s+2}, {nbytes}")
    a(f"s_mov_b32 s{s+3}, 0x20000")

def lane_consts(a):
    a("v_and_b32 v8, 63, v0")
    a("v_and_b32 v9, 15, v8")
    a("v_lshrrev_b32 v10, 4, v8")
    a(f"v_lshlrev_b32 v{vL16}, 4, v8")
    a("v_and_b32 v11, 7, v9")
    a("v_lshl_add_u32 v11, v10, 3, v11")
    a(f"v_lshlrev_b32 v{vAoff}, 4, v11")
    a("v_mov_b32 v12, 0x4444")
    a("v_mov_b32 v13, 0xeeee")
    a("v_cmp_gt_u32 vcc, 8, v9")
    a(f"v_cndmask_b32 v{vIdx}, v13, v12, vcc")
    a("v_lshrrev_b32 v11, 2, v9")
    a("v_lshl_add_u32 v11, v10, 3, v11")
    a("v_lshlrev_b32 v11, 4, v11")
    a("v_and_b32 v12, 1, v9")
    a(f"v_lshl_add_u32 v{vTr}, v12, 3, v11")
    a("v_lshrrev_b32 v11, 1, v10")
    a("v_lshl_add_u32 v11, v11, 4, v9")
    a(f"s_lshl_b32 s{sT0}, s{sW}, 5")
    a(f"v_add_u32 v11, s{sT0}, v11")
    a("v_lshlrev_b32 v11, 4, v11")
    a("v_and_b32 v12, 1, v10")
    a(f"v_lshl_add_u32 v{vTw}, v12, 3, v11")
    a("v_lshlrev_b32 v11, 13, v10")
    a(f"v_lshl_add_u32 v{vPst}, v9, 4, v11")
    a("v_bfe_u32 v11, v9, 1, 2")
    for R in range(4):
        a(f"v_cmp_eq_u32 s[{sSel+2*R}:{sSel+2*R+1}], {R}, v11")
    a(f"v_cmp_gt_u32 s[{sLo32}:{sLo32+1}], 32, v8")
    a(f"v_cmp_le_u32 s[{sHi32}:{sHi32+1}], 32, v8")

def lone_off(a, dst, tmp):
    a(f"v_bfe_u32 v{tmp}, v{vPst}, 14, 1")
    a(f"v_and_b32 v{dst}, 0x20f0, v{vPst}")
    a(f"v_lshl_or_b32 v{dst}, v{tmp}, 3, v{dst}")

def scalar_consts(a):
    a(f"s_mul_i32 s{sW2560}, s{sW}, 2560")
    a(f"s_lshl_b32 s{sW512}, s{sW}, 9")
    a(f"s_lshl_b32 s{sW2048}, s{sW}, 11")
    a(f"s_add_u32 s{sLb}, s{sW2048}, {LDS_L}")
    a(f"s_lshl_b32 s{sT0}, s{sH}, 2")
    a(f"s_add_u32 s{sT0}, s{sT0}, s{sW}")
    a(f"s_mul_i32 s{sT0}, s{sT0}, {9*2048}")
    a(f"s_add_u32 s{sSW}, s{sT0}, {WS_SW}")
    for k in range(5): a(f"s_add_u32 s{sSWb+k}, s{sSW}, {k*4096}")
    a(f"s_lshl_b32 s{sT0}, s{sH}, 8")
    a(f"s_lshl_b32 s{sT1}, s{sW}, 16")
    a(f"s_add_u32 s{sP0}, s{sT0}, s{sT1}")
    a(f"s_add_u32 s{sP0}, s{sP0}, {WS_P}")
    a(f"s_add_u32 s{sP1}, s{sP0}, {4*8192}")
    a(f"s_lshl_b32 s{sT1}, s{sW}, 14")
    a(f"s_add_u32 s{sPl}, s{sT0}, s{sT1}")
    a(f"s_add_u32 s{sPl}, s{sPl}, {WS_P + 32*8192}")
    a(f"s_mov_b32 s{sIsRed}, 0")
    a(f"s_cmp_eq_u32 s{sW}, 0")
    a(f"s_cselect_b32 s{sIsRed}, 1, 0")
    a(f"s_cmp_lt_u32 s{sH}, 8")
    a(f"s_cselect_b32 s{sT1}, 1, 0")
    a(f"s_cmp_eq_u32 s{sW}, 1")
    a(f"s_cselect_b32 s{sT1}, s{sT1}, 0")
    a(f"s_or_b32 s{sIsRed}, s{sIsRed}, s{sT1}")
    a(f"s_add_u32 s{sT2}, s{sH}, 32")
    a(f"s_cmp_eq_u32 s{sW}, 0")
    a(f"s_cselect_b32 s{sT2}, s{sH}, s{sT2}")
    a(f"s_min_u32 s{sT2}, s{sT2}, 39")
    a(f"s_lshl_b32 s{sPrd}, s{sT2}, 13")
    a(f"s_add_u32 s{sPrd}, s{sPrd}, {WS_P}")
    a(f"s_lshr_b32 s{sT0}, s{sT2}, 3")
    a(f"s_mul_i32 s{sT0}, s{sT0}, 20")
    a(f"s_bfe_u32 s{sT1}, s{sT2}, 0x10002")
    a(f"s_lshl_b32 s{sT1}, s{sT1}, 3")
    a(f"s_add_u32 s{sT0}, s{sT0}, s{sT1}")
    a(f"s_bfe_u32 s{sT1}, s{sT2}, 0x10001")
    a(f"s_lshl_b32 s{sT1}, s{sT1}, 2")
    a(f"s_add_u32 s{sT0}, s{sT0}, s{sT1}")
    a(f"s_sub_u32 s{sT1}, s{sT2}, 32")
    a(f"s_lshr_b32 s{sT1}, s{sT1}, 1")
    a(f"s_mul_i32 s{sT1}, s{sT1}, 20")
    a(f"s_add_u32 s{sT1}, s{sT1}, 16")
    a(f"s_cmp_lt_u32 s{sT2}, 32")
    a(f"s_cselect_b32 s{sT0}, s{sT0}, s{sT1}")
    a(f"s_lshl_b32 s{sT0}, s{sT0}, 7")
    a(f"s_and_b32 s{sT1}, s{sT2}, 1")
    a(f"s_lshl_b32 s{sT1}, s{sT1}, 6")
    a(f"s_add_u32 s{sRedM}, s{sT0}, s{sT1}")
    import struct, math
    c = struct.unpack("<I", struct.pack("<f", (128 ** -0.5) * math.log2(math.e)))[0]
    a(f"s_mov_b32 s{sC}, {c:#x}")
    a(f"s_mov_b32 s{sOnes}, 0x3f803f80")
    a(f"s_mov_b32 s{sHalf}, 0x3f003f00")
    a(f"s_mov_b32 s{sFE}, 0xfffffffe")

def unit_src(t):
    if t[0] in "qkv":
        base, X = kstep_base(t[1])
        return {"q": sWq, "k": sWk, "v": sWv}[t[0]], [(base + uu * X) * 8192 for uu in range(2)], False
    p, m = t[1], t[2]
    return sWo, [(32 * m + 16 * uu) * 1280 + 256 * p for uu in range(2)], True

def weights_prologue(a):
    vG, vGo, vTa, vTmp = 8, 9, 10, 12
    a(f"v_lshrrev_b32 v11, 4, v{vL16}")
    a("v_lshrrev_b32 v20, 4, v11")
    a("v_and_b32 v21, 15, v11")
    a(f"v_lshlrev_b32 v{vG}, 13, v20")
    a(f"v_lshl_add_u32 v{vG}, v21, 4, v{vG}")
    a("s_movk_i32 s47, 1280")
    a(f"v_mul_lo_u32 v{vGo}, v20, s47")
    a(f"v_lshl_add_u32 v{vGo}, v21, 4, v{vGo}")
    a("v_lshrrev_b32 v22, 2, v21")
    a("v_and_b32 v23, 1, v22")
    a("v_lshl_add_u32 v23, v20, 2, v23")
    a("v_lshlrev_b32 v23, 8, v23")
    a("v_lshrrev_b32 v22, 1, v22")
    a("v_lshl_add_u32 v23, v22, 5, v23")
    a("v_and_b32 v22, 3, v21")
    a("v_lshl_add_u32 v23, v22, 3, v23")
    a(f"s_lshl_b32 s{sT0}, s{sW}, 6")
    a(f"v_add_u32 v{vTa}, s{sT0}, v23")
    sBq, sBo = 96, 97
    a(f"s_lshl_b32 s{sT0}, s{sW}, 15")
    a(f"s_lshl_b32 s{sT1}, s{sH}, 8")
    a(f"s_add_u32 s{sBq}, s{sT0}, s{sT1}")
    a(f"s_lshl_b32 s{sT0}, s{sH}, 7")
    a(f"s_lshl_b32 s{sT1}, s{sW}, 2")
    a(f"s_add_u32 s{sT0}, s{sT0}, s{sT1}")
    a(f"s_mul_i32 s{sBo}, s{sT0}, 1280")
    non_l = [t for t in ALL_TILES if t not in L_TILES]
    order = non_l + L_TILES
    n = len(order)
    slot = {}
    for k in range(n - 1, -1, -1):
        slot[k] = L_IDX[order[k]] if k >= n - 17 else slot[k + 17]
    cur_ptr = [None]
    toks = {}
    def issue(k):
        t = order[k]
        ptr, offs, is_wo = unit_src(t)
        if cur_ptr[0] != ptr:
            srd(a, S_W, ptr, 5242880); cur_ptr[0] = ptr
        for uu in range(2):
            a(f"s_add_u32 s{sT0}, s{sBo if is_wo else sBq}, {offs[uu]}")
            a(f"s_add_u32 m0, s{sW2048}, {LDS_L + slot[k]*8192 + uu*1024}")
            toks[(k, uu)] = a.vm(f"buffer_load_dwordx4 v{vGo if is_wo else vG}, s[{S_W}:{S_W+3}], s{sT0} offen{WMOD} lds")
    DEPTH = 17
    for k in range(DEPTH): issue(k)
    pendL = None
    for k in range(n):
        t = order[k]
        a.wait(toks[(k, 1)])
        a("s_barrier")
        if pendL is not None:
            pk, pb = pendL
            a(f"v_add_u32 v11, s{sLb}, v{vL16}")
            a(f"v_add_u32 v11, {slot[pk]*8192}, v11")
            a.lg(f"ds_write_b128 v11, {vr(pb,4)}")
            a.lg(f"ds_write_b128 v11, {vr(pb+4,4)} offset:1024")
            pendL = None
        if k >= 1 and k - 1 + 17 < n: issue(k - 1 + 17)
        a(f"v_add_u32 v11, {LDS_L + slot[k]*8192}, v{vTa}")
        if t in R_IDX:
            _, (cls, b) = rtile(R_IDX[t])
        else:
            cls, b = "v", (vTmp if k % 2 == 0 else vTmp + 8)
        last = None
        for q, off in enumerate((0, 512, 4096, 4608)):
            last = a.lg(f"ds_read_b64_tr_b16 {cls}[{b+2*q}:{b+2*q+1}], v11 offset:{off}")
        a.wait(last)
        if t in S_IDX:
            si = S_IDX[t]
            a(f"s_add_u32 s{sT1}, s{sSW}, {si*2048}")
            a.vm(f"buffer_store_dwordx4 {vr(b,4)}, v{vL16}, s[{S_WS}:{S_WS+3}], s{sT1} offen")
            a.vm(f"buffer_store_dwordx4 {vr(b+4,4)}, v{vL16}, s[{S_WS}:{S_WS+3}], s{sT1} offen offset:1024")
        if t in L_IDX: pendL = (k, b)
    a("s_barrier")
    pk, pb = pendL
    a(f"v_add_u32 v11, s{sLb}, v{vL16}")
    a(f"v_add_u32 v11, {slot[pk]*8192}, v11")
    a.lg(f"ds_write_b128 v11, {vr(pb,4)}")
    a.lg(f"ds_write_b128 v11, {vr(pb+4,4)} offset:1024")
    a.wait_all()

def mem0_image(a):
    a("; ---- mem0 -> LDS image")
    srd(a, S_W, sMem0, 8 * 1280)
    a(f"v_lshrrev_b32 v8, 4, v{vL16}")
    a(f"s_lshl_b32 s{sT0}, s{sW}, 6")
    a(f"v_add_u32 v8, s{sT0}, v8")
    a(f"s_mov_b32 s{sT1}, 13108")
    toks = []
    for n in range(5):
        b = 10 + 12 * n
        q = b;
        a(f"v_add_u32 v{q}, {256*n}, v8")
        a(f"v_lshrrev_b32 v{b+1}, 4, v{q}")
        a(f"v_lshrrev_b32 v{b+2}, 2, v{b+1}")
        a(f"v_and_b32 v{b+3}, 3, v{b+1}")
        a(f"v_mul_u32_u24 v{b+4}, s{sT1}, v{b+2}")
        a(f"v_lshrrev_b32 v{b+4}, 16, v{b+4}")
        a(f"v_mul_u32_u24 v{b+5}, 5, v{b+4}")
        a(f"v_sub_u32 v{b+5}, v{b+2}, v{b+5}")
        a(f"v_and_b32 v{b+6}, 1, v{q}")
        a(f"v_lshrrev_b32 v{b+7}, 1, v{b+5}")
        a(f"v_lshlrev_b32 v{b+7}, 8, v{b+7}")
        a(f"v_and_b32 v{b+8}, 1, v{b+5}")
        a(f"v_lshl_add_u32 v{b+7}, v{b+8}, 4, v{b+7}")
        a(f"v_lshlrev_b32 v{b+8}, 7, v{b+6}")
        a(f"v_lshlrev_b32 v{b+9}, 4, v{b+6}")
        a(f"v_cmp_eq_u32 vcc, 4, v{b+5}")
        a(f"v_cndmask_b32 v{b+8}, v{b+8}, v{b+9}, vcc")
        a(f"v_add_u32 v{b+7}, v{b+7}, v{b+8}")
        a(f"v_lshl_add_u32 v{b+7}, v{b+4}, 5, v{b+7}")
        a(f"v_lshl_add_u32 v{b+7}, v{b+3}, 2, v{b+7}")
        a(f"v_bfe_u32 v{b+8}, v{q}, 1, 3")
        a(f"s_movk_i32 s{sT2}, 1280")
        a(f"v_mul_lo_u32 v{b+8}, v{b+8}, s{sT2}")
        a(f"v_lshl_add_u32 v{b+8}, v{b+7}, 1, v{b+8}")
        toks.append(a.vm(f"buffer_load_dwordx2 {vr(b+10,2)}, v{b+8}, s[{S_W}:{S_W+3}], 0 offen"))
        a(f"v_lshlrev_b32 v{b}, 3, v{q}")
    for n in range(5):
        b = 10 + 12 * n
        a.wait(toks[n])
        a.lg(f"ds_write_b64 v{b}, {vr(b+10,2)} offset:{LDS_M}")
    a.wait_all_lg()

def init_exchange(a, sc):
    a(f"v_add_u32 v{vLb}, s{sLb}, v{vL16}")
    for k in range(8, 12): a(f"v_mov_b32 v{k}, 1")
    a.vm(f"buffer_store_dwordx4 v[8:11], v{vPst}, s[{S_WS}:{S_WS+3}], s{sP0} offen{sc}")
    a.vm(f"buffer_store_dwordx4 v[8:11], v{vPst}, s[{S_WS}:{S_WS+3}], s{sP1} offen{sc}")
    lone_off(a, 12, 13)
    a.vm(f"buffer_store_dwordx2 v[8:9], v12, s[{S_WS}:{S_WS+3}], s{sPl} offen{sc}")
    skip = a.newlabel("IX")
    a(f"s_cmp_eq_u32 s{sIsRed}, 0")
    a(f"s_cbranch_scc1 {skip}")
    red_moff(a, 12, 13)
    a("v_mov_b32 v14, -1"); a("v_mov_b32 v15, -1")
    for sl in range(4):
        a(f"s_add_u32 s{sT0}, s{sRedM}, {WS_M + sl*MSLOT}")
        a(f"buffer_store_dwordx2 v[14:15], v12, s[{S_WS}:{S_WS+3}], s{sT0} offen{sc}")
    a.label(skip)
    a.wait_all_vm()

def red_moff(a, dst, tmp):
    a(f"v_lshrrev_b32 v{dst}, 8, v{vL16}")
    a(f"v_lshlrev_b32 v{dst}, 7, v{dst}")
    a(f"v_and_b32 v{tmp}, 0x30, v{vL16}")
    a(f"v_add_u32 v{dst}, v{dst}, v{tmp}")
    a(f"v_bfe_u32 v{tmp}, v{vL16}, 6, 1")
    a(f"v_lshl_add_u32 v{dst}, v{tmp}, 3, v{dst}")

def flag_off(a):
    a(f"s_mov_b32 s{sFlagCur}, s{sFlagOff}")
    a(f"s_add_u32 s{sT0}, s{sStep}, 1")
    a(f"s_lshr_b32 s{sT0}, s{sT0}, 4")
    a(f"s_min_u32 s{sT0}, s{sT0}, 3")
    a(f"s_lshl_b32 s{sT0}, s{sT0}, 6")
    a(f"s_lshr_b32 s{sT1}, s{sH}, 1")
    a(f"s_lshl_b32 s{sT1}, s{sT1}, 2")
    a(f"s_add_u32 s{sFlagOff}, s{sT0}, s{sT1}")
    a(f"s_add_u32 s{sFlagOff}, s{sFlagOff}, {FL_KV}")

PF_DIST = 1
WMOD = ' nt'
KXNT = ' nt'
OPTS = set()
NT = ''
def step_offsets(a):
    a(f"s_lshl_b32 s{sT0}, s{sStep}, 5")
    a(f"s_add_u32 s{sT0}, s{sT0}, s{sH}")
    a(f"s_lshl_b32 s{sT1}, s{sT0 if 'samekv' not in OPTS else sH}, 12")
    a(f"s_lshl_b32 s{sT2}, s{sW}, 10")
    a(f"s_add_u32 s{sT1}, s{sT1}, s{sT2}")
    a(f"s_add_u32 s{sKM}, s{sT1}, {WS_KM}")
    if 'samex' in OPTS: a(f"s_mov_b32 s{sT0}, s{sH}")
    a(f"s_lshl_b32 s{sT1}, s{sT0}, 13")
    a(f"s_add_u32 s{sT1}, s{sT1}, s{sW2048}")
    a(f"s_add_u32 s{sVX}, s{sT1}, {WS_VX}")
    a(f"s_sub_u32 s{sKX0}, s{sVX}, {WS_VX - WS_KX}")
    a(f"s_lshl_b32 s{sT1}, s{sT0}, 13")
    a(f"s_add_u32 s{sKXb}, s{sT1}, {WS_KX + 32*8192}")
    a(f"s_add_u32 s{sPF}, s{sKXb}, 0")
    a(f"s_add_u32 s{sT2}, s{sKXb}, {WS_VX - WS_KX}")
    a(f"s_cmp_lt_u32 s{sW}, 2")
    a(f"s_cselect_b32 s{sPF}, s{sPF}, s{sT2}")
    a(f"s_and_b32 s{sT2}, s{sW}, 1")
    a(f"s_lshl_b32 s{sT2}, s{sT2}, 12")
    a(f"s_add_u32 s{sPF}, s{sPF}, s{sT2}")
    flag_off(a)
    a(f"s_and_b32 s{sT0}, s{sStep}, 3")
    a(f"s_mul_i32 s{sT0}, s{sT0}, {MSLOT}")
    a(f"s_add_u32 s{sMrd}, s{sT0}, s{sW2560}")
    a(f"s_add_u32 s{sMrd}, s{sMrd}, {WS_M}")
    a(f"s_add_u32 s{sMwr}, s{sT0}, s{sRedM}")
    a(f"s_add_u32 s{sMwr}, s{sMwr}, {WS_M}")
    a(f"s_add_u32 s{sT0}, s{sStep}, 2")
    a(f"s_and_b32 s{sT0}, s{sT0}, 3")
    a(f"s_mul_i32 s{sT0}, s{sT0}, {MSLOT}")
    a(f"s_add_u32 s{sMpo}, s{sT0}, s{sRedM}")
    a(f"s_add_u32 s{sMpo}, s{sMpo}, {WS_M}")

def team_barrier(a, counter_off, target):
    a.wait_all_vm()
    a("s_barrier")
    lab = a.newlabel("TB"); skip = a.newlabel("TBs")
    a(f"s_cmp_lg_u32 s{sW}, 0")
    a(f"s_cbranch_scc1 {skip}")
    a(f"v_mov_b32 v8, {counter_off}")
    a("v_mov_b32 v9, 1")
    a("s_mov_b64 s[48:49], exec")
    a("s_mov_b64 exec, 1")
    a(f"buffer_atomic_add v9, v8, s[{S_WS}:{S_WS+3}], 0 offen")
    a("s_mov_b64 exec, s[48:49]")
    a.label(skip)
    a(f"v_mov_b32 v8, {counter_off}")
    a.label(lab)
    a(f"buffer_load_dword v9, v8, s[{S_WS}:{S_WS+3}], 0 offen sc1")
    spin(a)
    a("s_waitcnt vmcnt(0)")
    a(f"v_cmp_gt_u32 vcc, {target}, v9")
    a(f"s_cbranch_vccnz {lab}")

STAMP_REGS = [76, 78, 80, 82, 84, 86, 88, 56, 58, 60, 62]
class Step:
    def __init__(self, a, fast, stamp=None, opt=()):
        self.a = a
        self.opt = set(opt)
        self.sc = "" if fast else " sc1"
        self.stamp = stamp
        self.outofline = []
        self.nv1 = 14
        for o in self.opt:
            if o.startswith("nv"): self.nv1 = int(o[2:])
    def ws(self): return f"s[{S_WS}:{S_WS+3}]"
    def btile(self, t): return rtile(R_IDX[t])[0]
    def smf(self, acc, A, B):
        self.a(f"v_smfmac_f32_16x16x64_bf16 {vr(acc,4)}, {vr(A,4)}, {B}, v{vIdx}")
    def ld_s_half(self, t, dst, hf):
        if "noS" in self.opt: return None
        si = S_IDX[t]
        off = (si % 2) * 2048 + hf * 1024
        mod = ""
        for o in self.opt:
            if o.startswith("l1=") and si >= int(o[3:]): mod = " sc1"
            if o.startswith("l1nt=") and si >= int(o[5:]): mod = " nt"
        return self.a.vm(f"buffer_load_dwordx4 {vr(dst+4*hf,4)}, v{vL16}, {self.ws()}, s{sSWb + si//2} offen offset:{off}{mod}")
    def ld_s(self, t, dst):
        self.ld_s_half(t, dst, 0)
        return self.ld_s_half(t, dst, 1)
    def ld_l(self, t, dst, bases, base9=None):
        a = self.a
        if "noL" in self.opt: return None
        x = L_IDX[t]
        if base9 is not None: vb = base9; off = (x - 9) * 8192
        else: vb = bases[x // 8]; off = (x % 8) * 8192
        assert 0 <= off < 65536 - 1024
        a.lg(f"ds_read_b128 {vr(dst,4)}, v{vb} offset:{off}")
        return a.lg(f"ds_read_b128 {vr(dst+4,4)}, v{vb} offset:{off+1024}")

    def pre_poll(self):
        a = self.a
        a(f"v_and_b32 v40, 0x1f0, v{vL16}")
        a(f"v_add_u32 v41, s{sW2560}, v{vL16}")
        a(f"v_add_u32 v42, s{sW2560}, v40")
        for k in list(range(8, 16, 2)) + [76, 78]: a(f"v_mov_b64 v[{k}:{k+1}], 0")
        a(f"v_bfe_u32 v16, v{vL16}, 8, 1")
        a(f"v_lshlrev_b32 v16, 8, v16")
        a(f"v_add_u32 v16, s{sFlagOff}, v16")
        a(f"v_lshlrev_b32 v17, 3, v{vL16}")
        a(f"v_add_u32 v17, s{sPF}, v17")
        a(f"v_cndmask_b32 v{vFl}, v16, v17, s[{sLo32}:{sLo32+1}]")

    def early_a(self):
        self.stok = {}
        self.stok[("q", 0)] = self.ld_s(("q", 0), 44)
        self.stok[("k", 0)] = self.ld_s(("k", 0), 52)


    def m_loads(self):
        a = self.a
        a.vm(f"buffer_load_dwordx4 v[28:31], v{vL16}, {self.ws()}, s{sMrd} offen sc1")
        a.vm(f"buffer_load_dwordx4 v[32:35], v{vL16}, {self.ws()}, s{sMrd} offen offset:1024 sc1")
        return a.vm(f"buffer_load_dwordx4 v[36:39], v40, {self.ws()}, s{sMrd} offen offset:2048 sc1")
    def m_check(self):
        a = self.a
        a("v_max3_u32 v43, v29, v31, v33")
        a("v_max3_u32 v43, v43, v35, v37")
        a("v_max_u32 v43, v43, v39")
        a("v_cmp_eq_u32 vcc, -1, v43")

    def poll_m(self):
        a = self.a
        retry = a.newlabel("PMR"); ok = a.newlabel("PMK")
        tm = self.m_loads()
        if "eh" not in self.opt:
            self.early_a()
            a.wait(tm, force=True)
        else:
            self.stok = {("q", 0): None, ("k", 0): None}
            a.wait_all_vm()
        self.m_check()
        a(f"s_cbranch_vccnz {retry}")
        a.label(ok)
        o = Asm(); o._lab = a._lab + 1000
        o.label(retry)
        st = Step(o, True, None, self.opt); st.sc = self.sc
        st.m_loads(); spin(o); o.wait_all_vm(); st.m_check()
        o(f"s_cbranch_vccnz {retry}")
        o(f"s_branch {ok}")
        self.outofline += o.lines
        self.stamp_at(1)
        if self.stamp: a(f"s_mov_b32 s64, s{sSpin}")
        a.lg(f"ds_write_b128 v41, v[28:31] offset:{LDS_M}")
        a.lg(f"ds_write_b128 v41, v[32:35] offset:{LDS_M+1024}")
        a.lg(f"ds_write_b128 v42, v[36:39] offset:{LDS_M+2048}")

    def stamp_at(self, i, red=False):
        if red and "rst" not in self.opt: return
        if "rst" in self.opt and i in (3, 4, 5) and not red: return
        if self.stamp: self.a(f"s_memtime s[{STAMP_REGS[i]}:{STAMP_REGS[i]+1}]")
    def dump_stamps(self):
        if not self.stamp: return
        a = self.a
        a("s_waitcnt lgkmcnt(0)")
        for i in range(11):
            r = STAMP_REGS[i]
            a(f"v_writelane_b32 v43, s{r}, {i}")
        for i, r in enumerate((64, 65, 68)): a(f"v_writelane_b32 v43, s{r}, {11+i}")
        a(f"s_lshl_b32 s{sT0}, s{sH}, 2")
        a(f"s_add_u32 s{sT0}, s{sT0}, s{sW}")
        a(f"s_lshl_b32 s{sT0}, s{sT0}, 12")
        a(f"s_lshl_b32 s{sT1}, s{sStep}, 6")
        a(f"s_add_u32 s{sT0}, s{sT0}, s{sT1}")
        a(f"s_add_u32 s{sT0}, s{sT0}, {WS_STAMP}")
        a(f"v_lshrrev_b32 v42, 2, v{vL16}")
        a("s_mov_b64 s[48:49], exec")
        a("s_mov_b64 exec, 0x3fff")
        a(f"buffer_store_dword v43, v42, {self.ws()}, s{sT0} offen")
        a("s_mov_b64 exec, s[48:49]")

    def body(self, entry_label):
        a = self.a
        self.stamp_at(0)
        self.pre_poll()
        self.poll_m()
        a.label(entry_label)
        stok = self.stok
        sq = {("q",0):44, ("k",0):52, ("q",6):60, ("k",7):68, ("q",15):44, ("k",16):52, ("q",18):60, ("k",19):68}
        if "q6late" not in self.opt: stok[("q",6)] = self.ld_s(("q",6), 60)
        a.wait_all_lg()
        a("s_barrier")
        self.stamp_at(2)
        La = [16, 20, 24]; Lb = [28, 36]
        accV = 76
        NV1 = self.nv1
        atok = {}
        def rdA(j): atok[j] = a.lg(f"ds_read_b128 {vr(La[j%3],4)}, v{vAoff} offset:{LDS_M + 512*j}")
        vbuf = lambda jj: La[(jj - NV1 + 20) % 3]
        def rdAv(jj):
            if jj < 20: atok[("v", jj)] = a.lg(f"ds_read_b128 {vr(vbuf(jj),4)}, v{vAoff} offset:{LDS_M + 512*jj}")
        ltiles = [t for t in L_TILES if t[0] != "o"]
        ltok = {}
        def rdL(x):
            if x < len(ltiles): ltok[ltiles[x]] = self.ld_l(ltiles[x], Lb[x % 2], [vLb])
        rdA(0); rdA(1); rdL(0); rdL(1)
        late = {0: [(("k",7),0)], 1: [(("k",7),1)], 3: [(("q",15),0)], 4: [(("q",15),1)],
                5: [(("k",16),0)], 7: [(("k",16),1)], 8: [(("q",18),0)], 9: [(("q",18),1)],
                10: [(("k",19),0)], 11: [(("k",19),1)]}
        dma = {}
        if "q6late" in self.opt:
            late = {0: [(("q",6),0), (("q",6),1)], 1: [(("k",7),0)], 2: [(("k",7),1)], 3: [(("q",15),0)], 4: [(("q",15),1)],
                    5: [(("k",16),0)], 7: [(("k",16),1)], 8: [(("q",18),0)], 9: [(("q",18),1)], 10: [(("k",19),0)], 11: [(("k",19),1)]}
        nl = 0
        for j in range(20):
            waits = [atok[j]]
            for mat in "qk":
                t = (mat, j)
                if t in L_IDX: waits.append(ltok[t])
                if t in S_IDX: waits.append(stok[t])
            a.wait(*waits)
            tq_, tk_ = ("q", j), ("k", j)
            self.smf(8, La[j % 3], vr(sq[tq_], 8) if tq_ in S_IDX else self.btile(tq_))
            if j + 2 < 20: rdA(j + 2)
            else: rdAv(NV1 + j + 2 - 20)
            for t, hf in late.get(j, []):
                x = self.ld_s_half(t, sq[t], hf)
                if hf == 1: stok[t] = x
            if j in (13, 14) and "noKX" not in self.opt:
                if j == 13: a(f"s_add_u32 m0, s{sW2048}, {LDS_KX}")
                dma[j] = a.vm(f"buffer_load_dwordx4 v{vL16}, {self.ws()}, s{sKX0} offen offset:{(j-13)*1024} sc1{NT} lds")
            if tk_ in L_IDX: B = vr(Lb[nl % 2], 8)
            elif tk_ in S_IDX: B = vr(sq[tk_], 8)
            else: B = self.btile(tk_)
            self.smf(12, La[j % 3], B)
            if tk_ in L_IDX:
                nl += 1; rdL(nl + 1)
            if j < NV1: self.smf(accV, La[j % 3], self.btile(("v", j)))
        self.stamp_at(3)
        vt = {"n": NV1}
        svt = {}
        def vm_step(lim=19):
            j = vt["n"]
            if j >= lim: return
            t = ("v", j)
            w = [atok[("v", j)]]
            if t in S_IDX: w.append(svt[t]); B = vr(8, 8)
            else: B = self.btile(t)
            a.wait(*w)
            self.smf(accV, vbuf(j), B)
            rdAv(j + 2)
            vt["n"] += 1
        OB = [44, 60]
        def rd_kx(m, tile):
            return a.lg(f"ds_read_b128 {vr(OB[m%2]+8+4*tile,4)}, v{vL16} offset:{LDS_KX + (4*tile+m)*1024}")
        def rd_t(m, which):
            b = OB[m % 2] + 4 * which; base = (LDS_TQ, LDS_TK)[which] + m * 512
            a.lg(f"ds_read_b64_tr_b16 {vr(b,2)}, v{vTr} offset:{base}")
            return a.lg(f"ds_read_b64_tr_b16 {vr(b+2,2)}, v{vTr} offset:{base + 64}")
        kx = {}
        vm_step(); vm_step()
        a("v_cvt_pk_bf16_f32 v42, v8, v9")
        a("v_cvt_pk_bf16_f32 v43, v10, v11")
        tq = a.lg(f"ds_write_b64 v{vTw}, v[42:43] offset:{LDS_TQ}")
        a("v_cvt_pk_bf16_f32 v40, v12, v13")
        a("v_cvt_pk_bf16_f32 v41, v14, v15")
        tk = a.lg(f"ds_write_b64 v{vTw}, v[40:41] offset:{LDS_TK}")
        svt[("v", 19)] = self.ld_s(("v", 19), 8)
        vm_step(); vm_step()
        a.wait(tk, dma.get(14))
        a("s_barrier")
        self.stamp_at(4)
        tt = {}
        tt[(0,0)] = rd_t(0, 0); kx[(0,0)] = rd_kx(0, 0); kx[(0,1)] = rd_kx(0, 1); tt[(0,1)] = rd_t(0, 1)
        tt[(1,0)] = rd_t(1, 0); kx[(1,0)] = rd_kx(1, 0); kx[(1,1)] = rd_kx(1, 1); tt[(1,1)] = rd_t(1, 1)
        vm_step(); vm_step()
        X0, X1, MM = 28, 32, 36
        def sc(m, which):
            b = OB[m % 2]
            D = (X0, X1, MM)[which]; A = (b + 8, b + 12, b + 4)[which]
            need = [tt[(m, 0)], kx[(m, which)] if which < 2 else tt[(m, 1)]]
            a.wait(*need)
            a(f"v_mfma_f32_16x16x32_bf16 {vr(D,4)}, {vr(A,4)}, {vr(b,4)}, {'0' if m == 0 else vr(D,4)}")
        VX0, VX1 = 44, 48
        tvx1 = None
        for m in range(4):
            if m == 3:
                while vt["n"] < 20: vm_step(20)
            sc(m, 0)
            if m < 2: kx[(m+2, 0)] = rd_kx(m + 2, 0)
            if m >= 1 and m <= 2: tt[(m+1, 1)] = rd_t(m + 1, 1)
            sc(m, 1)
            if m < 2: kx[(m+2, 1)] = rd_kx(m + 2, 1)
            sc(m, 2)
            if m < 2: tt[(m+2, 0)] = rd_t(m + 2, 0)
            if m == 2 and "noVX" not in self.opt:
                a.vm(f"buffer_load_dwordx4 {vr(VX0,4)}, v{vL16}, {self.ws()}, s{sVX} offen sc1{NT}")
                tvx1 = a.vm(f"buffer_load_dwordx4 {vr(VX1,4)}, v{vL16}, {self.ws()}, s{sVX} offen offset:1024 sc1{NT}")
        a("v_cvt_pk_bf16_f32 v42, v76, v77")
        a("v_cvt_pk_bf16_f32 v43, v78, v79")
        self.pf_tok = None
        if "noPF" not in self.opt:
            self.pf_tok = a.vm(f"buffer_load_dword v{vFl}, v{vFl}, {self.ws()}, 0 offen sc1")
        else: a(f"v_mov_b32 v{vFl}, 1000")
        if "noKV" not in self.opt:
            a.vm(f"buffer_store_dwordx4 v[40:43], v{vL16}, {self.ws()}, s{sKM} offen sc1")
        nf = a.newlabel("NF")
        self.stamp_at(5)
        otiles = [t for t in L_TILES if t[0] == "o"]
        slots = [52, 60, 68, 44]
        a(f"v_add_u32 v24, 0x10000, v{vLb}")
        lt = {}
        for k in range(3): lt[otiles[k]] = self.ld_l(otiles[k], slots[k], [vLb, 24])
        a(f"v_cndmask_b32 v76, 0, v42, s[{sLo32}:{sLo32+1}]")
        a(f"v_cndmask_b32 v77, 0, v43, s[{sLo32}:{sLo32+1}]")
        a(f"v_cndmask_b32 v78, 0, v42, s[{sHi32}:{sHi32+1}]")
        a(f"v_cndmask_b32 v79, 0, v43, s[{sHi32}:{sHi32+1}]")
        m_, t_ = 26, 27
        a(f"v_max3_f32 v{m_}, v28, v29, v30")
        a(f"v_max3_f32 v{t_}, v31, v32, v33")
        a(f"v_max3_f32 v{m_}, v{m_}, v34, v35")
        a(f"v_max3_f32 v{t_}, v{t_}, v36, v37")
        a(f"v_max3_f32 v{m_}, v{m_}, v38, v39")
        a(f"v_max_f32 v{m_}, v{m_}, v{t_}")
        a(f"v_mov_b32 v{t_}, v{m_}")
        a(f"v_permlane32_swap_b32 v{m_}, v{t_}")
        a(f"v_max_f32 v{m_}, v{m_}, v{t_}")
        a(f"v_mov_b32 v{t_}, v{m_}")
        a(f"v_permlane16_swap_b32 v{m_}, v{t_}")
        a(f"v_max_f32 v{m_}, v{m_}, v{t_}")
        a(f"v_mul_f32 v{m_}, s{sC}, v{m_}")
        if "nopk" not in self.opt:
            for r in range(28, 40, 2):
                a(f"v_pk_fma_f32 v[{r}:{r+1}], v[{r}:{r+1}], s[{sC}:{sC+1}], v[{m_}:{m_+1}] op_sel_hi:[1,0,0] neg_lo:[0,0,1] neg_hi:[0,0,1]")
        else:
            for r in range(28, 40): a(f"v_fma_f32 v{r}, v{r}, s{sC}, -v{m_}")
        for r in range(28, 40): a(f"v_exp_f32 v{r}, v{r}")
        a("v_cvt_pk_bf16_f32 v28, v28, v29")
        a("v_cvt_pk_bf16_f32 v29, v30, v31")
        a("v_cvt_pk_bf16_f32 v30, v32, v33")
        a("v_cvt_pk_bf16_f32 v31, v34, v35")
        a("v_cvt_pk_bf16_f32 v36, v36, v37")
        a("v_cvt_pk_bf16_f32 v37, v38, v39")
        a(f"s_cmp_eq_u32 s{sStep}, {NSEG-1}")
        a(f"s_cbranch_scc1 {self.exit_label}")
        self.stamp_at(6)
        O0, O1 = 32, 16
        a.wait(tvx1)
        a(f"v_mfma_f32_16x16x32_bf16 {vr(O0,4)}, {vr(VX0,4)}, v[28:31], 0")
        a(f"v_dot2_f32_bf16 v40, v36, s{sHalf}, 0")
        a(f"v_dot2_f32_bf16 v41, v28, s{sOnes}, 0")
        a(f"v_mfma_f32_16x16x32_bf16 {vr(O1,4)}, {vr(VX1,4)}, v[28:31], 0")
        a(f"v_dot2_f32_bf16 v40, v37, s{sHalf}, v40")
        a(f"v_dot2_f32_bf16 v41, v29, s{sOnes}, v41")
        a(f"v_mfma_f32_16x16x16_bf16 {vr(O0,4)}, v[76:77], v[36:37], {vr(O0,4)}")
        a(f"v_dot2_f32_bf16 v40, v30, s{sOnes}, v40")
        a(f"v_dot2_f32_bf16 v41, v31, s{sOnes}, v41")
        a(f"v_mfma_f32_16x16x16_bf16 {vr(O1,4)}, v[78:79], v[36:37], {vr(O1,4)}")
        lt[otiles[3]] = self.ld_l(otiles[3], slots[3], [vLb, 24])
        a("v_add_f32 v40, v40, v41")
        a("v_mov_b32 v41, v40")
        a("v_permlane32_swap_b32 v40, v41")
        a("v_add_f32 v40, v40, v41")
        a("v_mov_b32 v41, v40")
        a("v_permlane16_swap_b32 v40, v41")
        a("v_add_f32 v40, v40, v41")
        a("v_rcp_f32 v40, v40")
        a(f"v_add_u32 v79, s{sW512}, v{vAoff}")
        for r in (O0, O0+2, O1, O1+2):
            a(f"v_pk_mul_f32 v[{r}:{r+1}], v[{r}:{r+1}], v[40:41] op_sel_hi:[1,0]")
        a(f"v_cvt_pk_bf16_f32 v32, v32, v33")
        a(f"v_cvt_pk_bf16_f32 v33, v34, v35")
        a(f"v_cvt_pk_bf16_f32 v34, v16, v17")
        a(f"v_cvt_pk_bf16_f32 v35, v18, v19")
        two = a.lg(f"ds_write_b128 v79, v[32:35] offset:{LDS_TO}")
        vLo, vLone = 76, 77
        for k in range(8, 28, 2): a(f"v_mov_b64 v[{k}:{k+1}], 0")
        a(f"v_add_u32 v{vLo}, {9*8192}, v{vLb}")
        lone_off(a, vLone, 78)
        a.wait(two)
        a("s_barrier")
        self.stamp_at(7)
        AO = [28, 32, 36, 40]
        aot = [a.lg(f"ds_read_b128 {vr(AO[m],4)}, v{vAoff} offset:{LDS_TO + 512*m}") for m in range(4)]
        acc = [8, 12, 16, 20, 24]
        def pst(b, soff, lone=False):
            if not lone:
                return [f"v_cvt_pk_bf16_f32 v{b}, v{b}, v{b+1}", f"v_cvt_pk_bf16_f32 v{b+1}, v{b+2}, v{b+3}",
                        f"v_cvt_pk_bf16_f32 v{b+2}, v{b+4}, v{b+5}", f"v_cvt_pk_bf16_f32 v{b+3}, v{b+6}, v{b+7}",
                        f"v_bfi_b32 v{b}, 1, s{sTag}, v{b}", f"v_bfi_b32 v{b+2}, 1, s{sTag}, v{b+2}",
                        f"@buffer_store_dwordx4 {vr(b,4)}, v{vPst}, {self.ws()}, s{soff} offen{self.sc}"]
            return [f"v_cvt_pk_bf16_f32 v{b}, v{b}, v{b+1}", f"v_cvt_pk_bf16_f32 v{b+1}, v{b+2}, v{b+3}",
                    f"v_bfi_b32 v{b}, 1, s{sTag}, v{b}",
                    f"@buffer_store_dwordx2 {vr(b,2)}, v{vLone}, {self.ws()}, s{soff} offen{self.sc}"]
        fill = []
        def emit(n):
            for _ in range(n):
                if not fill: return
                x = fill.pop(0)
                if x.startswith("@"): a.vm(x[1:])
                else: a(x)
        nlo = 0
        for n in range(20):
            p, m = divmod(n, 4)
            t = ("o", p, m)
            w = [aot[m]]
            if t in L_IDX: w.append(lt[t]); B = vr(slots[nlo % 4], 8)
            else: B = self.btile(t)
            a.wait(*w)
            self.smf(acc[p], AO[m], B)
            used = 0
            if t in L_IDX:
                nlo += 1
                if nlo + 3 < len(otiles):
                    lt[otiles[nlo+3]] = self.ld_l(otiles[nlo+3], slots[(nlo+3) % 4], None, base9=vLo); used = 2
            if n == 9: fill += pst(8, sP0)
            if n == 17: fill += pst(16, sP1)
            emit(2 - used)
        emit(99)
        fill += pst(24, sPl, lone=True); emit(99)
        self.stamp_at(8)
        if self.stamp: a(f"s_mov_b32 s65, s{sSpin}")
        if "eh" in self.opt: self.early_a()
        nf = a.newlabel("NF")
        a(f"s_cmp_lg_u32 s{sW}, {3 if 'noFL' not in self.opt else 7}")
        a(f"s_cbranch_scc1 {nf}")
        a(f"s_lshl_b32 s{sT0}, s{sH}, 7")
        a(f"s_add_u32 s{sT0}, s{sT0}, {FL_M}")
        a(f"v_mov_b32 v28, s{sStep}")
        a(f"v_mov_b32 v29, 0")
        a(f"buffer_store_dword v28, v29, {self.ws()}, s{sT0} offen sc1")
        a.label(nf)
        a.wait(self.pf_tok)
        a(f"v_readlane_b32 s{sFlK}, v{vFl}, 32")
        a(f"v_readlane_b32 s{sFlV}, v{vFl}, 48")
        self.check_flag()
        a(f"s_add_u32 s{sStep}, s{sStep}, 1")
        step_offsets(a)
        nored = a.newlabel("NR")
        a(f"s_cmp_eq_u32 s{sIsRed}, 0")
        a(f"s_cbranch_scc1 {nored}")
        self.reducer()
        a.label(nored)
        self.stamp_at(9)
        if self.stamp: a(f"s_mov_b32 s68, s{sSpin}")
        a("s_barrier")
        self.stamp_at(10)
        self.dump_stamps()
        a(f"s_xor_b32 s{sTag}, s{sTag}, 1")

    def reducer(self):
        a = self.a
        SEL, ACC, MO, TG, OUT, PO = 40, 60, 64, 65, 66, 68
        a(f"v_mov_b32 v70, 0x3f80")
        a(f"v_mov_b32 v71, 0x3f800000")
        a(f"v_bfe_u32 v{TG}, v{vL16}, 4, 1")
        a(f"v_cmp_eq_u32 vcc, 1, v{TG}")
        a(f"v_cndmask_b32 v70, v70, v71, vcc")
        for R in range(4): a(f"v_cndmask_b32 v{SEL+R}, 0, v70, s[{sSel+2*R}:{sSel+2*R+1}]")
        red_moff(a, MO, 70)
        a(f"s_add_u32 s{sT1}, s{sPrd}, 4096")
        a(f"v_mov_b32 v{PO}, -1"); a(f"v_mov_b32 v{PO+1}, -1")
        for o in self.opt:
            if o.startswith("rd"):
                for _ in range(int(o[2:])): a("s_nop 15")
        def polls():
            toks = []
            for k in range(8):
                sb = sPrd if k < 4 else sT1
                toks.append(a.vm(f"buffer_load_dwordx4 {vr(8+4*k,4)}, v{vL16}, {self.ws()}, s{sb} offen offset:{(k%4)*1024} sc1"))
            return toks
        def reduce(toks, tag):
            a(f"v_mov_b32 v{TG}, {0 if tag == 0 else -1}")
            for k in range(8):
                a.wait(toks[k], force=True)
                if k == 0: self.stamp_at(4, True)
                if k == 7: self.stamp_at(5, True)
                b = 8 + 4 * k
                if tag == 0: a(f"v_or3_b32 v{TG}, v{TG}, v{b}, v{b+2}")
                else:
                    a(f"v_and_b32 v{TG}, v{TG}, v{b}"); a(f"v_and_b32 v{TG}, v{TG}, v{b+2}")
                a(f"v_mfma_f32_16x16x32_bf16 {vr(ACC,4)}, {vr(b,4)}, {vr(SEL,4)}, {'0' if k == 0 else vr(ACC,4)}")
            a(f"v_and_b32 v{TG}, 1, v{TG}")
            a(f"v_cmp_ne_u32 vcc, {tag}, v{TG}")
        self.stamp_at(3, True)
        toks = polls()
        odd = a.newlabel("RO"); fin = a.newlabel("RF")
        a(f"s_cmp_eq_u32 s{sTag}, 1")
        a(f"s_cbranch_scc1 {odd}")
        base = a.state()
        for tag in (0, 1):
            a.set_state(base)
            if tag == 1: a.label(odd)
            retry = a.newlabel("RR"); ok = a.newlabel("RK")
            reduce(toks, tag)
            a(f"s_cbranch_vccnz {retry}")
            a.label(ok)
            if tag == 0: a(f"s_branch {fin}")
            o = Asm(); o._lab = a._lab + 2000 + tag
            o.label(retry)
            sv = self.a; self.a = o; a_ = a; a = o
            self.stamp_at(3, True)
            t2 = polls(); spin(o); reduce(t2, tag)
            o(f"s_cbranch_vccnz {retry}")
            o(f"s_branch {ok}")
            a = a_; self.a = sv
            self.outofline += o.lines
        a.label(fin)
        a(f"v_cvt_pk_bf16_f32 v{OUT}, v{ACC}, v{ACC+1}")
        a(f"v_cvt_pk_bf16_f32 v{OUT+1}, v{ACC+2}, v{ACC+3}")
        a(f"v_min_u32 v{OUT+1}, s{sFE}, v{OUT+1}")
        a.vm(f"buffer_store_dwordx2 v[{OUT}:{OUT+1}], v{MO}, {self.ws()}, s{sMwr} offen{self.sc}")
        a.vm(f"buffer_store_dwordx2 v[{PO}:{PO+1}], v{MO}, {self.ws()}, s{sMpo} offen{self.sc}")

    def check_flag(self):
        a = self.a
        ok = a.newlabel("FK"); lab = a.newlabel("FS")
        a.label(lab)
        a(f"s_min_u32 s{sT0}, s{sFlK}, s{sFlV}")
        a(f"s_add_u32 s{sT1}, s{sStep}, 1")
        a(f"s_and_b32 s{sT1}, s{sT1}, 15")
        a(f"s_cmp_gt_u32 s{sT0}, s{sT1}")
        a(f"s_cbranch_scc1 {ok}")
        a(f"v_bfe_u32 v40, v{vL16}, 8, 1")
        a(f"v_lshlrev_b32 v40, 8, v40")
        a(f"v_add_u32 v40, s{sFlagOff}, v40")
        a(f"buffer_load_dword v41, v40, {self.ws()}, 0 offen sc1")
        spin(a)
        a("s_waitcnt vmcnt(0)")
        a(f"v_readlane_b32 s{sFlK}, v41, 0")
        a(f"v_readlane_b32 s{sFlV}, v41, 16")
        a(f"s_branch {lab}")
        a.label(ok)


def chain_main(a, fast=True, name="C", stamp=False, timing=False, opt=()):
    global PF_DIST, NT, OPTS, KXNT, WMOD
    WMOD = '' if 'wplain' in opt else ' nt'
    KXNT = '' if 'kxplain' in opt else ' nt'
    OPTS = set(opt)
    PF_DIST = 2 if "pf2" in opt else 1
    NT = "" if "xplain" in opt else " nt"
    scalar_consts(a)
    lane_consts(a)
    init_exchange(a, "" if fast else " sc1")
    mem0_image(a)
    weights_prologue(a)
    team_barrier(a, FL_TEAM, 32)
    a(f"s_mov_b32 s{sStep}, 0")
    a(f"s_mov_b32 s{sTag}, 0")
    a(f"s_lshr_b32 s{sT1}, s{sH}, 1")
    a(f"s_lshl_b32 s{sT1}, s{sT1}, 2")
    a(f"s_add_u32 s{sFlagOff}, s{sT1}, {FL_KV}")
    lab = a.newlabel("W0")
    a(f"v_bfe_u32 v42, v{vL16}, 8, 1")
    a(f"v_lshlrev_b32 v42, 8, v42")
    a(f"v_add_u32 v42, s{sFlagOff}, v42")
    a.label(lab)
    a(f"buffer_load_dword v{vFl}, v42, s[{S_WS}:{S_WS+3}], 0 offen sc1")
    spin(a)
    a("s_waitcnt vmcnt(0)")
    a(f"v_cmp_eq_u32 vcc, 0, v{vFl}")
    a(f"s_cbranch_vccnz {lab}")
    step_offsets(a)
    st0 = Step(a, fast, None, opt)
    st0.pre_poll()
    st0.early_a()
    a.wait_all()
    entry = f"{name}_ENTRY"; top = f"{name}_TOP"; ex = f"{name}_EXIT"
    if timing:
        a("s_memtime s[98:99]"); a("s_waitcnt lgkmcnt(0)")
    a(f"s_branch {entry}")
    a(".p2align 6")
    for o in opt:
        if o.startswith("pad"):
            for _ in range(int(o[3:])): a("s_nop 0")
    a.label(top)
    st = Step(a, fast, stamp, opt)
    st.exit_label = ex
    st.body(entry)
    a(f"s_branch {top}")
    a.lines += st.outofline
    a.label(ex)
    a.wait_all()
    a("s_barrier")
    a(f"s_lshl_b32 s{sT0}, s{sH}, 7")
    a(f"s_add_u32 s{sT0}, s{sT0}, {FL_M}")
    a(f"v_mov_b32 v43, {NSEG}")
    a(f"v_mov_b32 v40, 0")
    a(f"buffer_store_dword v43, v40, s[{S_WS}:{S_WS+3}], s{sT0} offen sc1")
    a("s_waitcnt vmcnt(0)")
```

```python
import numpy as np
S, D, H, DH, M, SEG, F = 2048, 640, 32, 128, 8, 32, 1728
NSEG = 64
WS_FLAGS = 0x0
WS_P     = 0x10000
WS_M     = 0x70000
WS_SW    = 0x80000
WS_XN    = 0x300000
WS_KX    = 0x1000000
WS_VX    = 0x2000000
WS_QX    = 0x3000000
WS_KM    = 0x4000000
WS_VM    = 0x4400000
WS_ACT   = 0x5000000
WS_OX    = 0x6000000
WS_F     = 0x7000000
WS_STAMP = 0x8000000
WS_SIZE  = 268435456
MSLOT = 10240
def d_of_slot(c, ja):
    cc, jj = ja >> 2, ja & 3
    wc, rem = divmod(c, 20)
    if rem < 16:
        st, th, gp = rem // 8, (rem % 8) // 4, rem % 4
        return 128 * (2 * st + cc) + 32 * wc + 16 * th + 4 * gp + jj
    gp = rem - 16
    return 512 + 32 * wc + 16 * cc + 4 * gp + jj
def kstep_base(j):
    wc, jr = divmod(j, 5)
    if jr < 4: return 256 * (jr >> 1) + 32 * wc + 16 * (jr & 1), 128
    return 512 + 32 * wc, 16
for _j in range(20):
    _b, _X = kstep_base(_j)
    for _gA in range(4):
        for _ja in range(8):
            assert d_of_slot(4 * _j + _gA, _ja) == _b + (_ja >> 2) * _X + 4 * _gA + (_ja & 3)
assert sorted(d_of_slot(c, ja) for c in range(80) for ja in range(8)) == list(range(640))
def e_of_oslot(m, gA, ja):
    return 32 * m + (4 * gA + ja if ja < 4 else 16 + 4 * gA + ja - 4)
def pack_kx(k):
    k = k.reshape(NSEG, 2, 16, H, 4, 4, 8)
    return np.ascontiguousarray(k.transpose(0, 3, 1, 4, 5, 2, 6)).reshape(NSEG, H, 4096)
def pack_vx(v):
    v = v.reshape(NSEG, 2, 4, 4, H, 4, 2, 16)
    return np.ascontiguousarray(v.transpose(0, 4, 5, 6, 2, 7, 1, 3)).reshape(NSEG, H, 4096)

FLAGS_BYTES = 0x8000
FL_KV   = 0x0
FL_Q    = 0x200
FL_ACT  = 0x300
FL_TEAM = 0x400
FL_LN   = 0x480
FL_M    = 0x1000
FL_OX   = 0x2000
def pack_xn(xn):
    x = xn.reshape(NSEG, 32, 40, 2, 8)
    return np.ascontiguousarray(x.transpose(0, 2, 3, 1, 4)).reshape(NSEG, 20480)
ACT_KK = 56
def unpack_act(raw):
    return np.ascontiguousarray(raw.transpose(0, 3, 1, 2, 4)).reshape(S, ACT_KK * 32)
def pack_act(act):
    a = np.zeros((S, ACT_KK * 32), np.uint16); a[:, :F] = act
    return np.ascontiguousarray(a.reshape(128, 16, ACT_KK, 4, 8).transpose(0, 2, 3, 1, 4))
def e_perm():
    p = np.zeros((4, 4, 8), np.int64)
    for m in range(4):
        for g in range(4):
            for j in range(8): p[m, g, j] = e_of_oslot(m, g, j)
    return p
def pack_ox(o):
    p = e_perm()
    t = o.reshape(H, NSEG, 2, 16, DH)[..., p]
    return np.ascontiguousarray(t.transpose(1, 2, 0, 4, 5, 3, 6))
def unpack_ox(raw):
    p = e_perm().reshape(-1)
    t = raw.transpose(2, 0, 1, 5, 3, 4, 6).reshape(H, S, DH)
    out = np.empty_like(t); out[..., p] = t
    return out
def unpack_kx(raw):
    k = raw.reshape(NSEG, H, 2, 4, 4, 16, 8).transpose(0, 2, 5, 1, 3, 4, 6)
    return np.ascontiguousarray(k).reshape(S, H, DH)
def unpack_vx(raw):
    v = raw.reshape(NSEG, H, 4, 2, 4, 16, 2, 4)
    return np.ascontiguousarray(v.transpose(0, 6, 4, 7, 1, 2, 3, 5)).reshape(S, H, DH)
```

```python
from asmlib import *
from layout import *
import struct, math

S_WS = 4
S_A = 8
S_B = 16
sW = 13
sSpin = 74
sT0, sT1, sT2, sT3 = 47, 48, 49, 50
pX, pWq, pWk, pWv, pWo, pW1, pB1, pW2, pOut = 56, 58, 60, 62, 64, 66, 68, 70, 72
WS = f"s[{S_WS}:{S_WS+3}]"
def vr(b, n): return f"v[{b}:{b+n-1}]"
def ar(b, n): return f"a[{b}:{b+n-1}]"
def fbits(x): return struct.unpack("<I", struct.pack("<f", x))[0]
def srd(a, s, lo, nbytes):
    a(f"s_mov_b32 s{s}, s{lo}")
    a(f"s_and_b32 s{s+1}, s{lo+1}, 0xffff")
    a(f"s_mov_b32 s{s+2}, {nbytes}")
    a(f"s_mov_b32 s{s+3}, 0x20000")
def spin(a):
    a(f"s_sub_u32 s{sSpin}, s{sSpin}, 1")
    a("s_cbranch_scc1 L_TIMEOUT")
def poll_ge(a, soff_reg_or_imm, target_sreg, vt=8, label="PG"):
    lab = a.newlabel(label)
    a(f"v_mov_b32 v{vt}, {soff_reg_or_imm}")
    a.label(lab)
    a(f"buffer_load_dword v{vt+1}, v{vt}, {WS}, 0 offen sc1")
    spin(a)
    a("s_waitcnt vmcnt(0)")
    a(f"v_cmp_gt_u32 vcc, {target_sreg}, v{vt+1}")
    a(f"s_cbranch_vccnz {lab}")
def atomic_inc(a, off, vt=8, by_wave0=True):
    a(f"v_mov_b32 v{vt}, {off}")
    a(f"v_mov_b32 v{vt+1}, 1")
    a("s_mov_b64 exec, 1")
    a(f"buffer_atomic_add v{vt+1}, v{vt}, {WS}, 0 offen")
    a("s_mov_b64 exec, -1")

def ln_role(a, sSeg):
    a("; ==== LayerNorm")
    srd(a, S_A, pX, S * D * 2)
    a("v_and_b32 v1, 63, v0")
    a("v_lshrrev_b32 v2, 3, v1")
    a("v_and_b32 v3, 7, v1")
    a(f"s_lshl_b32 s{sT0}, s{sW}, 3")
    a(f"v_add_u32 v4, s{sT0}, v2")
    a(f"s_movk_i32 s{sT1}, 1280")
    a(f"v_mul_lo_u32 v5, v4, s{sT1}")
    a("v_lshl_add_u32 v5, v3, 4, v5")
    a(f"s_mul_i32 s{sT2}, s{sSeg}, 40960")
    toks = [a.vm(f"buffer_load_dwordx4 {vr(16+4*i,4)}, v5, s[{S_A}:{S_A+3}], s{sT2} offen offset:{128*i}") for i in range(10)]
    a("v_lshrrev_b32 v6, 1, v3")
    a("v_lshlrev_b32 v6, 10, v6")
    a("v_and_b32 v7, 1, v3")
    a("v_lshl_add_u32 v6, v7, 9, v6")
    a("v_lshl_add_u32 v6, v4, 4, v6")
    X = 64
    for i in range(10):
        a.wait(toks[i])
        for r in range(4):
            a(f"v_lshlrev_b32 v{X+8*i+2*r}, 16, v{16+4*i+r}")
            a(f"v_and_b32 v{X+8*i+2*r+1}, 0xffff0000, v{16+4*i+r}")
    def reduce8(r):
        a(f"v_add_f32_dpp v{r}, v{r}, v{r} quad_perm:[1,0,3,2] row_mask:0xf bank_mask:0xf")
        a(f"v_add_f32_dpp v{r}, v{r}, v{r} quad_perm:[2,3,0,1] row_mask:0xf bank_mask:0xf")
        a(f"v_add_f32_dpp v{r}, v{r}, v{r} row_half_mirror row_mask:0xf bank_mask:0xf")
    for k in range(4): a(f"v_add_f32 v{8+k}, v{X+k}, v{X+4+k}")
    for j in range(8, 80): a(f"v_add_f32 v{8+j%4}, v{8+j%4}, v{X+j}")
    a("v_add_f32 v8, v8, v9"); a("v_add_f32 v10, v10, v11"); a("v_add_f32 v8, v8, v10")
    reduce8(8)
    a(f"v_mul_f32 v8, {fbits(1.0/640):#x}, v8")
    for k in range(4): a(f"v_mov_b32 v{9+k}, 0")
    for j in range(80):
        a(f"v_sub_f32 v13, v{X+j}, v8")
        a(f"v_fmac_f32 v{9+j%4}, v13, v13")
    a("v_add_f32 v9, v9, v10"); a("v_add_f32 v11, v11, v12"); a("v_add_f32 v9, v9, v11")
    reduce8(9)
    a(f"v_mul_f32 v9, {fbits(1.0/640):#x}, v9")
    def rb(r):
        a(f"v_cvt_pk_bf16_f32 v{r}, v{r}, v{r}")
        a(f"v_and_b32 v{r}, 0xffff0000, v{r}")
    rb(8); rb(9)
    a(f"v_add_f32 v9, {fbits(1e-5):#x}, v9"); rb(9)
    a("v_sqrt_f32 v9, v9"); rb(9)
    a("v_rcp_f32 v10, v9")
    a("v_fma_f32 v11, -v9, v10, 1.0")
    a("v_fma_f32 v10, v11, v10, v10")
    for i in range(10):
        for r in range(4):
            x0, x1 = X + 8*i + 2*r, X + 8*i + 2*r + 1
            d = 16 + 4*i + r
            a(f"v_sub_f32 v{x0}, v{x0}, v8")
            a(f"v_sub_f32 v{x1}, v{x1}, v8")
            a(f"v_cvt_pk_bf16_f32 v{d}, v{x0}, v{x1}")
            a(f"v_lshlrev_b32 v{x0}, 16, v{d}")
            a(f"v_and_b32 v{x1}, 0xffff0000, v{d}")
            a(f"v_mul_f32 v{x0}, v{x0}, v10")
            a(f"v_mul_f32 v{x1}, v{x1}, v10")
            a(f"v_cvt_pk_bf16_f32 v{d}, v{x0}, v{x1}")
        a(f"s_add_u32 s{sT3}, s{sT2}, {WS_XN + 4096*i}")
        a.vm(f"buffer_store_dwordx4 {vr(16+4*i,4)}, v6, {WS}, s{sT3} offen sc1")
    a.wait_all_vm()
    a("s_barrier")
    sk = a.newlabel("LNS")
    a(f"s_cmp_lg_u32 s{sW}, 0"); a(f"s_cbranch_scc1 {sk}")
    atomic_inc(a, WS_FLAGS + FL_LN)
    a.label(sk)

sBlk, sSplit, sCol, sStride, sSeg, sOutB, sFlag = 20, 21, 22, 23, 24, 25, 26
sRow, sW2048, sN, sDma = 27, 28, 29, 30
vL16 = 1
def wtile(kk, T):
    if kk < 32: return ar(8*kk + 4*T, 4)
    return vr(192 + 8*(kk-32) + 4*T, 4)
def wtile_base(kk, T):
    return ("a", 8*kk + 4*T) if kk < 32 else ("v", 192 + 8*(kk-32) + 4*T)

def w1_weights(a, perm_sreg):
    a("; ---- projection weights")
    a("v_and_b32 v2, 63, v0")
    a(f"v_lshlrev_b32 v{vL16}, 4, v2")
    a("v_lshrrev_b32 v3, 5, v2")
    a(f"v_mul_lo_u32 v4, v3, s{sStride}")
    a("v_and_b32 v3, 31, v2")
    a("v_lshl_add_u32 v4, v3, 4, v4")
    a("v_lshrrev_b32 v5, 4, v2")
    a("v_and_b32 v6, 1, v5")
    a("v_lshrrev_b32 v5, 1, v5")
    a("v_bfe_u32 v7, v2, 2, 2")
    a("v_lshl_add_u32 v7, v5, 3, v7")
    a("v_lshlrev_b32 v7, 9, v7")
    a("v_and_b32 v8, 3, v2")
    a("v_lshl_add_u32 v8, v6, 2, v8")
    a("v_lshlrev_b32 v9, 2, v8")
    a("v_lshrrev_b32 v10, 2, v8"); a("v_lshlrev_b32 v10, 4, v10")
    a("v_and_b32 v11, 1, v8"); a("v_lshl_add_u32 v10, v11, 3, v10")
    a("v_bfe_u32 v11, v8, 1, 1"); a("v_lshl_add_u32 v10, v11, 2, v10")
    a(f"s_cmp_lg_u32 s{perm_sreg}, 0")
    a("s_cselect_b64 vcc, -1, 0")
    a("v_cndmask_b32 v9, v9, v10, vcc")
    a("v_lshl_add_u32 v7, v9, 1, v7")
    a(f"s_lshl_b32 s{sT0}, s{sW}, 7")
    a(f"v_add_u32 v7, s{sT0}, v7")
    a(f"s_lshl_b32 s{sW2048}, s{sW}, 11")
    a(f"s_mul_i32 s{sRow}, s{sStride}, s{sW}")
    a(f"s_lshl_b32 s{sRow}, s{sRow}, 2")
    a(f"s_add_u32 s{sRow}, s{sRow}, s{sCol}")
    a(f"s_lshl_b32 s{sT2}, s{sStride}, 1")
    a(f"s_lshl_b32 s{sT3}, s{sStride}, 4")
    NS = 16
    toks = {}
    def issue(k):
        for uu in range(2):
            if uu == 0: a(f"s_mov_b32 s{sT0}, s{sRow}")
            else: a(f"s_add_u32 s{sT0}, s{sRow}, s{sT2}")
            a(f"s_add_u32 m0, s{sW2048}, {(k % NS)*8192 + uu*1024}")
            toks[(k, uu)] = a.vm(f"buffer_load_dwordx4 v4, s[{S_A}:{S_A+3}], s{sT0} offen lds")
        a(f"s_add_u32 s{sRow}, s{sRow}, s{sT3}")
    for k in range(NS): issue(k)
    for k in range(40):
        a.wait(toks[(k, 1)])
        a("s_barrier")
        if k >= 1 and k - 1 + NS < 40: issue(k - 1 + NS)
        a(f"v_add_u32 v12, {(k % NS)*8192}, v7")
        last = None
        for T in range(2):
            cls, b = wtile_base(k, T)
            a.lg(f"ds_read_b64_tr_b16 {cls}[{b}:{b+1}], v12 offset:{64*T}")
            last = a.lg(f"ds_read_b64_tr_b16 {cls}[{b+2}:{b+3}], v12 offset:{64*T + 2048}")
        a.wait(last)
    a("s_barrier")

ACC = [[96, 112], [128, 144]]
FR = [16, 20, 24, 28]
sOutW, sSlot, sSlotD, sLast = 31, 32, 33, 34
def w1_loop(a, kind):
    a(f"; ---- projection loop: {kind}")
    a("v_and_b32 v2, 63, v0")
    a("v_and_b32 v3, 15, v2")
    a("v_bfe_u32 v4, v2, 4, 1")
    a("v_lshrrev_b32 v5, 5, v2")
    vE = 6
    if kind == "kq": a(f"v_lshlrev_b32 v{vE}, 12, v4")
    elif kind == "v": a(f"v_lshlrev_b32 v{vE}, 10, v4")
    else:
        a(f"s_mov_b32 s{sT0}, {ACT_KK*1024}")
        a(f"v_mul_lo_u32 v{vE}, v4, s{sT0}")
    a(f"v_lshl_add_u32 v{vE}, v5, 8, v{vE}")
    a(f"v_lshl_add_u32 v{vE}, v3, 4, v{vE}")
    if kind == "f":
        a(f"s_lshl_b32 s{sT0}, s{sW}, 7")
        a(f"s_add_u32 s{sT0}, s{sT0}, s{sCol}")
        a(f"s_cmp_ge_u32 s{sT0}, {F*2}")
        a(f"s_cselect_b32 s{sT1}, 0x7fffffff, 0")
        a(f"v_or_b32 v{vE}, s{sT1}, v{vE}")
        srd(a, S_B, pB1, F * 2)
        a("v_lshlrev_b32 v7, 4, v5")
        tb = []
        for T in range(2):
            for pp in range(2):
                tb.append(a.vm(f"buffer_load_dwordx4 {vr(32+4*(2*T+pp),4)}, v7, s[{S_B}:{S_B+3}], s{sT0} offen offset:{64*T+32*pp}"))
        a.wait(tb[-1])
        for q in range(4):
            for r in range(4):
                a(f"v_lshlrev_b32 v{160+8*q+2*r}, 16, v{32+4*q+r}")
                a(f"v_and_b32 v{160+8*q+2*r+1}, 0xffff0000, v{32+4*q+r}")
    a(f"s_mov_b32 s{sT3}, 64")
    poll_ge(a, WS_FLAGS + FL_LN, f"s{sT3}")
    a(f"s_mul_i32 s{sDma}, s{sW}, 10240")
    a(f"s_mul_i32 s{sT0}, s{sSeg}, 40960")
    a(f"s_add_u32 s{sT0}, s{sT0}, s{sDma}")
    a(f"s_add_u32 s{sRow}, s{sT0}, {WS_XN}")
    a(f"s_add_u32 s{sLast}, s{sRow}, {15*40960}")
    def dma():
        a(f"s_add_u32 s{sT1}, s{sSlotD}, s{sDma}")
        for q in range(10):
            if q % 4 == 0:
                a(f"s_add_u32 s{sT0}, s{sRow}, {q*1024}")
                a(f"s_add_u32 m0, s{sT1}, {q*1024}")
            a(f"buffer_load_dwordx4 v{vL16}, {WS}, s{sT0} offen offset:{(q%4)*1024} sc1 lds")
        a(f"s_add_u32 s{sRow}, s{sRow}, 40960")
        a(f"s_min_u32 s{sRow}, s{sRow}, s{sLast}")
        rot(sSlotD)
    def rot(r):
        a(f"s_add_u32 s{r}, s{r}, 40960")
        a(f"s_cmp_eq_u32 s{r}, 122880")
        a(f"s_cselect_b32 s{r}, 0, s{r}")
    def epilogue(par):
        L = []
        for T in range(2):
            A = ACC[par][T]
            for pp in range(2):
                o = 40 + 4 * pp
                if kind == "v":
                    src = [A + 4*pp + k for k in range(4)] + [A + 4*(pp+2) + k for k in range(4)]
                    off = T * 2048 + pp * 512
                else:
                    src = [A + 8*pp + k for k in range(8)]
                    off = T * 1024 + pp * 512
                if kind == "f":
                    bias = 160 + 8 * (2*T + pp)
                    for k0 in range(0, 8, 4):
                        ks = range(k0, k0 + 4)
                        t = lambda k: 48 + (k % 4) * 2
                        L += [f"v_add_f32 v{src[k]}, v{src[k]}, v{bias+k}" for k in ks]
                        L += [f"v_mul_f32 v{t(k)}, {fbits(math.log2(math.e)):#x}, v{src[k]}" for k in ks]
                        L += [f"v_min_f32 v{t(k)}, {fbits(30.0):#x}, v{t(k)}" for k in ks]
                        L += [f"v_exp_f32 v{t(k)}, v{t(k)}" for k in ks]
                        L += [f"v_add_f32 v{t(k)+1}, 2.0, v{t(k)}" for k in ks]
                        L += [f"v_mul_f32 v{t(k)}, v{t(k)}, v{t(k)+1}" for k in ks]
                        L += [f"v_add_f32 v{t(k)+1}, 2.0, v{t(k)}" for k in ks]
                        L += [f"v_rcp_f32 v{t(k)+1}, v{t(k)+1}" for k in ks]
                        L += [f"v_mul_f32 v{src[k]}, v{src[k]}, v{t(k)}" for k in ks]
                        L += [f"v_mul_f32 v{src[k]}, v{src[k]}, v{t(k)+1}" for k in ks]
                for r in range(4): L.append(f"v_cvt_pk_bf16_f32 v{o+r}, v{src[2*r]}, v{src[2*r+1]}")
                L.append(f"buffer_store_dwordx4 {vr(o,4)}, v{vE}, {WS}, s{sOutB} offen offset:{off} sc1")
        return L
    def publish(val):
        sk = a.newlabel("PB")
        a(f"s_cmp_lg_u32 s{sW}, 0"); a(f"s_cbranch_scc1 {sk}")
        a(f"v_mov_b32 v8, {val}")
        a(f"v_mov_b32 v9, s{sFlag}")
        a(f"buffer_store_dword v8, v9, {WS}, 0 offen sc1")
        a.label(sk)
    def out_base(delta):
        a(f"s_add_u32 s{sT0}, s{sSeg}, s{sN}")
        if delta: a(f"s_sub_u32 s{sT0}, s{sT0}, {delta}")
        if kind == "f": a(f"s_mul_i32 s{sOutB}, s{sT0}, {2*ACT_KK*1024}")
        else: a(f"s_lshl_b32 s{sOutB}, s{sT0}, 18")
        a(f"s_add_u32 s{sOutB}, s{sOutB}, s{sOutW}")
    def segment(par, with_epi, wait):
        a(f"s_waitcnt vmcnt({wait})")
        a("s_barrier")
        dma()
        if with_epi:
            a(f"s_sub_u32 s{sT2}, s{sN}, 2")
            a(f"s_max_i32 s{sT2}, s{sT2}, 0")
            publish(f"s{sT2}")
            out_base(1)
        fill = epilogue(1 - par) if with_epi else []
        per = -(-len(fill) // 74) if fill else 0
        a(f"v_add_u32 v12, s{sSlot}, v{vL16}")
        rt = {}
        def rd(kk): rt[kk] = a.lg(f"ds_read_b128 {vr(FR[kk%4],4)}, v12 offset:{kk*1024}")
        rd(0); rd(1); rd(2)
        for kk in range(40):
            a.wait(rt[kk])
            for T in range(2):
                Dr = vr(ACC[par][T], 16); C = "0" if kk == 0 else Dr
                if kind == "v": a(f"v_mfma_f32_32x32x16_bf16 {Dr}, {vr(FR[kk%4],4)}, {wtile(kk,T)}, {C}")
                else: a(f"v_mfma_f32_32x32x16_bf16 {Dr}, {wtile(kk,T)}, {vr(FR[kk%4],4)}, {C}")
                if T == 0 and kk + 3 < 40: rd(kk + 3)
                if kk >= 3:
                    for _ in range(per):
                        if fill: a(fill.pop(0))
        for x in fill: a(x)
        rot(sSlot)
        a(f"s_add_u32 s{sN}, s{sN}, 1")
    a(f"s_mov_b32 s{sN}, 0")
    a(f"s_mov_b32 s{sSlot}, 0")
    a(f"s_mov_b32 s{sSlotD}, 0")
    a("s_barrier")
    dma(); dma()
    segment(0, False, 10)
    top = a.newlabel("W1T"); mid = a.newlabel("W1M"); done = a.newlabel("W1D")
    segment(1, True, 10)
    a.label(top)
    segment(0, True, 14)
    segment(1, True, 14)
    a(f"s_cmp_lt_u32 s{sN}, 16"); a(f"s_cbranch_scc1 {top}")
    out_base(1)
    for x in epilogue(1): a(x)
    a("s_waitcnt vmcnt(0)")
    a("s_barrier")
    publish("16")

def w1_role(a):
    a("; ==== projection GEMM role")
    lk, lv, lq, lf, go = (a.newlabel(x) for x in ("W1K", "W1V", "W1Q", "W1F", "W1G"))
    a(f"s_lshl_b32 s{sSeg}, s{sSplit}, 4")
    a(f"s_and_b32 s{sT2}, s{sBlk}, 15")
    a(f"s_lshl_b32 s{sCol}, s{sT2}, 9")
    a(f"s_movk_i32 s{sStride}, 8192")
    a(f"s_lshl_b32 s{sT0}, s{sT2}, 1")
    a(f"s_lshr_b32 s{sT1}, s{sW}, 1")
    a(f"s_add_u32 s{sT0}, s{sT0}, s{sT1}")
    a(f"s_lshl_b32 s{sT0}, s{sT0}, 13")
    a(f"s_and_b32 s{sT1}, s{sW}, 1")
    a(f"s_lshl_b32 s{sFlag}, s{sSplit}, 4")
    a(f"s_add_u32 s{sFlag}, s{sFlag}, s{sT2}")
    a(f"s_lshl_b32 s{sFlag}, s{sFlag}, 2")
    a(f"s_cmp_lt_u32 s{sBlk}, 16"); a(f"s_cbranch_scc1 {lk}")
    a(f"s_cmp_lt_u32 s{sBlk}, 32"); a(f"s_cbranch_scc1 {lv}")
    a(f"s_cmp_lt_u32 s{sBlk}, 48"); a(f"s_cbranch_scc1 {lq}")
    a.label(lf)
    a(f"s_sub_u32 s{sT2}, s{sBlk}, 48")
    a(f"s_lshl_b32 s{sCol}, s{sT2}, 9")
    a(f"s_movk_i32 s{sStride}, {F*2}")
    a(f"s_lshl_b32 s{sT0}, s{sT2}, 3")
    a(f"s_lshl_b32 s{sT1}, s{sW}, 1")
    a(f"s_add_u32 s{sT0}, s{sT0}, s{sT1}")
    a(f"s_lshl_b32 s{sT0}, s{sT0}, 10")
    a(f"s_add_u32 s{sOutW}, s{sT0}, {WS_ACT}")
    a(f"s_lshl_b32 s{sFlag}, s{sSplit}, 3")
    a(f"s_add_u32 s{sFlag}, s{sFlag}, s{sT2}")
    a(f"s_lshl_b32 s{sFlag}, s{sFlag}, 2")
    a(f"s_add_u32 s{sFlag}, s{sFlag}, {WS_FLAGS + FL_ACT}")
    srd(a, S_A, pW1, D * F * 2)
    a(f"s_mov_b32 s{sT3+1}, 1")
    w1_weights(a, sT3 + 1)
    w1_loop(a, "f")
    end = a.newlabel("W1E")
    a(f"s_branch {end}")
    for lab, ptr, base, fl in ((lk, pWk, WS_KX, FL_KV), (lq, pWq, WS_QX, FL_Q)):
        a.label(lab)
        a(f"s_lshl_b32 s{sT1}, s{sT1}, 11")
        a(f"s_add_u32 s{sOutW}, s{sT0}, s{sT1}")
        a(f"s_add_u32 s{sOutW}, s{sOutW}, {base}")
        a(f"s_add_u32 s{sFlag}, s{sFlag}, {WS_FLAGS + fl}")
        srd(a, S_A, ptr, D * H * DH * 2)
        if lab == lk: a(f"s_branch {go}")
    a.label(go)
    a(f"s_mov_b32 s{sT3+1}, 1")
    w1_weights(a, sT3 + 1)
    w1_loop(a, "kq")
    a(f"s_branch {end}")
    a.label(lv)
    a(f"s_lshl_b32 s{sT1}, s{sT1}, 12")
    a(f"s_add_u32 s{sOutW}, s{sT0}, s{sT1}")
    a(f"s_add_u32 s{sOutW}, s{sOutW}, {WS_VX}")
    a(f"s_add_u32 s{sFlag}, s{sFlag}, {WS_FLAGS + FL_KV + 256}")
    srd(a, S_A, pWv, D * H * DH * 2)
    a(f"s_mov_b32 s{sT3+1}, 0")
    w1_weights(a, sT3 + 1)
    w1_loop(a, "v")
    a.label(end)

sAi, sSegA, sHead, sBase = 20, 21, 22, 23
sMsk = 36
sLo32, sHi32 = 44, 52
sCc, sOnes, sHalf = 38 + 50, 39 + 50, 40 + 50
def softmax_lane_consts(a):
    c = fbits((128 ** -0.5) * math.log2(math.e))
    a(f"s_mov_b32 s{sCc}, {c:#x}"); a(f"s_mov_b32 s{sOnes}, 0x3f803f80"); a(f"s_mov_b32 s{sHalf}, 0x3f003f00")

def att_role(a):
    a("; ==== attention role")
    softmax_lane_consts(a)
    a("v_and_b32 v2, 63, v0")
    a(f"v_lshlrev_b32 v{vL16}, 4, v2")
    a("v_and_b32 v3, 15, v2")
    a("v_lshrrev_b32 v4, 4, v2")
    for jj in range(4):
        a(f"v_lshl_add_u32 v5, v4, 2, {jj}")
        a(f"v_cmp_le_u32 s[{sMsk+2*jj}:{sMsk+2*jj+1}], v5, v3")
    a(f"v_cmp_gt_u32 s[{sLo32}:{sLo32+1}], 32, v2")
    a(f"v_cmp_le_u32 s[{sHi32}:{sHi32+1}], 32, v2")
    a("v_lshrrev_b32 v5, 1, v4"); a("v_lshl_add_u32 v5, v5, 4, v3"); a("v_lshlrev_b32 v5, 4, v5")
    a("v_and_b32 v6, 1, v4"); a("v_lshl_add_u32 v6, v6, 3, v5")
    a(f"s_lshl_b32 s{sT0}, s{sW}, 11"); a(f"v_add_u32 v6, s{sT0}, v6")
    a("v_lshrrev_b32 v5, 2, v3"); a("v_lshl_add_u32 v5, v4, 3, v5"); a("v_lshlrev_b32 v5, 4, v5")
    a("v_and_b32 v7, 1, v3"); a("v_lshl_add_u32 v7, v7, 3, v5"); a(f"v_add_u32 v7, s{sT0}, v7")
    a(f"s_and_b32 s{sHead}, s{sAi}, 7"); a(f"s_lshl_b32 s{sHead}, s{sHead}, 2"); a(f"s_add_u32 s{sHead}, s{sHead}, s{sW}")
    a(f"s_lshr_b32 s{sSegA}, s{sAi}, 3")
    a("v_and_b32 v8, 3, v2")
    top = a.newlabel("ATT"); end = a.newlabel("ATE")
    a.label(top)
    a(f"s_lshl_b32 s{sT0}, s{sHead}, 7"); a(f"s_add_u32 s{sT0}, s{sT0}, {WS_FLAGS + FL_M}")
    a(f"s_lshr_b32 s{sT1}, s{sSegA}, 4"); a(f"s_lshl_b32 s{sT1}, s{sT1}, 6")
    a(f"s_lshr_b32 s{sT2}, s{sHead}, 1"); a(f"s_lshl_b32 s{sT2}, s{sT2}, 2"); a(f"s_add_u32 s{sT1}, s{sT1}, s{sT2}")
    a(f"v_mov_b32 v9, s{sT0}")
    a(f"s_add_u32 s{sT2}, s{sT1}, {WS_FLAGS + FL_KV}"); a(f"v_mov_b32 v10, s{sT2}")
    a("v_cmp_eq_u32 vcc, 1, v8"); a("v_cndmask_b32 v9, v9, v10, vcc")
    a(f"s_add_u32 s{sT2}, s{sT1}, {WS_FLAGS + FL_KV + 256}"); a(f"v_mov_b32 v10, s{sT2}")
    a("v_cmp_eq_u32 vcc, 2, v8"); a("v_cndmask_b32 v9, v9, v10, vcc")
    a(f"s_add_u32 s{sT2}, s{sT1}, {WS_FLAGS + FL_Q}"); a(f"v_mov_b32 v10, s{sT2}")
    a("v_cmp_eq_u32 vcc, 3, v8"); a("v_cndmask_b32 v9, v9, v10, vcc")
    a(f"s_add_u32 s{sT0}, s{sSegA}, 1"); a(f"v_mov_b32 v11, s{sT0}")
    a(f"s_and_b32 s{sT0}, s{sSegA}, 15"); a(f"s_add_u32 s{sT0}, s{sT0}, 1"); a(f"v_mov_b32 v10, s{sT0}")
    a("v_cmp_eq_u32 vcc, 0, v8"); a("v_cndmask_b32 v11, v10, v11, vcc")
    pl = a.newlabel("ATP")
    a.label(pl)
    a(f"buffer_load_dword v10, v9, {WS}, 0 offen sc1")
    spin(a)
    a("s_waitcnt vmcnt(0)")
    a("v_cmp_gt_u32 vcc, v11, v10")
    a(f"s_cbranch_vccnz {pl}")
    a(f"s_lshl_b32 s{sBase}, s{sSegA}, 5"); a(f"s_add_u32 s{sBase}, s{sBase}, s{sHead}")
    KV, Q, K, V = 16, 32, 64, 96
    a(f"s_lshl_b32 s{sT0}, s{sBase}, 12"); a(f"s_add_u32 s{sT0}, s{sT0}, {WS_KM}")
    tkv = [a.vm(f"buffer_load_dwordx4 {vr(KV+4*w,4)}, v{vL16}, {WS}, s{sT0} offen offset:{1024*w} sc1") for w in range(4)]
    a(f"s_lshl_b32 s{sT1}, s{sBase}, 13")
    def ld8(reg, base):
        toks = []
        for half in range(2):
            a(f"s_add_u32 s{sT0}, s{sT1}, {base + 4096*half}")
            for q in range(4):
                toks.append(a.vm(f"buffer_load_dwordx4 {vr(reg+16*half+4*q,4)}, v{vL16}, {WS}, s{sT0} offen offset:{1024*q} sc1"))
        return toks
    tq = ld8(Q, WS_QX); tk = ld8(K, WS_KX); tv = ld8(V, WS_VX)
    KM = 128; VLO = 144; VHI = 152
    tw = None
    for w in range(4):
        a.wait(tkv[w])
        tw = a.lg(f"ds_write_b64 v6, {vr(KV+4*w,2)} offset:{512*w}")
        a(f"v_cndmask_b32 v{VLO+2*w}, 0, v{KV+4*w+2}, s[{sLo32}:{sLo32+1}]")
        a(f"v_cndmask_b32 v{VLO+2*w+1}, 0, v{KV+4*w+3}, s[{sLo32}:{sLo32+1}]")
        a(f"v_cndmask_b32 v{VHI+2*w}, 0, v{KV+4*w+2}, s[{sHi32}:{sHi32+1}]")
        a(f"v_cndmask_b32 v{VHI+2*w+1}, 0, v{KV+4*w+3}, s[{sHi32}:{sHi32+1}]")
    a.wait(tw)
    tkm = None
    for m in range(4):
        a.lg(f"ds_read_b64_tr_b16 {vr(KM+4*m,2)}, v7 offset:{512*m}")
        tkm = a.lg(f"ds_read_b64_tr_b16 {vr(KM+4*m+2,2)}, v7 offset:{512*m+64}")
    a.wait(tq[-1], tk[-1], tkm)
    NEG = fbits(-1e30)
    a(f"v_mov_b32 v15, {NEG:#x}")
    O = 192
    for qt in range(2):
        X0, X1, MM = 160, 164, 168
        for m in range(4):
            B = vr(Q + 16*qt + 4*m, 4)
            c = lambda r: "0" if m == 0 else vr(r, 4)
            a(f"v_mfma_f32_16x16x32_bf16 {vr(X0,4)}, {vr(K+4*m,4)}, {B}, {c(X0)}")
            if qt == 1: a(f"v_mfma_f32_16x16x32_bf16 {vr(X1,4)}, {vr(K+16+4*m,4)}, {B}, {c(X1)}")
            a(f"v_mfma_f32_16x16x32_bf16 {vr(MM,4)}, {vr(KM+4*m,4)}, {B}, {c(MM)}")
        diag = X0 if qt == 0 else X1
        for jj in range(4): a(f"v_cndmask_b32 v{diag+jj}, v15, v{diag+jj}, s[{sMsk+2*jj}:{sMsk+2*jj+1}]")
        vals = list(range(X0, X0+4)) + (list(range(X1, X1+4)) if qt == 1 else []) + list(range(MM, MM+4))
        m_, t_ = 172, 173
        a(f"v_max3_f32 v{m_}, v{vals[0]}, v{vals[1]}, v{vals[2]}")
        rest = vals[3:]
        while len(rest) >= 2: a(f"v_max3_f32 v{m_}, v{m_}, v{rest[0]}, v{rest[1]}"); rest = rest[2:]
        if rest: a(f"v_max_f32 v{m_}, v{m_}, v{rest[0]}")
        for p in ("32", "16"):
            a(f"v_mov_b32 v{t_}, v{m_}"); a(f"v_permlane{p}_swap_b32 v{m_}, v{t_}"); a(f"v_max_f32 v{m_}, v{m_}, v{t_}")
        a(f"v_mul_f32 v{m_}, s{sCc}, v{m_}")
        for r in vals: a(f"v_fma_f32 v{r}, v{r}, s{sCc}, -v{m_}")
        for r in vals: a(f"v_exp_f32 v{r}, v{r}")
        PX, PM = 176, 180
        a(f"v_cvt_pk_bf16_f32 v{PX}, v{X0}, v{X0+1}"); a(f"v_cvt_pk_bf16_f32 v{PX+1}, v{X0+2}, v{X0+3}")
        if qt == 1:
            a(f"v_cvt_pk_bf16_f32 v{PX+2}, v{X1}, v{X1+1}"); a(f"v_cvt_pk_bf16_f32 v{PX+3}, v{X1+2}, v{X1+3}")
        else:
            a(f"v_mov_b32 v{PX+2}, 0"); a(f"v_mov_b32 v{PX+3}, 0")
        a(f"v_cvt_pk_bf16_f32 v{PM}, v{MM}, v{MM+1}"); a(f"v_cvt_pk_bf16_f32 v{PM+1}, v{MM+2}, v{MM+3}")
        if qt == 0: a.wait(tv[-1])
        for et in range(8):
            a(f"v_mfma_f32_16x16x32_bf16 {vr(O+4*et,4)}, {vr(V+4*et,4)}, {vr(PX,4)}, 0")
        for et in range(8):
            w, t = et >> 1, et & 1
            A = (VLO if t == 0 else VHI) + 2 * w
            a(f"v_mfma_f32_16x16x16_bf16 {vr(O+4*et,4)}, {vr(A,2)}, {vr(PM,2)}, {vr(O+4*et,4)}")
        l_, u_ = 174, 175
        a(f"v_dot2_f32_bf16 v{l_}, v{PM}, s{sHalf}, 0"); a(f"v_dot2_f32_bf16 v{u_}, v{PX}, s{sOnes}, 0")
        a(f"v_dot2_f32_bf16 v{l_}, v{PM+1}, s{sHalf}, v{l_}"); a(f"v_dot2_f32_bf16 v{u_}, v{PX+1}, s{sOnes}, v{u_}")
        a(f"v_dot2_f32_bf16 v{l_}, v{PX+2}, s{sOnes}, v{l_}"); a(f"v_dot2_f32_bf16 v{u_}, v{PX+3}, s{sOnes}, v{u_}")
        a(f"v_add_f32 v{l_}, v{l_}, v{u_}")
        for p in ("32", "16"):
            a(f"v_mov_b32 v{u_}, v{l_}"); a(f"v_permlane{p}_swap_b32 v{l_}, v{u_}"); a(f"v_add_f32 v{l_}, v{l_}, v{u_}")
        a(f"v_rcp_f32 v{l_}, v{l_}")
        a(f"s_lshl_b32 s{sT0}, s{sSegA}, 1"); a(f"s_add_u32 s{sT0}, s{sT0}, {qt}")
        a(f"s_lshl_b32 s{sT0}, s{sT0}, 7"); a(f"s_lshl_b32 s{sT2}, s{sHead}, 2"); a(f"s_add_u32 s{sT0}, s{sT0}, s{sT2}")
        a(f"s_lshl_b32 s{sT0}, s{sT0}, 10"); a(f"s_add_u32 s{sT0}, s{sT0}, {WS_OX}")
        for m in range(4):
            b = O + 8*m
            for k in range(8): a(f"v_mul_f32 v{b+k}, v{b+k}, v{l_}")
            for r in range(4): a(f"v_cvt_pk_bf16_f32 v{b+r}, v{b+2*r}, v{b+2*r+1}")
            a.vm(f"buffer_store_dwordx4 {vr(b,4)}, v{vL16}, {WS}, s{sT0} offen offset:{1024*m} sc1")
    a.wait_all_vm()
    a(f"s_lshl_b32 s{sT0}, s{sSegA}, 7"); a(f"s_add_u32 s{sT0}, s{sT0}, {WS_FLAGS + FL_OX}")
    atomic_inc(a, f"s{sT0}", vt=12)
    a(f"s_add_u32 s{sSegA}, s{sSegA}, 4")
    a(f"s_cmp_lt_u32 s{sSegA}, {NSEG}"); a(f"s_cbranch_scc1 {top}")
    a("s_waitcnt vmcnt(0)")

sBi, sCb, sTT = 20, 21, 22
def bw(kk, T):
    return (ar(8*kk + 4*T, 4), ("a", 8*kk + 4*T)) if kk < 32 else (vr(144 + 8*(kk-32) + 4*T, 4), ("v", 144 + 8*(kk-32) + 4*T))
def out_role(a):
    a("; ==== output GEMM role")
    a(f"s_mul_i32 s{sT0}, s{sBi}, 13108"); a(f"s_lshr_b32 s{sTT}, s{sT0}, 18")
    a(f"s_mul_i32 s{sT0}, s{sTT}, 20"); a(f"s_sub_u32 s{sCb}, s{sBi}, s{sT0}")
    a("v_and_b32 v2, 63, v0")
    a(f"v_lshlrev_b32 v{vL16}, 4, v2")
    a("v_lshrrev_b32 v3, 2, v2")
    a("v_and_b32 v4, 3, v2")
    a("v_bfe_u32 v5, v3, 2, 1"); a("v_lshlrev_b32 v5, 4, v5")
    a("v_lshrrev_b32 v6, 3, v3"); a("v_lshl_add_u32 v5, v6, 2, v5")
    a("v_and_b32 v6, 3, v3"); a("v_add_u32 v5, v5, v6")
    a(f"s_movk_i32 s{sT0}, 1280")
    a(f"v_mul_lo_u32 v5, v5, s{sT0}"); a("v_lshl_add_u32 v5, v4, 4, v5")
    a(f"v_mul_lo_u32 v6, v3, s{sT0}"); a("v_lshl_add_u32 v6, v4, 4, v6")
    a("v_lshrrev_b32 v7, 4, v2"); a("v_lshlrev_b32 v7, 3, v7"); a("v_bfe_u32 v8, v2, 2, 2"); a("v_add_u32 v7, v7, v8")
    a("v_lshlrev_b32 v7, 6, v7"); a("v_and_b32 v8, 3, v2"); a("v_lshl_add_u32 v7, v8, 4, v7")
    sRing = 24
    a(f"s_lshl_b32 s{sRing}, s{sW}, 15"); a(f"v_add_u32 v7, s{sRing}, v7")
    srd(a, S_A, pWo, H * DH * D * 2)
    srd(a, S_B, pW2, F * D * 2)
    sBo, sB2 = 25, 26
    a(f"s_lshl_b32 s{sT0}, s{sCb}, 6")
    a(f"s_mul_i32 s{sBo}, s{sW}, {1024*1280}"); a(f"s_add_u32 s{sBo}, s{sBo}, s{sT0}")
    a(f"s_mul_i32 s{sB2}, s{sW}, {14*32*1280}"); a(f"s_add_u32 s{sB2}, s{sB2}, s{sT0}")
    toks = {}
    def issue(k):
        slot = k % 16
        for u in range(2):
            if k < 32:
                a(f"s_add_u32 s{sT0}, s{sBo}, {(32*k + 8*u)*1280}")
                a(f"s_add_u32 m0, s{sRing}, {slot*2048 + u*1024}")
                toks[(k, u)] = a.vm(f"buffer_load_dwordx4 v5, s[{S_A}:{S_A+3}], s{sT0} offen lds")
            else:
                a(f"s_add_u32 s{sT0}, s{sB2}, {(32*(k-32) + 16*u)*1280}")
                a(f"s_add_u32 m0, s{sRing}, {slot*2048 + u*1024}")
                toks[(k, u)] = a.vm(f"buffer_load_dwordx4 v6, s[{S_B}:{S_B+3}], s{sT0} offen lds")
    for k in range(16): issue(k)
    for k in range(46):
        a.wait(toks[(k, 1)])
        last = None
        for T in range(2):
            cls, b = bw(k, T)[1]
            a.lg(f"ds_read_b64_tr_b16 {cls}[{b}:{b+1}], v7 offset:{(k%16)*2048 + 8*T}")
            last = a.lg(f"ds_read_b64_tr_b16 {cls}[{b+2}:{b+3}], v7 offset:{(k%16)*2048 + 8*T + 256}")
        a.wait(last)
        if k + 16 < 46: issue(k + 16)
    a("s_barrier")
    srd(a, S_A, pX, S * D * 2)
    srd(a, S_B, pOut, S * D * 2)
    a("v_and_b32 v3, 15, v2"); a(f"s_movk_i32 s{sT0}, 1280"); a(f"v_mul_lo_u32 v3, v3, s{sT0}")
    a("v_lshrrev_b32 v4, 4, v2"); a("v_lshl_add_u32 v3, v4, 4, v3")
    a(f"s_lshl_b32 s{sT0}, s{sCb}, 6"); a(f"v_add_u32 v3, s{sT0}, v3")
    a("v_and_b32 v4, 7, v2"); a("v_min_u32 v4, 6, v4"); a("v_lshlrev_b32 v4, 2, v4")
    RED = 131072
    a(f"s_lshl_b32 s{sT0}, s{sW}, 12"); a(f"v_add_u32 v5, s{sT0}, v{vL16}"); a(f"v_add_u32 v5, {RED}, v5")
    a(f"v_add_u32 v6, {RED}, v{vL16}")
    top = a.newlabel("OUT")
    a.label(top)
    sSg, sOx, sAc = 27, 28, 29
    a(f"s_lshr_b32 s{sSg}, s{sTT}, 1")
    a(f"s_lshr_b32 s{sT0}, s{sSg}, 4"); a(f"s_lshl_b32 s{sT0}, s{sT0}, 5"); a(f"s_add_u32 s{sT0}, s{sT0}, {WS_FLAGS + FL_ACT}")
    a(f"v_add_u32 v8, s{sT0}, v4")
    a(f"s_and_b32 s{sT1}, s{sSg}, 15"); a(f"s_add_u32 s{sT1}, s{sT1}, 1")
    pl = a.newlabel("OP1")
    a.label(pl)
    a(f"buffer_load_dword v9, v8, {WS}, 0 offen sc1")
    spin(a)
    a("s_waitcnt vmcnt(0)")
    a(f"v_cmp_gt_u32 vcc, s{sT1}, v9")
    a(f"s_cbranch_vccnz {pl}")
    a(f"s_mul_i32 s{sT0}, s{sTT}, {16*1280}")
    tx = a.vm(f"buffer_load_dwordx4 v[12:15], v3, s[{S_A}:{S_A+3}], s{sT0} offen")
    a(f"s_mul_i32 s{sAc}, s{sTT}, {ACT_KK*1024}"); a(f"s_add_u32 s{sAc}, s{sAc}, {WS_ACT}")
    AB, AA = 48, 56
    FB = 64
    ft = {}
    def ld_act(q):
        a(f"s_mul_i32 s{sT0}, s{sW}, 14"); a(f"s_add_u32 s{sT0}, s{sT0}, {q}"); a(f"s_min_u32 s{sT0}, s{sT0}, 53")
        a(f"s_lshl_b32 s{sT0}, s{sT0}, 10"); a(f"s_add_u32 s{sT0}, s{sT0}, s{sAc}")
        ft[q] = a.vm(f"buffer_load_dwordx4 {vr(FB+4*q,4)}, v{vL16}, {WS}, s{sT0} offen sc1")
    for q in range(14): ld_act(q)
    for q in range(14):
        a.wait(ft[q])
        for T in range(2):
            a(f"v_mfma_f32_16x16x32_bf16 {vr(AB+4*T,4)}, {bw(32+q,T)[0]}, {vr(FB+4*q,4)}, {'0' if q == 0 else vr(AB+4*T,4)}")
    a(f"s_lshl_b32 s{sT0}, s{sSg}, 7"); a(f"s_add_u32 s{sT0}, s{sT0}, {WS_FLAGS + FL_OX}")
    a(f"s_mov_b32 s{sT3}, 32")
    poll_ge(a, f"s{sT0}", f"s{sT3}", vt=8, label="OP2")
    a(f"s_lshl_b32 s{sOx}, s{sTT}, 7"); a(f"s_lshl_b32 s{sT0}, s{sW}, 5"); a(f"s_add_u32 s{sOx}, s{sOx}, s{sT0}")
    a(f"s_lshl_b32 s{sOx}, s{sOx}, 10"); a(f"s_add_u32 s{sOx}, s{sOx}, {WS_OX}")
    ot = {}
    def ld_ox(q):
        if q % 4 == 0: a(f"s_add_u32 s{sT0}, s{sOx}, {q*1024}")
        else: a(f"s_add_u32 s{sT0}, s{sOx}, {(q//4)*4096}")
        ot[q] = a.vm(f"buffer_load_dwordx4 {vr(FB+4*(q%16),4)}, v{vL16}, {WS}, s{sT0} offen offset:{(q%4)*1024} sc1")
    for q in range(16): ld_ox(q)
    for q in range(32):
        a.wait(ot[q])
        for T in range(2):
            a(f"v_mfma_f32_16x16x32_bf16 {vr(AA+4*T,4)}, {bw(q,T)[0]}, {vr(FB+4*(q%16),4)}, {'0' if q == 0 else vr(AA+4*T,4)}")
        if q + 16 < 32: ld_ox(q + 16)
    a("s_barrier")
    for k, r in enumerate((AA, AA+4, AB, AB+4)):
        a.lg(f"ds_write_b128 v5, {vr(r,4)} offset:{1024*k}")
    a.wait_all_lg()
    a("s_barrier")
    nx = a.newlabel("ONX")
    a(f"s_cmp_lg_u32 s{sW}, 0"); a(f"s_cbranch_scc1 {nx}")
    rd = []
    for w in range(1, 4):
        for k in range(4):
            rd.append(a.lg(f"ds_read_b128 {vr(FB+16*(w-1)+4*k,4)}, v6 offset:{4096*w + 1024*k}"))
    for w in range(1, 4):
        a.wait(rd[4*(w-1)+3])
        for k, r in enumerate((AA, AA+4, AB, AB+4)):
            for j in range(4): a(f"v_add_f32 v{r+j}, v{r+j}, v{FB+16*(w-1)+4*k+j}")
    a.wait(tx, force=True)
    for pr in range(4):
        A0, A1 = AA + 2*pr, AA + 2*pr + 1
        B0, B1 = AB + 2*pr, AB + 2*pr + 1
        a(f"v_cvt_pk_bf16_f32 v16, v{A0}, v{A1}")
        a(f"v_cvt_pk_bf16_f32 v17, v{B0}, v{B1}")
        a("v_lshlrev_b32 v18, 16, v16"); a("v_and_b32 v19, 0xffff0000, v16")
        a(f"v_lshlrev_b32 v20, 16, v{12+pr}"); a(f"v_and_b32 v21, 0xffff0000, v{12+pr}")
        a("v_add_f32 v18, v18, v20"); a("v_add_f32 v19, v19, v21")
        a("v_cvt_pk_bf16_f32 v16, v18, v19")
        a("v_lshlrev_b32 v18, 16, v16"); a("v_and_b32 v19, 0xffff0000, v16")
        a("v_lshlrev_b32 v20, 16, v17"); a("v_and_b32 v21, 0xffff0000, v17")
        a("v_add_f32 v18, v18, v20"); a("v_add_f32 v19, v19, v21")
        a(f"v_cvt_pk_bf16_f32 v{24+pr}, v18, v19")
    a(f"s_mul_i32 s{sT0}, s{sTT}, {16*1280}")
    a(f"buffer_store_dwordx4 v[24:27], v3, s[{S_B}:{S_B+3}], s{sT0} offen")
    a.label(nx)
    a(f"s_add_u32 s{sTT}, s{sTT}, 4")
    a(f"s_cmp_lt_u32 s{sTT}, 128"); a(f"s_cbranch_scc1 {top}")
    a("s_waitcnt vmcnt(0)")
```

```python
import sys
sys.path.insert(0, "gen")
from asmlib import *
from layout import *
import chain as C
import workers as W
NAME = "parallel_sum__memory_aug_recurrent_mem_tr__dense_activation_mish__prompt_kernel"
sX, sR = 84, 85
sMode = 86
sDbgP = 76
def header_comment():
    lines = open("cdna_kernels/" + NAME[:-7] + ".s.ref").read().split("\n")
    out = []
    for ln in lines:
        if ln.startswith("; @launch"): break
        if ln.startswith(";"): out.append(ln)
    return "\n".join(out)

def registration(a):
    a("; ==== registration: rank inside the XCD this workgroup runs on")
    WS = W.WS
    nz = a.newlabel("NZ")
    a("s_cmp_lg_u32 s2, 0"); a(f"s_cbranch_scc1 {nz}")
    a("v_lshlrev_b32 v1, 4, v0")
    for k in range(4): a(f"v_mov_b32 v{4+k}, 0")
    for k in range(FLAGS_BYTES // 4096):
        a(f"s_mov_b32 s47, {WS_FLAGS + 4096*k}")
        a(f"buffer_store_dwordx4 v[4:7], v1, {WS}, s47 offen sc1")
    a("s_waitcnt vmcnt(0)")
    a("s_barrier")
    a.label(nz)
    W.srd(a, 8, sDbgP, 256)
    a(f"s_getreg_b32 s{sX}, hwreg(HW_REG_XCC_ID, 0, 4)")
    a(f"s_and_b32 s47, s{sX}, 3"); a("s_lshl_b32 s47, s47, 2")
    a(f"s_lshr_b32 s48, s{sX}, 2"); a("s_lshl_b32 s48, s48, 7"); a("s_add_u32 s47, s47, s48")
    a("s_min_u32 s47, s47, 252")
    nw = a.newlabel("RW")
    a(f"s_cmp_lg_u32 s{W.sW}, 0"); a(f"s_cbranch_scc1 {nw}")
    a("v_mov_b32 v4, s47"); a("v_mov_b32 v5, 1")
    a("s_mov_b64 exec, 1")
    a("buffer_atomic_add v5, v4, s[8:11], 0 offen sc0")
    a("s_waitcnt vmcnt(0)")
    a("s_mov_b64 exec, -1")
    a("v_mov_b32 v6, 0")
    a("s_mov_b64 exec, 1")
    a("ds_write_b32 v6, v5")
    a("s_mov_b64 exec, -1")
    a("s_waitcnt lgkmcnt(0)")
    a.label(nw)
    a("s_barrier")
    a("v_mov_b32 v6, 0")
    a("ds_read_b32 v5, v6")
    a("s_waitcnt lgkmcnt(0)")
    a(f"v_readfirstlane_b32 s{sR}, v5")
    a("v_and_b32 v4, 7, v0")
    a("v_and_b32 v6, 3, v4"); a("v_lshlrev_b32 v6, 2, v6")
    a("v_lshrrev_b32 v7, 2, v4"); a("v_lshl_add_u32 v6, v7, 7, v6")
    lab = a.newlabel("RP")
    a.label(lab)
    a("buffer_load_dword v7, v6, s[8:11], 0 offen sc1")
    a("v_mov_b32 v9, 252")
    a("buffer_load_dword v8, v9, s[8:11], 0 offen sc1")
    W.spin(a)
    a("s_waitcnt vmcnt(0)")
    a(f"v_readfirstlane_b32 s50, v8")
    for k in range(8): a(f"v_readlane_b32 s{88+k}, v7, {k}")
    a("s_nop 1")
    a("s_mov_b32 s47, s50")
    for k in range(8): a(f"s_add_u32 s47, s47, s{88+k}")
    a("s_cmp_ge_u32 s47, 256")
    go = a.newlabel("RG")
    a(f"s_cbranch_scc1 {go}")
    a("s_sleep 8")
    a(f"s_branch {lab}")
    a.label(go)
    a(f"s_mov_b32 s{sMode}, 1")
    for k in range(8):
        a(f"s_cmp_eq_u32 s{88+k}, 32"); a(f"s_cselect_b32 s{sMode}, s{sMode}, 0")
    fast = a.newlabel("RF")
    a(f"s_cmp_eq_u32 s{sMode}, 1"); a(f"s_cbranch_scc1 {fast}")
    a(f"s_mov_b32 s47, s{sR}")
    for k in range(8):
        a(f"s_cmp_gt_u32 s{sX}, {k}"); a(f"s_cselect_b32 s48, s{88+k}, 0"); a("s_add_u32 s47, s47, s48")
    a(f"s_lshr_b32 s{sX}, s47, 5"); a(f"s_and_b32 s{sR}, s47, 31")
    a.label(fast)

def build(timing=False, opt=()):
    a = Asm()
    a("s_cmp_ge_u32 s2, 256"); a("s_cbranch_scc1 L_END")
    for reg, off in ((W.pX, 0), (W.pWq, 16), (W.pWk, 24), (W.pWv, 32), (W.pWo, 40), (W.pW1, 64), (W.pB1, 72), (W.pW2, 80), (W.pOut, 88)):
        a(f"s_load_dwordx2 s[{reg}:{reg+1}], s[0:1], {off}")
    a(f"s_load_dwordx2 s[{sDbgP}:{sDbgP+1}], s[0:1], 96")
    a("s_load_dwordx2 s[78:79], s[0:1], 104")
    a("s_load_dwordx2 s[80:81], s[0:1], 8")
    a("v_lshrrev_b32 v8, 6, v0"); a("s_nop 1"); a(f"v_readfirstlane_b32 s{W.sW}, v8")
    a("s_waitcnt lgkmcnt(0)")
    W.srd(a, W.S_WS, 78, WS_SIZE)
    a(f"s_mov_b32 s{W.sSpin}, 0x400000")
    if timing: a("s_memrealtime s[98:99]"); a("s_waitcnt lgkmcnt(0)")
    registration(a)
    wk = a.newlabel("WORKER")
    a(f"s_cmp_lg_u32 s{sX}, 0"); a(f"s_cbranch_scc1 {wk}")
    a(f"s_mov_b32 s{C.sH}, s{sR}")
    a(f"s_mov_b64 s[82:83], s[{W.pWo}:{W.pWo+1}]")
    a(f"s_mov_b64 s[{C.sWq}:{C.sWq+1}], s[{W.pWq}:{W.pWq+1}]")
    a(f"s_mov_b64 s[{C.sWk}:{C.sWk+1}], s[{W.pWk}:{W.pWk+1}]")
    a(f"s_mov_b64 s[{C.sWv}:{C.sWv+1}], s[{W.pWv}:{W.pWv+1}]")
    a(f"s_mov_b64 s[{C.sWo}:{C.sWo+1}], s[82:83]")
    a(f"s_mov_b64 s[{C.sMem0}:{C.sMem0+1}], s[80:81]")
    a(f"s_mov_b64 s[{C.sDbg}:{C.sDbg+1}], s[{sDbgP}:{sDbgP+1}]")
    slow = a.newlabel("CSLOW")
    a(f"s_cmp_eq_u32 s{sMode}, 0"); a(f"s_cbranch_scc1 {slow}")
    C.chain_main(a, True, "CF", opt=opt)
    a("s_branch L_DONE")
    a.label(slow)
    C.chain_main(a, False, "CS", opt=opt)
    a("s_branch L_DONE")
    a.label(wk)
    sWi = 87
    a(f"s_sub_u32 s{sX}, s{sX}, 1")
    a(f"s_lshl_b32 s{sWi}, s{sX}, 5"); a(f"s_add_u32 s{sWi}, s{sWi}, s{sR}")
    nl = a.newlabel("NLN")
    a(f"s_cmp_ge_u32 s{sWi}, 64"); a(f"s_cbranch_scc1 {nl}")
    W.ln_role(a, sWi)
    a.label(nl)
    n1 = a.newlabel("NW1")
    a(f"s_lshl_b32 s{W.sBlk}, s{sX}, 3"); a(f"s_lshr_b32 s47, s{sR}, 2"); a(f"s_add_u32 s{W.sBlk}, s{W.sBlk}, s47")
    a(f"s_and_b32 s{W.sSplit}, s{sR}, 3")
    a(f"s_cmp_ge_u32 s{W.sBlk}, 55"); a(f"s_cbranch_scc1 {n1}")
    W.w1_role(a)
    a.label(n1)
    ra = a.newlabel("RA")
    a(f"s_cmp_eq_u32 s{sX}, 4"); a(f"s_cbranch_scc1 {ra}")
    a(f"s_cmp_ge_u32 s{sX}, 4"); a("s_cbranch_scc1 L_DONE")
    a(f"s_cmp_ge_u32 s{sR}, 20"); a("s_cbranch_scc1 L_DONE")
    a(f"s_mul_i32 s{W.sBi}, s{sX}, 20"); a(f"s_add_u32 s{W.sBi}, s{W.sBi}, s{sR}")
    a("s_barrier")
    W.out_role(a)
    a("s_branch L_DONE")
    a.label(ra)
    a(f"s_mov_b32 s{W.sAi}, s{sR}")
    a("s_barrier")
    W.att_role(a)
    a.label("L_DONE")
    if timing:
        a("s_memrealtime s[96:97]"); a("s_waitcnt lgkmcnt(0)")
        a("s_sub_u32 s96, s96, s98")
        a("v_mov_b32 v8, s96"); a("s_lshl_b32 s47, s2, 3"); a("v_mov_b32 v9, s47")
        a(f"v_add_u32 v9, {WS_STAMP}, v9")
        a(f"buffer_store_dword v8, v9, {W.WS}, 0 offen")
        a(f"s_lshl_b32 s47, s{sX}, 8"); a(f"s_add_u32 s47, s47, s{sR}"); a("v_mov_b32 v8, s47")
        a(f"buffer_store_dword v8, v9, {W.WS}, 0 offen offset:4")
        a("s_waitcnt vmcnt(0)")
    a.label("L_END")
    a("s_endpgm")
    a.label("L_TIMEOUT")
    a("v_mov_b32 v8, 0xdead"); a("v_mov_b32 v10, 64")
    a(f"global_store_dword v10, v8, s[{sDbgP}:{sDbgP+1}]")
    a("s_waitcnt vmcnt(0)")
    a("s_endpgm")
    hdr = header_comment() + f"""
; @launch grid=(256,1,1) block=(256,1,1) lds=163840
.amdgcn_target "amdgcn-amd-amdhsa--gfx950"
.text
.globl {NAME}
.p2align 8
.type {NAME},@function
{NAME}:
"""
    ftr = f"""
.section .rodata,"a"
.p2align 6
.amdhsa_kernel {NAME}
  .amdhsa_next_free_vgpr 512
  .amdhsa_next_free_sgpr 102
  .amdhsa_accum_offset 256
  .amdhsa_group_segment_fixed_size 0
  .amdhsa_kernarg_size 112
  .amdhsa_user_sgpr_count 2
  .amdhsa_user_sgpr_kernarg_segment_ptr 1
  .amdhsa_system_sgpr_workgroup_id_x 1
.end_amdhsa_kernel
"""
    return hdr + a.text() + ftr
if __name__ == "__main__":
    out = sys.argv[1] if len(sys.argv) > 1 else "cdna_kernels/" + NAME[:-7] + ".s"
    open(out, "w").write(build()); print("written", out)
```

```python
from asmlib import *
from layout import *

LDS_M, LDS_TQ, LDS_TK, LDS_TO, LDS_KX, LDS_L = 0, 10240, 12288, 14336, 16384, 24576
LDS_TOTAL = 163840

S_WS = 4
S_W = 8
sH, sW, sStep, sTag = 12, 13, 14, 15
sMrd, sMwr, sMpo = 16, 17, 18
sP0, sP1, sPl = 19, 20, 21
sPrd, sRedM, sIsRed = 22, 23, 24
sKV, sKVM = 25, 26
sKM, sVM, sVX = 75, 27, 54
sFlK, sFlV, sPF, sKXb = 95, 71, 73, 72
sKMo, sFlPub = 69, 70
sKX0, sFlagCur = 55, 96
sSWb = 90
sSel = 28
sLo32 = 36
sC, sOnes, sHalf, sFE = 38, 39, 40, 41
sW2560, sW512, sLb, sSW, sW2048 = 42, 43, 44, 45, 46
sT0, sT1, sT2, sT3 = 47, 48, 49, 50
sFlagOff = 51
sHi32 = 52
sWq, sWk, sWv, sWo, sMem0 = 56, 58, 60, 62, 64
sDbg = 66
sSpin = 74
def spin(a):
    a(f"s_sub_u32 s{sSpin}, s{sSpin}, 1")
    a("s_cbranch_scc1 L_TIMEOUT")
vL16, vAoff, vIdx, vTr, vTw, vPst, vLb, vFl = 0, 1, 2, 3, 4, 5, 6, 7

def vr(b, n): return f"v[{b}:{b+n-1}]"
def rtile(idx):
    if idx < 32: return f"a[{8*idx}:{8*idx+7}]", ("a", 8 * idx)
    b = 80 + 8 * (idx - 32)
    return f"v[{b}:{b+7}]", ("v", b)

S_TILES = [("q", 0), ("k", 0), ("q", 6), ("k", 7), ("q", 15), ("k", 16), ("q", 18), ("k", 19), ("v", 19)]
L_TILES = [("k", j) for j in (1, 2, 3, 4, 5, 6, 8, 9)] + \
          [("o", n // 4, n % 4) for n in (1, 3, 5, 7, 9, 11, 13, 15, 17)]
ALL_TILES = [("q", j) for j in range(20)] + [("k", j) for j in range(20)] + [("v", j) for j in range(20)] + \
            [("o", p, m) for p in range(5) for m in range(4)]
R_TILES = [t for t in ALL_TILES if t not in S_TILES and t not in L_TILES]
assert len(R_TILES) == 54 and len(L_TILES) == 17 and len(S_TILES) == 9
R_IDX = {t: i for i, t in enumerate(R_TILES)}
L_IDX = {t: i for i, t in enumerate(L_TILES)}
S_IDX = {t: i for i, t in enumerate(S_TILES)}

def srd(a, s, lo, nbytes):
    a(f"s_mov_b32 s{s}, s{lo}")
    a(f"s_and_b32 s{s+1}, s{lo+1}, 0xffff")
    a(f"s_mov_b32 s{s+2}, {nbytes}")
    a(f"s_mov_b32 s{s+3}, 0x20000")

def lane_consts(a):
    a("v_and_b32 v8, 63, v0")
    a("v_and_b32 v9, 15, v8")
    a("v_lshrrev_b32 v10, 4, v8")
    a(f"v_lshlrev_b32 v{vL16}, 4, v8")
    a("v_and_b32 v11, 7, v9")
    a("v_lshl_add_u32 v11, v10, 3, v11")
    a(f"v_lshlrev_b32 v{vAoff}, 4, v11")
    a("v_mov_b32 v12, 0x4444")
    a("v_mov_b32 v13, 0xeeee")
    a("v_cmp_gt_u32 vcc, 8, v9")
    a(f"v_cndmask_b32 v{vIdx}, v13, v12, vcc")
    a("v_lshrrev_b32 v11, 2, v9")
    a("v_lshl_add_u32 v11, v10, 3, v11")
    a("v_lshlrev_b32 v11, 4, v11")
    a("v_and_b32 v12, 1, v9")
    a(f"v_lshl_add_u32 v{vTr}, v12, 3, v11")
    a("v_lshrrev_b32 v11, 1, v10")
    a("v_lshl_add_u32 v11, v11, 4, v9")
    a(f"s_lshl_b32 s{sT0}, s{sW}, 5")
    a(f"v_add_u32 v11, s{sT0}, v11")
    a("v_lshlrev_b32 v11, 4, v11")
    a("v_and_b32 v12, 1, v10")
    a(f"v_lshl_add_u32 v{vTw}, v12, 3, v11")
    a("v_lshlrev_b32 v11, 13, v10")
    a(f"v_lshl_add_u32 v{vPst}, v9, 4, v11")
    a("v_bfe_u32 v11, v9, 1, 2")
    for R in range(4):
        a(f"v_cmp_eq_u32 s[{sSel+2*R}:{sSel+2*R+1}], {R}, v11")
    a(f"v_cmp_gt_u32 s[{sLo32}:{sLo32+1}], 32, v8")
    a(f"v_cmp_le_u32 s[{sHi32}:{sHi32+1}], 32, v8")

def lone_off(a, dst, tmp):
    a(f"v_bfe_u32 v{tmp}, v{vPst}, 14, 1")
    a(f"v_and_b32 v{dst}, 0x20f0, v{vPst}")
    a(f"v_lshl_or_b32 v{dst}, v{tmp}, 3, v{dst}")

def scalar_consts(a):
    a(f"s_mul_i32 s{sW2560}, s{sW}, 2560")
    a(f"s_lshl_b32 s{sW512}, s{sW}, 9")
    a(f"s_lshl_b32 s{sW2048}, s{sW}, 11")
    a(f"s_add_u32 s{sLb}, s{sW2048}, {LDS_L}")
    a(f"s_lshl_b32 s{sT0}, s{sH}, 2")
    a(f"s_add_u32 s{sT0}, s{sT0}, s{sW}")
    a(f"s_mul_i32 s{sT0}, s{sT0}, {9*2048}")
    a(f"s_add_u32 s{sSW}, s{sT0}, {WS_SW}")
    for k in range(5): a(f"s_add_u32 s{sSWb+k}, s{sSW}, {k*4096}")
    a(f"s_lshl_b32 s{sT0}, s{sH}, 8")
    a(f"s_lshl_b32 s{sT1}, s{sW}, 16")
    a(f"s_add_u32 s{sP0}, s{sT0}, s{sT1}")
    a(f"s_add_u32 s{sP0}, s{sP0}, {WS_P}")
    a(f"s_add_u32 s{sP1}, s{sP0}, {4*8192}")
    a(f"s_lshl_b32 s{sT1}, s{sW}, 14")
    a(f"s_add_u32 s{sPl}, s{sT0}, s{sT1}")
    a(f"s_add_u32 s{sPl}, s{sPl}, {WS_P + 32*8192}")
    a(f"s_mov_b32 s{sIsRed}, 0")
    a(f"s_cmp_eq_u32 s{sW}, 0")
    a(f"s_cselect_b32 s{sIsRed}, 1, 0")
    a(f"s_cmp_lt_u32 s{sH}, 8")
    a(f"s_cselect_b32 s{sT1}, 1, 0")
    a(f"s_cmp_eq_u32 s{sW}, 1")
    a(f"s_cselect_b32 s{sT1}, s{sT1}, 0")
    a(f"s_or_b32 s{sIsRed}, s{sIsRed}, s{sT1}")
    a(f"s_add_u32 s{sT2}, s{sH}, 32")
    a(f"s_cmp_eq_u32 s{sW}, 0")
    a(f"s_cselect_b32 s{sT2}, s{sH}, s{sT2}")
    a(f"s_min_u32 s{sT2}, s{sT2}, 39")
    a(f"s_lshl_b32 s{sPrd}, s{sT2}, 13")
    a(f"s_add_u32 s{sPrd}, s{sPrd}, {WS_P}")
    a(f"s_lshr_b32 s{sT0}, s{sT2}, 3")
    a(f"s_mul_i32 s{sT0}, s{sT0}, 20")
    a(f"s_bfe_u32 s{sT1}, s{sT2}, 0x10002")
    a(f"s_lshl_b32 s{sT1}, s{sT1}, 3")
    a(f"s_add_u32 s{sT0}, s{sT0}, s{sT1}")
    a(f"s_bfe_u32 s{sT1}, s{sT2}, 0x10001")
    a(f"s_lshl_b32 s{sT1}, s{sT1}, 2")
    a(f"s_add_u32 s{sT0}, s{sT0}, s{sT1}")
    a(f"s_sub_u32 s{sT1}, s{sT2}, 32")
    a(f"s_lshr_b32 s{sT1}, s{sT1}, 1")
    a(f"s_mul_i32 s{sT1}, s{sT1}, 20")
    a(f"s_add_u32 s{sT1}, s{sT1}, 16")
    a(f"s_cmp_lt_u32 s{sT2}, 32")
    a(f"s_cselect_b32 s{sT0}, s{sT0}, s{sT1}")
    a(f"s_lshl_b32 s{sT0}, s{sT0}, 7")
    a(f"s_and_b32 s{sT1}, s{sT2}, 1")
    a(f"s_lshl_b32 s{sT1}, s{sT1}, 6")
    a(f"s_add_u32 s{sRedM}, s{sT0}, s{sT1}")
    import struct, math
    c = struct.unpack("<I", struct.pack("<f", (128 ** -0.5) * math.log2(math.e)))[0]
    a(f"s_mov_b32 s{sC}, {c:#x}")
    a(f"s_mov_b32 s{sOnes}, 0x3f803f80")
    a(f"s_mov_b32 s{sHalf}, 0x3f003f00")
    a(f"s_mov_b32 s{sFE}, 0xfffffffe")

def unit_src(t):
    if t[0] in "qkv":
        base, X = kstep_base(t[1])
        return {"q": sWq, "k": sWk, "v": sWv}[t[0]], [(base + uu * X) * 8192 for uu in range(2)], False
    p, m = t[1], t[2]
    return sWo, [(32 * m + 16 * uu) * 1280 + 256 * p for uu in range(2)], True

def weights_prologue(a, hook=None):
    vG, vGo, vTa, vTmp = 8, 9, 10, 12
    a(f"v_lshrrev_b32 v11, 4, v{vL16}")
    a("v_lshrrev_b32 v20, 4, v11")
    a("v_and_b32 v21, 15, v11")
    a(f"v_lshlrev_b32 v{vG}, 13, v20")
    a(f"v_lshl_add_u32 v{vG}, v21, 4, v{vG}")
    a("s_movk_i32 s47, 1280")
    a(f"v_mul_lo_u32 v{vGo}, v20, s47")
    a(f"v_lshl_add_u32 v{vGo}, v21, 4, v{vGo}")
    a("v_lshrrev_b32 v22, 2, v21")
    a("v_and_b32 v23, 1, v22")
    a("v_lshl_add_u32 v23, v20, 2, v23")
    a("v_lshlrev_b32 v23, 8, v23")
    a("v_lshrrev_b32 v22, 1, v22")
    a("v_lshl_add_u32 v23, v22, 5, v23")
    a("v_and_b32 v22, 3, v21")
    a("v_lshl_add_u32 v23, v22, 3, v23")
    a(f"s_lshl_b32 s{sT0}, s{sW}, 6")
    a(f"v_add_u32 v{vTa}, s{sT0}, v23")
    sBq, sBo = 96, 97
    a(f"s_lshl_b32 s{sT0}, s{sW}, 15")
    a(f"s_lshl_b32 s{sT1}, s{sH}, 8")
    a(f"s_add_u32 s{sBq}, s{sT0}, s{sT1}")
    a(f"s_lshl_b32 s{sT0}, s{sH}, 7")
    a(f"s_lshl_b32 s{sT1}, s{sW}, 2")
    a(f"s_add_u32 s{sT0}, s{sT0}, s{sT1}")
    a(f"s_mul_i32 s{sBo}, s{sT0}, 1280")
    order = R_TILES + S_TILES + L_TILES
    n = len(order)
    slot = {}
    for k in range(n - 1, -1, -1):
        slot[k] = L_IDX[order[k]] if k >= n - 17 else slot[k + 17]
    cur_ptr = [None]
    toks = {}
    def issue(k):
        t = order[k]
        ptr, offs, is_wo = unit_src(t)
        if cur_ptr[0] != ptr:
            srd(a, S_W, ptr, 5242880); cur_ptr[0] = ptr
        for uu in range(2):
            a(f"s_add_u32 s{sT0}, s{sBo if is_wo else sBq}, {offs[uu]}")
            a(f"s_add_u32 m0, s{sW2048}, {LDS_L + slot[k]*8192 + uu*1024}")
            toks[(k, uu)] = a.vm(f"buffer_load_dwordx4 v{vGo if is_wo else vG}, s[{S_W}:{S_W+3}], s{sT0} offen{WMOD} lds")
    DEPTH = 17
    for k in range(DEPTH): issue(k)
    pendL = None
    for k in range(n):
        t = order[k]
        if hook: hook(k)
        a.wait(toks[(k, 1)])
        a("s_barrier")
        if pendL is not None:
            pk, pb = pendL
            a(f"v_add_u32 v11, s{sLb}, v{vL16}")
            a(f"v_add_u32 v11, {slot[pk]*8192}, v11")
            a.lg(f"ds_write_b128 v11, {vr(pb,4)}")
            a.lg(f"ds_write_b128 v11, {vr(pb+4,4)} offset:1024")
            pendL = None
        if k >= 1 and k - 1 + 17 < n: issue(k - 1 + 17)
        a(f"v_add_u32 v11, {LDS_L + slot[k]*8192}, v{vTa}")
        if t in R_IDX:
            _, (cls, b) = rtile(R_IDX[t])
        else:
            cls, b = "v", (vTmp if k % 2 == 0 else vTmp + 8)
        last = None
        for q, off in enumerate((0, 512, 4096, 4608)):
            last = a.lg(f"ds_read_b64_tr_b16 {cls}[{b+2*q}:{b+2*q+1}], v11 offset:{off}")
        a.wait(last)
        if t in S_IDX:
            si = S_IDX[t]
            a(f"s_add_u32 s{sT1}, s{sSW}, {si*2048}")
            a.vm(f"buffer_store_dwordx4 {vr(b,4)}, v{vL16}, s[{S_WS}:{S_WS+3}], s{sT1} offen")
            a.vm(f"buffer_store_dwordx4 {vr(b+4,4)}, v{vL16}, s[{S_WS}:{S_WS+3}], s{sT1} offen offset:1024")
        if t in L_IDX: pendL = (k, b)
    a("s_barrier")
    pk, pb = pendL
    a(f"v_add_u32 v11, s{sLb}, v{vL16}")
    a(f"v_add_u32 v11, {slot[pk]*8192}, v11")
    a.lg(f"ds_write_b128 v11, {vr(pb,4)}")
    a.lg(f"ds_write_b128 v11, {vr(pb+4,4)} offset:1024")
    a.wait_all()

S_M0 = 80
def mem0_loads(a):
    a("; ---- mem0 loads")
    srd(a, S_M0, sMem0, 8 * 1280)
    T = 44
    a(f"v_lshrrev_b32 v{T+9}, 4, v{vL16}")
    a(f"s_lshl_b32 s{sT0}, s{sW}, 6")
    a(f"v_add_u32 v{T+9}, s{sT0}, v{T+9}")
    a(f"s_mov_b32 s{sT1}, 13108")
    toks = []
    for n in range(5):
        q = 28 + n; b = T - 1
        a(f"v_add_u32 v{q}, {256*n}, v{T+9}")
        a(f"v_lshrrev_b32 v{b+1}, 4, v{q}")
        a(f"v_lshrrev_b32 v{b+2}, 2, v{b+1}")
        a(f"v_and_b32 v{b+3}, 3, v{b+1}")
        a(f"v_mul_u32_u24 v{b+4}, s{sT1}, v{b+2}")
        a(f"v_lshrrev_b32 v{b+4}, 16, v{b+4}")
        a(f"v_mul_u32_u24 v{b+5}, 5, v{b+4}")
        a(f"v_sub_u32 v{b+5}, v{b+2}, v{b+5}")
        a(f"v_and_b32 v{b+6}, 1, v{q}")
        a(f"v_lshrrev_b32 v{b+7}, 1, v{b+5}")
        a(f"v_lshlrev_b32 v{b+7}, 8, v{b+7}")
        a(f"v_and_b32 v{b+8}, 1, v{b+5}")
        a(f"v_lshl_add_u32 v{b+7}, v{b+8}, 4, v{b+7}")
        a(f"v_lshlrev_b32 v{b+8}, 7, v{b+6}")
        a(f"v_lshlrev_b32 v{b+9}, 4, v{b+6}")
        a(f"v_cmp_eq_u32 vcc, 4, v{b+5}")
        a(f"v_cndmask_b32 v{b+8}, v{b+8}, v{b+9}, vcc")
        a(f"v_add_u32 v{b+7}, v{b+7}, v{b+8}")
        a(f"v_lshl_add_u32 v{b+7}, v{b+4}, 5, v{b+7}")
        a(f"v_lshl_add_u32 v{b+7}, v{b+3}, 2, v{b+7}")
        a(f"v_bfe_u32 v{b+8}, v{q}, 1, 3")
        a(f"s_movk_i32 s{sT2}, 1280")
        a(f"v_mul_lo_u32 v{b+8}, v{b+8}, s{sT2}")
        a(f"v_lshl_add_u32 v{b+8}, v{b+7}, 1, v{b+8}")
        toks.append(a.vm(f"buffer_load_dwordx2 {vr(34+2*n,2)}, v{b+8}, s[{S_M0}:{S_M0+3}], 0 offen"))
        a(f"v_lshlrev_b32 v{q}, 3, v{q}")
    return toks
def mem0_writes(a, toks):
    for n in range(5):
        a.wait(toks[n])
        a.lg(f"ds_write_b64 v{28+n}, {vr(34+2*n,2)} offset:{LDS_M}")

def init_exchange(a, sc):
    a("; ---- init exchange buffers")
    for k in range(54, 58): a(f"v_mov_b32 v{k}, 1")
    a.vm(f"buffer_store_dwordx4 v[54:57], v{vPst}, s[{S_WS}:{S_WS+3}], s{sP0} offen{sc}")
    a.vm(f"buffer_store_dwordx4 v[54:57], v{vPst}, s[{S_WS}:{S_WS+3}], s{sP1} offen{sc}")
    lone_off(a, 58, 59)
    a.vm(f"buffer_store_dwordx2 v[54:55], v58, s[{S_WS}:{S_WS+3}], s{sPl} offen{sc}")
    skip = a.newlabel("IX")
    a(f"s_cmp_eq_u32 s{sIsRed}, 0")
    a(f"s_cbranch_scc1 {skip}")
    red_moff(a, 58, 59)
    a("v_mov_b32 v60, -1"); a("v_mov_b32 v61, -1")
    for sl in range(4):
        a(f"s_add_u32 s{sT0}, s{sRedM}, {WS_M + sl*MSLOT}")
        a(f"buffer_store_dwordx2 v[60:61], v58, s[{S_WS}:{S_WS+3}], s{sT0} offen{sc}")
    a.label(skip)

def red_moff(a, dst, tmp):
    a(f"v_lshrrev_b32 v{dst}, 8, v{vL16}")
    a(f"v_lshlrev_b32 v{dst}, 7, v{dst}")
    a(f"v_and_b32 v{tmp}, 0x30, v{vL16}")
    a(f"v_add_u32 v{dst}, v{dst}, v{tmp}")
    a(f"v_bfe_u32 v{tmp}, v{vL16}, 6, 1")
    a(f"v_lshl_add_u32 v{dst}, v{tmp}, 3, v{dst}")

def flag_off(a):
    a(f"s_mov_b32 s{sFlagCur}, s{sFlagOff}")
    a(f"s_add_u32 s{sT0}, s{sStep}, 1")
    a(f"s_lshr_b32 s{sT0}, s{sT0}, 4")
    a(f"s_min_u32 s{sT0}, s{sT0}, 3")
    a(f"s_lshl_b32 s{sT0}, s{sT0}, 6")
    a(f"s_lshr_b32 s{sT1}, s{sH}, 1")
    a(f"s_lshl_b32 s{sT1}, s{sT1}, 2")
    a(f"s_add_u32 s{sFlagOff}, s{sT0}, s{sT1}")
    a(f"s_add_u32 s{sFlagOff}, s{sFlagOff}, {FL_KV}")

PF_DIST = 1
WMOD = ' nt'
KXNT = ' nt'
OPTS = set()
NT = ''
def step_offsets(a):
    a(f"s_lshl_b32 s{sT0}, s{sStep}, 5")
    a(f"s_add_u32 s{sT0}, s{sT0}, s{sH}")
    a(f"s_lshl_b32 s{sT1}, s{sT0 if 'samekv' not in OPTS else sH}, 12")
    a(f"s_lshl_b32 s{sT2}, s{sW}, 10")
    a(f"s_add_u32 s{sT1}, s{sT1}, s{sT2}")
    a(f"s_add_u32 s{sKM}, s{sT1}, {WS_KM}")
    if 'samex' in OPTS: a(f"s_mov_b32 s{sT0}, s{sH}")
    a(f"s_lshl_b32 s{sT1}, s{sT0}, 13")
    a(f"s_add_u32 s{sT1}, s{sT1}, s{sW2048}")
    a(f"s_add_u32 s{sVX}, s{sT1}, {WS_VX}")
    a(f"s_sub_u32 s{sKX0}, s{sVX}, {WS_VX - WS_KX}")
    a(f"s_lshl_b32 s{sT1}, s{sT0}, 13")
    a(f"s_add_u32 s{sKXb}, s{sT1}, {WS_KX + 32*8192}")
    a(f"s_add_u32 s{sPF}, s{sKXb}, 0")
    a(f"s_add_u32 s{sT2}, s{sKXb}, {WS_VX - WS_KX}")
    a(f"s_cmp_lt_u32 s{sW}, 2")
    a(f"s_cselect_b32 s{sPF}, s{sPF}, s{sT2}")
    a(f"s_and_b32 s{sT2}, s{sW}, 1")
    a(f"s_lshl_b32 s{sT2}, s{sT2}, 12")
    a(f"s_add_u32 s{sPF}, s{sPF}, s{sT2}")
    flag_off(a)
    a(f"s_and_b32 s{sT0}, s{sStep}, 3")
    a(f"s_mul_i32 s{sT0}, s{sT0}, {MSLOT}")
    a(f"s_add_u32 s{sMrd}, s{sT0}, s{sW2560}")
    a(f"s_add_u32 s{sMrd}, s{sMrd}, {WS_M}")
    a(f"s_add_u32 s{sMwr}, s{sT0}, s{sRedM}")
    a(f"s_add_u32 s{sMwr}, s{sMwr}, {WS_M}")
    a(f"s_add_u32 s{sT0}, s{sStep}, 2")
    a(f"s_and_b32 s{sT0}, s{sT0}, 3")
    a(f"s_mul_i32 s{sT0}, s{sT0}, {MSLOT}")
    a(f"s_add_u32 s{sMpo}, s{sT0}, s{sRedM}")
    a(f"s_add_u32 s{sMpo}, s{sMpo}, {WS_M}")

def team_barrier(a, off, sc):
    a.wait_all_vm()
    a("s_barrier")
    lab = a.newlabel("TB")
    a(f"s_lshl_b32 s{sT0}, s{sH}, 2")
    a(f"v_mov_b32 v8, s{sT0}")
    a("v_mov_b32 v9, 1")
    skip = a.newlabel("TBs")
    a(f"s_cmp_lg_u32 s{sW}, 0")
    a(f"s_cbranch_scc1 {skip}")
    a(f"buffer_store_dword v9, v8, s[{S_WS}:{S_WS+3}], 0 offen offset:{off}{sc}")
    a.label(skip)
    a(f"v_lshrrev_b32 v8, 2, v{vL16}")
    a("v_and_b32 v8, 0x7c, v8")
    a.label(lab)
    a(f"buffer_load_dword v9, v8, s[{S_WS}:{S_WS+3}], 0 offen offset:{off} sc1")
    spin(a)
    a("s_waitcnt vmcnt(0)")
    a("v_cmp_eq_u32 vcc, 0, v9")
    a(f"s_cbranch_vccnz {lab}")

STAMP_REGS = [76, 78, 80, 82, 84, 86, 88, 56, 58, 60, 62]
class Step:
    def __init__(self, a, fast, stamp=None, opt=()):
        self.a = a
        self.opt = set(opt)
        self.sc = "" if fast else " sc1"
        self.stamp = stamp
        self.outofline = []
        self.nv1 = 14
        for o in self.opt:
            if o.startswith("nv"): self.nv1 = int(o[2:])
    def ws(self): return f"s[{S_WS}:{S_WS+3}]"
    def btile(self, t): return rtile(R_IDX[t])[0]
    def smf(self, acc, A, B):
        self.a(f"v_smfmac_f32_16x16x64_bf16 {vr(acc,4)}, {vr(A,4)}, {B}, v{vIdx}")
    def ld_s_half(self, t, dst, hf):
        if "noS" in self.opt: return None
        si = S_IDX[t]
        off = (si % 2) * 2048 + hf * 1024
        mod = ""
        for o in self.opt:
            if o.startswith("l1=") and si >= int(o[3:]): mod = " sc1"
            if o.startswith("l1nt=") and si >= int(o[5:]): mod = " nt"
        return self.a.vm(f"buffer_load_dwordx4 {vr(dst+4*hf,4)}, v{vL16}, {self.ws()}, s{sSWb + si//2} offen offset:{off}{mod}")
    def ld_s(self, t, dst):
        self.ld_s_half(t, dst, 0)
        return self.ld_s_half(t, dst, 1)
    def ld_l(self, t, dst, bases, base9=None):
        a = self.a
        if "noL" in self.opt: return None
        x = L_IDX[t]
        if base9 is not None: vb = base9; off = (x - 9) * 8192
        else: vb = bases[x // 8]; off = (x % 8) * 8192
        assert 0 <= off < 65536 - 1024
        a.lg(f"ds_read_b128 {vr(dst,4)}, v{vb} offset:{off}")
        return a.lg(f"ds_read_b128 {vr(dst+4,4)}, v{vb} offset:{off+1024}")

    def pre_poll(self):
        a = self.a
        a(f"v_and_b32 v40, 0x1f0, v{vL16}")
        a(f"v_add_u32 v41, s{sW2560}, v{vL16}")
        a(f"v_add_u32 v42, s{sW2560}, v40")
        for k in list(range(8, 16, 2)) + [76, 78]: a(f"v_mov_b64 v[{k}:{k+1}], 0")
        a(f"v_bfe_u32 v16, v{vL16}, 8, 1")
        a(f"v_lshlrev_b32 v16, 8, v16")
        a(f"v_add_u32 v16, s{sFlagOff}, v16")
        a(f"v_lshlrev_b32 v17, 3, v{vL16}")
        a(f"v_add_u32 v17, s{sPF}, v17")
        a(f"v_cndmask_b32 v{vFl}, v16, v17, s[{sLo32}:{sLo32+1}]")

    def early_a(self):
        self.stok = {}
        self.stok[("q", 0)] = self.ld_s(("q", 0), 44)
        self.stok[("k", 0)] = self.ld_s(("k", 0), 52)


    def m_loads(self):
        a = self.a
        a.vm(f"buffer_load_dwordx4 v[28:31], v{vL16}, {self.ws()}, s{sMrd} offen sc1")
        a.vm(f"buffer_load_dwordx4 v[32:35], v{vL16}, {self.ws()}, s{sMrd} offen offset:1024 sc1")
        return a.vm(f"buffer_load_dwordx4 v[36:39], v40, {self.ws()}, s{sMrd} offen offset:2048 sc1")
    def m_check(self):
        a = self.a
        a("v_max3_u32 v43, v29, v31, v33")
        a("v_max3_u32 v43, v43, v35, v37")
        a("v_max_u32 v43, v43, v39")
        a("v_cmp_eq_u32 vcc, -1, v43")

    def poll_m(self):
        a = self.a
        retry = a.newlabel("PMR"); ok = a.newlabel("PMK")
        tm = self.m_loads()
        if "eh" not in self.opt:
            self.early_a()
            a.wait(tm, force=True)
        else:
            self.stok = {("q", 0): None, ("k", 0): None}
            a.wait_all_vm()
        self.m_check()
        a(f"s_cbranch_vccnz {retry}")
        a.label(ok)
        o = Asm(); o._lab = a._lab + 1000
        o.label(retry)
        st = Step(o, True, None, self.opt); st.sc = self.sc
        st.m_loads(); spin(o); o.wait_all_vm(); st.m_check()
        o(f"s_cbranch_vccnz {retry}")
        o(f"s_branch {ok}")
        self.outofline += o.lines
        self.stamp_at(1)
        if self.stamp: a(f"s_mov_b32 s64, s{sSpin}")
        a.lg(f"ds_write_b128 v41, v[28:31] offset:{LDS_M}")
        a.lg(f"ds_write_b128 v41, v[32:35] offset:{LDS_M+1024}")
        a.lg(f"ds_write_b128 v42, v[36:39] offset:{LDS_M+2048}")

    def stamp_at(self, i, red=False):
        if red and "rst" not in self.opt: return
        if "rst" in self.opt and i in (3, 4, 5) and not red: return
        if self.stamp: self.a(f"s_memtime s[{STAMP_REGS[i]}:{STAMP_REGS[i]+1}]")
    def dump_stamps(self):
        if not self.stamp: return
        a = self.a
        a("s_waitcnt lgkmcnt(0)")
        for i in range(11):
            r = STAMP_REGS[i]
            a(f"v_writelane_b32 v43, s{r}, {i}")
        for i, r in enumerate((64, 65, 68)): a(f"v_writelane_b32 v43, s{r}, {11+i}")
        a(f"s_lshl_b32 s{sT0}, s{sH}, 2")
        a(f"s_add_u32 s{sT0}, s{sT0}, s{sW}")
        a(f"s_lshl_b32 s{sT0}, s{sT0}, 12")
        a(f"s_lshl_b32 s{sT1}, s{sStep}, 6")
        a(f"s_add_u32 s{sT0}, s{sT0}, s{sT1}")
        a(f"s_add_u32 s{sT0}, s{sT0}, {WS_STAMP}")
        a(f"v_lshrrev_b32 v42, 2, v{vL16}")
        a("s_mov_b64 s[48:49], exec")
        a("s_mov_b64 exec, 0x3fff")
        a(f"buffer_store_dword v43, v42, {self.ws()}, s{sT0} offen")
        a("s_mov_b64 exec, s[48:49]")

    def body(self, entry_label):
        a = self.a
        self.stamp_at(0)
        if "rt" in self.opt:
            a("s_memrealtime s[88:89]"); a("s_memtime s[86:87]"); a("s_waitcnt lgkmcnt(0)")
            a(f"v_mov_b32 v8, s88"); a(f"v_mov_b32 v9, s86")
            a(f"s_lshl_b32 s89, s{sH}, 2"); a(f"s_add_u32 s89, s89, s{sW}"); a("s_lshl_b32 s89, s89, 9")
            a(f"s_lshl_b32 s88, s{sStep}, 3"); a("s_add_u32 s89, s89, s88"); a(f"s_add_u32 s89, s89, {WS_STAMP + 0x20000}")
            a("v_mov_b32 v10, 0")
            a(f"buffer_store_dwordx2 v[8:9], v10, {self.ws()}, s89 offen")
        self.pre_poll()
        self.poll_m()
        a.label(entry_label)
        stok = self.stok
        sq = {("q",0):44, ("k",0):52, ("q",6):60, ("k",7):68, ("q",15):44, ("k",16):52, ("q",18):60, ("k",19):68}
        if "q6late" not in self.opt: stok[("q",6)] = self.ld_s(("q",6), 60)
        a.wait_all_lg()
        a("s_barrier")
        self.stamp_at(2)
        La = [16, 20, 24]; Lb = [28, 36]
        accV = 76
        NV1 = self.nv1
        atok = {}
        def rdA(j): atok[j] = a.lg(f"ds_read_b128 {vr(La[j%3],4)}, v{vAoff} offset:{LDS_M + 512*j}")
        vbuf = lambda jj: La[(jj - NV1 + 20) % 3]
        def rdAv(jj):
            if jj < 20: atok[("v", jj)] = a.lg(f"ds_read_b128 {vr(vbuf(jj),4)}, v{vAoff} offset:{LDS_M + 512*jj}")
        ltiles = [t for t in L_TILES if t[0] != "o"]
        ltok = {}
        def rdL(x):
            if x < len(ltiles): ltok[ltiles[x]] = self.ld_l(ltiles[x], Lb[x % 2], [vLb])
        rdA(0); rdA(1); rdL(0); rdL(1)
        late = {0: [(("k",7),0)], 1: [(("k",7),1)], 3: [(("q",15),0)], 4: [(("q",15),1)],
                5: [(("k",16),0)], 7: [(("k",16),1)], 8: [(("q",18),0)], 9: [(("q",18),1)],
                10: [(("k",19),0)], 11: [(("k",19),1)]}
        dma = {}
        if "q6late" in self.opt:
            late = {0: [(("q",6),0), (("q",6),1)], 1: [(("k",7),0)], 2: [(("k",7),1)], 3: [(("q",15),0)], 4: [(("q",15),1)],
                    5: [(("k",16),0)], 7: [(("k",16),1)], 8: [(("q",18),0)], 9: [(("q",18),1)], 10: [(("k",19),0)], 11: [(("k",19),1)]}
        nl = 0
        for j in range(20):
            waits = [atok[j]]
            for mat in "qk":
                t = (mat, j)
                if t in L_IDX: waits.append(ltok[t])
                if t in S_IDX: waits.append(stok[t])
            a.wait(*waits)
            tq_, tk_ = ("q", j), ("k", j)
            self.smf(8, La[j % 3], vr(sq[tq_], 8) if tq_ in S_IDX else self.btile(tq_))
            if j + 2 < 20: rdA(j + 2)
            else: rdAv(NV1 + j + 2 - 20)
            for t, hf in late.get(j, []):
                x = self.ld_s_half(t, sq[t], hf)
                if hf == 1: stok[t] = x
            if j in (13, 14) and "noKX" not in self.opt:
                if j == 13: a(f"s_add_u32 m0, s{sW2048}, {LDS_KX}")
                dma[j] = a.vm(f"buffer_load_dwordx4 v{vL16}, {self.ws()}, s{sKX0} offen offset:{(j-13)*1024} sc1{NT} lds")
            if tk_ in L_IDX: B = vr(Lb[nl % 2], 8)
            elif tk_ in S_IDX: B = vr(sq[tk_], 8)
            else: B = self.btile(tk_)
            self.smf(12, La[j % 3], B)
            if tk_ in L_IDX:
                nl += 1; rdL(nl + 1)
            if j < NV1: self.smf(accV, La[j % 3], self.btile(("v", j)))
        self.stamp_at(3)
        vt = {"n": NV1}
        svt = {}
        def vm_step(lim=19):
            j = vt["n"]
            if j >= lim: return
            t = ("v", j)
            w = [atok[("v", j)]]
            if t in S_IDX: w.append(svt[t]); B = vr(8, 8)
            else: B = self.btile(t)
            a.wait(*w)
            self.smf(accV, vbuf(j), B)
            rdAv(j + 2)
            vt["n"] += 1
        OB = [44, 60]
        def rd_kx(m, tile):
            return a.lg(f"ds_read_b128 {vr(OB[m%2]+8+4*tile,4)}, v{vL16} offset:{LDS_KX + (4*tile+m)*1024}")
        def rd_t(m, which):
            b = OB[m % 2] + 4 * which; base = (LDS_TQ, LDS_TK)[which] + m * 512
            a.lg(f"ds_read_b64_tr_b16 {vr(b,2)}, v{vTr} offset:{base}")
            return a.lg(f"ds_read_b64_tr_b16 {vr(b+2,2)}, v{vTr} offset:{base + 64}")
        kx = {}
        vm_step(); vm_step()
        a("v_cvt_pk_bf16_f32 v42, v8, v9")
        a("v_cvt_pk_bf16_f32 v43, v10, v11")
        tq = a.lg(f"ds_write_b64 v{vTw}, v[42:43] offset:{LDS_TQ}")
        a("v_cvt_pk_bf16_f32 v40, v12, v13")
        a("v_cvt_pk_bf16_f32 v41, v14, v15")
        tk = a.lg(f"ds_write_b64 v{vTw}, v[40:41] offset:{LDS_TK}")
        svt[("v", 19)] = self.ld_s(("v", 19), 8)
        vm_step(); vm_step()
        a.wait(tk, dma.get(14))
        a("s_barrier")
        self.stamp_at(4)
        tt = {}
        tt[(0,0)] = rd_t(0, 0); kx[(0,0)] = rd_kx(0, 0); kx[(0,1)] = rd_kx(0, 1); tt[(0,1)] = rd_t(0, 1)
        tt[(1,0)] = rd_t(1, 0); kx[(1,0)] = rd_kx(1, 0); kx[(1,1)] = rd_kx(1, 1); tt[(1,1)] = rd_t(1, 1)
        vm_step(); vm_step()
        X0, X1, MM = 28, 32, 36
        def sc(m, which):
            b = OB[m % 2]
            D = (X0, X1, MM)[which]; A = (b + 8, b + 12, b + 4)[which]
            need = [tt[(m, 0)], kx[(m, which)] if which < 2 else tt[(m, 1)]]
            a.wait(*need)
            a(f"v_mfma_f32_16x16x32_bf16 {vr(D,4)}, {vr(A,4)}, {vr(b,4)}, {'0' if m == 0 else vr(D,4)}")
        VX0, VX1 = 44, 48
        tvx1 = None
        for m in range(4):
            if m == 3:
                while vt["n"] < 20: vm_step(20)
            sc(m, 0)
            if m < 2: kx[(m+2, 0)] = rd_kx(m + 2, 0)
            if m >= 1 and m <= 2: tt[(m+1, 1)] = rd_t(m + 1, 1)
            sc(m, 1)
            if m < 2: kx[(m+2, 1)] = rd_kx(m + 2, 1)
            sc(m, 2)
            if m < 2: tt[(m+2, 0)] = rd_t(m + 2, 0)
            if m == 2 and "noVX" not in self.opt:
                a.vm(f"buffer_load_dwordx4 {vr(VX0,4)}, v{vL16}, {self.ws()}, s{sVX} offen sc1{NT}")
                tvx1 = a.vm(f"buffer_load_dwordx4 {vr(VX1,4)}, v{vL16}, {self.ws()}, s{sVX} offen offset:1024 sc1{NT}")
        a("v_cvt_pk_bf16_f32 v42, v76, v77")
        a("v_cvt_pk_bf16_f32 v43, v78, v79")
        self.pf_tok = None
        if "noPF" not in self.opt:
            self.pf_tok = a.vm(f"buffer_load_dword v{vFl}, v{vFl}, {self.ws()}, 0 offen sc1")
        else: a(f"v_mov_b32 v{vFl}, 1000")
        if "noKV" not in self.opt:
            a.vm(f"buffer_store_dwordx4 v[40:43], v{vL16}, {self.ws()}, s{sKM} offen sc1")
        nf = a.newlabel("NF")
        self.stamp_at(5)
        otiles = [t for t in L_TILES if t[0] == "o"]
        slots = [52, 60, 68, 44]
        a(f"v_add_u32 v24, 0x10000, v{vLb}")
        lt = {}
        for k in range(3): lt[otiles[k]] = self.ld_l(otiles[k], slots[k], [vLb, 24])
        a(f"v_cndmask_b32 v76, 0, v42, s[{sLo32}:{sLo32+1}]")
        a(f"v_cndmask_b32 v77, 0, v43, s[{sLo32}:{sLo32+1}]")
        a(f"v_cndmask_b32 v78, 0, v42, s[{sHi32}:{sHi32+1}]")
        a(f"v_cndmask_b32 v79, 0, v43, s[{sHi32}:{sHi32+1}]")
        m_, t_ = 26, 27
        a(f"v_max3_f32 v{m_}, v28, v29, v30")
        a(f"v_max3_f32 v{t_}, v31, v32, v33")
        a(f"v_max3_f32 v{m_}, v{m_}, v34, v35")
        a(f"v_max3_f32 v{t_}, v{t_}, v36, v37")
        a(f"v_max3_f32 v{m_}, v{m_}, v38, v39")
        a(f"v_max_f32 v{m_}, v{m_}, v{t_}")
        a(f"v_mov_b32 v{t_}, v{m_}")
        a(f"v_permlane32_swap_b32 v{m_}, v{t_}")
        a(f"v_max_f32 v{m_}, v{m_}, v{t_}")
        a(f"v_mov_b32 v{t_}, v{m_}")
        a(f"v_permlane16_swap_b32 v{m_}, v{t_}")
        a(f"v_max_f32 v{m_}, v{m_}, v{t_}")
        a(f"v_mul_f32 v{m_}, s{sC}, v{m_}")
        if "nopk" not in self.opt:
            for r in range(28, 40, 2):
                a(f"v_pk_fma_f32 v[{r}:{r+1}], v[{r}:{r+1}], s[{sC}:{sC+1}], v[{m_}:{m_+1}] op_sel_hi:[1,0,0] neg_lo:[0,0,1] neg_hi:[0,0,1]")
        else:
            for r in range(28, 40): a(f"v_fma_f32 v{r}, v{r}, s{sC}, -v{m_}")
        for r in range(28, 40): a(f"v_exp_f32 v{r}, v{r}")
        a("v_cvt_pk_bf16_f32 v28, v28, v29")
        a("v_cvt_pk_bf16_f32 v29, v30, v31")
        a("v_cvt_pk_bf16_f32 v30, v32, v33")
        a("v_cvt_pk_bf16_f32 v31, v34, v35")
        a("v_cvt_pk_bf16_f32 v36, v36, v37")
        a("v_cvt_pk_bf16_f32 v37, v38, v39")
        a(f"s_cmp_eq_u32 s{sStep}, {NSEG-1}")
        a(f"s_cbranch_scc1 {self.exit_label}")
        self.stamp_at(6)
        O0, O1 = 32, 16
        a.wait(tvx1)
        a(f"v_mfma_f32_16x16x32_bf16 {vr(O0,4)}, {vr(VX0,4)}, v[28:31], 0")
        a(f"v_dot2_f32_bf16 v40, v36, s{sHalf}, 0")
        a(f"v_dot2_f32_bf16 v41, v28, s{sOnes}, 0")
        a(f"v_mfma_f32_16x16x32_bf16 {vr(O1,4)}, {vr(VX1,4)}, v[28:31], 0")
        a(f"v_dot2_f32_bf16 v40, v37, s{sHalf}, v40")
        a(f"v_dot2_f32_bf16 v41, v29, s{sOnes}, v41")
        a(f"v_mfma_f32_16x16x16_bf16 {vr(O0,4)}, v[76:77], v[36:37], {vr(O0,4)}")
        a(f"v_dot2_f32_bf16 v40, v30, s{sOnes}, v40")
        a(f"v_dot2_f32_bf16 v41, v31, s{sOnes}, v41")
        a(f"v_mfma_f32_16x16x16_bf16 {vr(O1,4)}, v[78:79], v[36:37], {vr(O1,4)}")
        lt[otiles[3]] = self.ld_l(otiles[3], slots[3], [vLb, 24])
        a("v_add_f32 v40, v40, v41")
        a("v_mov_b32 v41, v40")
        a("v_permlane32_swap_b32 v40, v41")
        a("v_add_f32 v40, v40, v41")
        a("v_mov_b32 v41, v40")
        a("v_permlane16_swap_b32 v40, v41")
        a("v_add_f32 v40, v40, v41")
        a("v_rcp_f32 v40, v40")
        a(f"v_add_u32 v79, s{sW512}, v{vAoff}")
        for r in (O0, O0+2, O1, O1+2):
            a(f"v_pk_mul_f32 v[{r}:{r+1}], v[{r}:{r+1}], v[40:41] op_sel_hi:[1,0]")
        a(f"v_cvt_pk_bf16_f32 v32, v32, v33")
        a(f"v_cvt_pk_bf16_f32 v33, v34, v35")
        a(f"v_cvt_pk_bf16_f32 v34, v16, v17")
        a(f"v_cvt_pk_bf16_f32 v35, v18, v19")
        two = a.lg(f"ds_write_b128 v79, v[32:35] offset:{LDS_TO}")
        vLo, vLone = 76, 77
        for k in range(8, 28, 2): a(f"v_mov_b64 v[{k}:{k+1}], 0")
        a(f"v_add_u32 v{vLo}, {9*8192}, v{vLb}")
        lone_off(a, vLone, 78)
        a.wait(two)
        a("s_barrier")
        self.stamp_at(7)
        AO = [28, 32, 36, 40]
        aot = [a.lg(f"ds_read_b128 {vr(AO[m],4)}, v{vAoff} offset:{LDS_TO + 512*m}") for m in range(4)]
        acc = [8, 12, 16, 20, 24]
        def pst(b, soff, lone=False):
            if not lone:
                return [f"v_cvt_pk_bf16_f32 v{b}, v{b}, v{b+1}", f"v_cvt_pk_bf16_f32 v{b+1}, v{b+2}, v{b+3}",
                        f"v_cvt_pk_bf16_f32 v{b+2}, v{b+4}, v{b+5}", f"v_cvt_pk_bf16_f32 v{b+3}, v{b+6}, v{b+7}",
                        f"v_bfi_b32 v{b}, 1, s{sTag}, v{b}", f"v_bfi_b32 v{b+2}, 1, s{sTag}, v{b+2}",
                        f"@buffer_store_dwordx4 {vr(b,4)}, v{vPst}, {self.ws()}, s{soff} offen{self.sc}"]
            return [f"v_cvt_pk_bf16_f32 v{b}, v{b}, v{b+1}", f"v_cvt_pk_bf16_f32 v{b+1}, v{b+2}, v{b+3}",
                    f"v_bfi_b32 v{b}, 1, s{sTag}, v{b}",
                    f"@buffer_store_dwordx2 {vr(b,2)}, v{vLone}, {self.ws()}, s{soff} offen{self.sc}"]
        fill = []
        def emit(n):
            for _ in range(n):
                if not fill: return
                x = fill.pop(0)
                if x.startswith("@"): a.vm(x[1:])
                else: a(x)
        nlo = 0
        for n in range(20):
            p, m = divmod(n, 4)
            t = ("o", p, m)
            w = [aot[m]]
            if t in L_IDX: w.append(lt[t]); B = vr(slots[nlo % 4], 8)
            else: B = self.btile(t)
            a.wait(*w)
            self.smf(acc[p], AO[m], B)
            used = 0
            if t in L_IDX:
                nlo += 1
                if nlo + 3 < len(otiles):
                    lt[otiles[nlo+3]] = self.ld_l(otiles[nlo+3], slots[(nlo+3) % 4], None, base9=vLo); used = 2
            if n == 9: fill += pst(8, sP0)
            if n == 17: fill += pst(16, sP1)
            emit(2 - used)
        emit(99)
        fill += pst(24, sPl, lone=True); emit(99)
        self.stamp_at(8)
        if self.stamp: a(f"s_mov_b32 s65, s{sSpin}")
        if "eh" in self.opt: self.early_a()
        nf = a.newlabel("NF")
        a(f"s_cmp_lg_u32 s{sW}, {3 if 'noFL' not in self.opt else 7}")
        a(f"s_cbranch_scc1 {nf}")
        a(f"s_lshl_b32 s{sT0}, s{sH}, 7")
        a(f"s_add_u32 s{sT0}, s{sT0}, {FL_M}")
        a(f"v_mov_b32 v28, s{sStep}")
        a(f"v_mov_b32 v29, 0")
        a(f"buffer_store_dword v28, v29, {self.ws()}, s{sT0} offen sc1")
        a.label(nf)
        a(f"s_add_u32 s{sStep}, s{sStep}, 1")
        step_offsets(a)
        nored = a.newlabel("NR")
        a(f"s_cmp_eq_u32 s{sIsRed}, 0")
        a(f"s_cbranch_scc1 {nored}")
        self.reducer()
        a.label(nored)
        a(f"s_waitcnt vmcnt({3 if 'noKV' in self.opt else 4})")
        a(f"v_readlane_b32 s{sFlK}, v{vFl}, 32")
        a(f"v_readlane_b32 s{sFlV}, v{vFl}, 48")
        self.check_flag()
        self.stamp_at(9)
        if self.stamp: a(f"s_mov_b32 s68, s{sSpin}")
        a("s_barrier")
        self.stamp_at(10)
        self.dump_stamps()
        a(f"s_xor_b32 s{sTag}, s{sTag}, 1")

    def reducer(self):
        a = self.a
        SEL, ACC, MO, TG, OUT, PO = 40, 60, 64, 65, 66, 68
        a(f"s_add_u32 s{sT1}, s{sPrd}, 4096")
        for o in self.opt:
            if o.startswith("rd"):
                for _ in range(int(o[2:])): a("s_nop 15")
        def setup():
            a(f"v_mov_b32 v70, 0x3f80")
            a(f"v_mov_b32 v71, 0x3f800000")
            a(f"v_bfe_u32 v{TG}, v{vL16}, 4, 1")
            a(f"v_cmp_eq_u32 vcc, 1, v{TG}")
            a(f"v_cndmask_b32 v70, v70, v71, vcc")
            for R in range(4): a(f"v_cndmask_b32 v{SEL+R}, 0, v70, s[{sSel+2*R}:{sSel+2*R+1}]")
            red_moff(a, MO, 70)
            a(f"v_mov_b32 v{PO}, -1"); a(f"v_mov_b32 v{PO+1}, -1")
        def polls():
            toks = []
            for k in range(8):
                sb = sPrd if k < 4 else sT1
                toks.append(a.vm(f"buffer_load_dwordx4 {vr(8+4*k,4)}, v{vL16}, {self.ws()}, s{sb} offen offset:{(k%4)*1024} sc1"))
            return toks
        def reduce(toks, tag):
            a(f"v_mov_b32 v{TG}, {0 if tag == 0 else -1}")
            for k in range(8):
                a.wait(toks[k], force=True)
                if k == 0: self.stamp_at(4, True)
                if k == 7: self.stamp_at(5, True)
                b = 8 + 4 * k
                if tag == 0: a(f"v_or3_b32 v{TG}, v{TG}, v{b}, v{b+2}")
                else:
                    a(f"v_and_b32 v{TG}, v{TG}, v{b}"); a(f"v_and_b32 v{TG}, v{TG}, v{b+2}")
                a(f"v_mfma_f32_16x16x32_bf16 {vr(ACC,4)}, {vr(b,4)}, {vr(SEL,4)}, {'0' if k == 0 else vr(ACC,4)}")
            a(f"v_and_b32 v{TG}, 1, v{TG}")
            a(f"v_cmp_ne_u32 vcc, {tag}, v{TG}")
        self.stamp_at(3, True)
        if "postsetup" not in self.opt: setup()
        toks = polls()
        if "postsetup" in self.opt: setup()
        odd = a.newlabel("RO"); fin = a.newlabel("RF")
        a(f"s_cmp_eq_u32 s{sTag}, 1")
        a(f"s_cbranch_scc1 {odd}")
        base = a.state()
        for tag in (0, 1):
            a.set_state(base)
            if tag == 1: a.label(odd)
            retry = a.newlabel("RR"); ok = a.newlabel("RK")
            reduce(toks, tag)
            a(f"s_cbranch_vccnz {retry}")
            a.label(ok)
            if tag == 0: a(f"s_branch {fin}")
            o = Asm(); o._lab = a._lab + 2000 + tag
            o.label(retry)
            sv = self.a; self.a = o; a_ = a; a = o
            self.stamp_at(3, True)
            t2 = polls(); spin(o); reduce(t2, tag)
            o(f"s_cbranch_vccnz {retry}")
            o(f"s_branch {ok}")
            a = a_; self.a = sv
            self.outofline += o.lines
        a.label(fin)
        a(f"v_cvt_pk_bf16_f32 v{OUT}, v{ACC}, v{ACC+1}")
        a(f"v_cvt_pk_bf16_f32 v{OUT+1}, v{ACC+2}, v{ACC+3}")
        a(f"v_min_u32 v{OUT+1}, s{sFE}, v{OUT+1}")
        a.vm(f"buffer_store_dwordx2 v[{OUT}:{OUT+1}], v{MO}, {self.ws()}, s{sMwr} offen{self.sc}")
        a.vm(f"buffer_store_dwordx2 v[{PO}:{PO+1}], v{MO}, {self.ws()}, s{sMpo} offen{self.sc}")

    def check_flag(self):
        a = self.a
        ok = a.newlabel("FK"); lab = a.newlabel("FS")
        a.label(lab)
        a(f"s_min_u32 s{sT0}, s{sFlK}, s{sFlV}")
        a(f"s_and_b32 s{sT1}, s{sStep}, 15")
        a(f"s_cmp_gt_u32 s{sT0}, s{sT1}")
        a(f"s_cbranch_scc1 {ok}")
        a(f"v_bfe_u32 v40, v{vL16}, 8, 1")
        a(f"v_lshlrev_b32 v40, 8, v40")
        a(f"v_add_u32 v40, s{sFlagCur}, v40")
        a(f"buffer_load_dword v41, v40, {self.ws()}, 0 offen sc1")
        spin(a)
        a("s_waitcnt vmcnt(0)")
        a(f"v_readlane_b32 s{sFlK}, v41, 0")
        a(f"v_readlane_b32 s{sFlV}, v41, 16")
        a(f"s_branch {lab}")
        a.label(ok)


def chain_main(a, fast=True, name="C", stamp=False, timing=False, opt=(), confirm=None):
    global PF_DIST, NT, OPTS, KXNT, WMOD
    WMOD = '' if 'wplain' in opt else ' nt'
    KXNT = '' if 'kxplain' in opt else ' nt'
    OPTS = set(opt)
    PF_DIST = 2 if "pf2" in opt else 1
    NT = "" if "xplain" in opt else " nt"
    def rts(i):
        if "rt" in opt:
            a("s_memrealtime s[88:89]"); a("s_waitcnt lgkmcnt(0)")
            a("s_sub_u32 s88, s88, s98")
            a("v_mov_b32 v8, s88"); a(f"s_lshl_b32 s89, s{sH}, 6"); a(f"s_add_u32 s89, s89, {WS_STAMP + 0x10000 + 4*i}")
            a("v_mov_b32 v9, s89")
            a(f"buffer_store_dword v8, v9, s[{S_WS}:{S_WS+3}], 0 offen")
    rts(0)
    scalar_consts(a)
    lane_consts(a)
    a(f"v_add_u32 v{vLb}, s{sLb}, v{vL16}")
    st = {}
    def hook(k):
        if k == 1: st["m0"] = mem0_loads(a)
        if k == 12: mem0_writes(a, st["m0"])
        if k == 50:
            if confirm: confirm(a)
            init_exchange(a, "" if fast else " sc1")
    rts(1)
    weights_prologue(a, hook)
    rts(2)
    team_barrier(a, FL_TEAM, "" if fast else " sc1")
    rts(3)
    a(f"s_mov_b32 s{sStep}, 0")
    a(f"s_mov_b32 s{sTag}, 0")
    a(f"s_lshr_b32 s{sT1}, s{sH}, 1")
    a(f"s_lshl_b32 s{sT1}, s{sT1}, 2")
    a(f"s_add_u32 s{sFlagOff}, s{sT1}, {FL_KV}")
    lab = a.newlabel("W0")
    a(f"v_bfe_u32 v42, v{vL16}, 8, 1")
    a(f"v_lshlrev_b32 v42, 8, v42")
    a(f"v_add_u32 v42, s{sFlagOff}, v42")
    a.label(lab)
    a(f"buffer_load_dword v{vFl}, v42, s[{S_WS}:{S_WS+3}], 0 offen sc1")
    spin(a)
    a("s_waitcnt vmcnt(0)")
    a(f"v_cmp_eq_u32 vcc, 0, v{vFl}")
    a(f"s_cbranch_vccnz {lab}")
    step_offsets(a)
    rts(4)
    st0 = Step(a, fast, None, opt)
    st0.pre_poll()
    st0.early_a()
    a.wait_all()
    entry = f"{name}_ENTRY"; top = f"{name}_TOP"; ex = f"{name}_EXIT"
    if timing:
        a("s_memtime s[98:99]"); a("s_waitcnt lgkmcnt(0)")
    a(f"s_branch {entry}")
    a(".p2align 6")
    for o in opt:
        if o.startswith("pad"):
            for _ in range(int(o[3:])): a("s_nop 0")
    a.label(top)
    st = Step(a, fast, stamp, opt)
    st.exit_label = ex
    st.body(entry)
    a(f"s_branch {top}")
    a.lines += st.outofline
    a.label(ex)
    rts(5)
    a.wait_all()
    a("s_barrier")
    a(f"s_lshl_b32 s{sT0}, s{sH}, 7")
    a(f"s_add_u32 s{sT0}, s{sT0}, {FL_M}")
    a(f"v_mov_b32 v43, {NSEG}")
    a(f"v_mov_b32 v40, 0")
    a(f"buffer_store_dword v43, v40, s[{S_WS}:{S_WS+3}], s{sT0} offen sc1")
    a("s_waitcnt vmcnt(0)")
```

```python
from asmlib import *
from layout import *
import struct, math

S_WS = 4
S_A = 8
S_B = 16
sW = 13
sSpin = 74
sT0, sT1, sT2, sT3 = 47, 48, 49, 50
pX, pWq, pWk, pWv, pWo, pW1, pB1, pW2, pOut = 56, 58, 60, 62, 64, 66, 68, 70, 72
WS = f"s[{S_WS}:{S_WS+3}]"
def vr(b, n): return f"v[{b}:{b+n-1}]"
def ar(b, n): return f"a[{b}:{b+n-1}]"
def fbits(x): return struct.unpack("<I", struct.pack("<f", x))[0]
def srd(a, s, lo, nbytes):
    a(f"s_mov_b32 s{s}, s{lo}")
    a(f"s_and_b32 s{s+1}, s{lo+1}, 0xffff")
    a(f"s_mov_b32 s{s+2}, {nbytes}")
    a(f"s_mov_b32 s{s+3}, 0x20000")
SLEEP = 4
WOPT = set()
def spin(a):
    a(f"s_sub_u32 s{sSpin}, s{sSpin}, 1")
    a("s_cbranch_scc1 L_TIMEOUT")
def backoff(a, lab):
    ok = a.newlabel("BK")
    a(f"s_cbranch_vccz {ok}")
    if SLEEP: a(f"s_sleep {SLEEP}")
    a(f"s_branch {lab}")
    a.label(ok)
def poll_ge(a, soff_reg_or_imm, target_sreg, vt=8, label="PG"):
    lab = a.newlabel(label)
    a(f"v_mov_b32 v{vt}, {soff_reg_or_imm}")
    a.label(lab)
    a(f"buffer_load_dword v{vt+1}, v{vt}, {WS}, 0 offen sc1")
    spin(a)
    a("s_waitcnt vmcnt(0)")
    a(f"v_cmp_gt_u32 vcc, {target_sreg}, v{vt+1}")
    backoff(a, lab)
def atomic_inc(a, off, vt=8, by_wave0=True):
    a(f"v_mov_b32 v{vt}, {off}")
    a(f"v_mov_b32 v{vt+1}, 1")
    a("s_mov_b64 exec, 1")
    a(f"buffer_atomic_add v{vt+1}, v{vt}, {WS}, 0 offen")
    a("s_mov_b64 exec, -1")

def ln_role(a, sSeg, confirm=None):
    a("; ==== LayerNorm")
    srd(a, S_A, pX, S * D * 2)
    a("v_and_b32 v1, 63, v0")
    a("v_lshrrev_b32 v2, 3, v1")
    a("v_and_b32 v3, 7, v1")
    a(f"s_lshl_b32 s{sT0}, s{sW}, 3")
    a(f"v_add_u32 v4, s{sT0}, v2")
    a(f"s_movk_i32 s{sT1}, 1280")
    a(f"v_mul_lo_u32 v5, v4, s{sT1}")
    a("v_lshl_add_u32 v5, v3, 4, v5")
    a(f"s_mul_i32 s{sT2}, s{sSeg}, 40960")
    toks = [a.vm(f"buffer_load_dwordx4 {vr(16+4*i,4)}, v5, s[{S_A}:{S_A+3}], s{sT2} offen offset:{128*i}") for i in range(10)]
    a("v_lshrrev_b32 v6, 1, v3")
    a("v_lshlrev_b32 v6, 10, v6")
    a("v_and_b32 v7, 1, v3")
    a("v_lshl_add_u32 v6, v7, 9, v6")
    a("v_lshl_add_u32 v6, v4, 4, v6")
    X = 64
    for i in range(10):
        a.wait(toks[i])
        for r in range(4):
            a(f"v_lshlrev_b32 v{X+8*i+2*r}, 16, v{16+4*i+r}")
            a(f"v_and_b32 v{X+8*i+2*r+1}, 0xffff0000, v{16+4*i+r}")
    def reduce8(r):
        a(f"v_add_f32_dpp v{r}, v{r}, v{r} quad_perm:[1,0,3,2] row_mask:0xf bank_mask:0xf")
        a(f"v_add_f32_dpp v{r}, v{r}, v{r} quad_perm:[2,3,0,1] row_mask:0xf bank_mask:0xf")
        a(f"v_add_f32_dpp v{r}, v{r}, v{r} row_half_mirror row_mask:0xf bank_mask:0xf")
    for k in range(4): a(f"v_add_f32 v{8+k}, v{X+k}, v{X+4+k}")
    for j in range(8, 80): a(f"v_add_f32 v{8+j%4}, v{8+j%4}, v{X+j}")
    a("v_add_f32 v8, v8, v9"); a("v_add_f32 v10, v10, v11"); a("v_add_f32 v8, v8, v10")
    reduce8(8)
    a(f"v_mul_f32 v8, {fbits(1.0/640):#x}, v8")
    for k in range(4): a(f"v_mov_b32 v{9+k}, 0")
    for j in range(80):
        a(f"v_sub_f32 v13, v{X+j}, v8")
        a(f"v_fmac_f32 v{9+j%4}, v13, v13")
    a("v_add_f32 v9, v9, v10"); a("v_add_f32 v11, v11, v12"); a("v_add_f32 v9, v9, v11")
    reduce8(9)
    a(f"v_mul_f32 v9, {fbits(1.0/640):#x}, v9")
    def rb(r):
        a(f"v_cvt_pk_bf16_f32 v{r}, v{r}, v{r}")
        a(f"v_and_b32 v{r}, 0xffff0000, v{r}")
    rb(8); rb(9)
    a(f"v_add_f32 v9, {fbits(1e-5):#x}, v9"); rb(9)
    a("v_sqrt_f32 v9, v9"); rb(9)
    a("v_rcp_f32 v10, v9")
    a("v_fma_f32 v11, -v9, v10, 1.0")
    a("v_fma_f32 v10, v11, v10, v10")
    if confirm: confirm(a)
    for i in range(10):
        for r in range(4):
            x0, x1 = X + 8*i + 2*r, X + 8*i + 2*r + 1
            d = 16 + 4*i + r
            a(f"v_sub_f32 v{x0}, v{x0}, v8")
            a(f"v_sub_f32 v{x1}, v{x1}, v8")
            a(f"v_cvt_pk_bf16_f32 v{d}, v{x0}, v{x1}")
            a(f"v_lshlrev_b32 v{x0}, 16, v{d}")
            a(f"v_and_b32 v{x1}, 0xffff0000, v{d}")
            a(f"v_mul_f32 v{x0}, v{x0}, v10")
            a(f"v_mul_f32 v{x1}, v{x1}, v10")
            a(f"v_cvt_pk_bf16_f32 v{d}, v{x0}, v{x1}")
        a(f"s_add_u32 s{sT3}, s{sT2}, {WS_XN + 4096*i}")
        a.vm(f"buffer_store_dwordx4 {vr(16+4*i,4)}, v6, {WS}, s{sT3} offen sc1")
    a.wait_all_vm()
    a("s_barrier")
    sk = a.newlabel("LNS")
    a(f"s_cmp_lg_u32 s{sW}, 0"); a(f"s_cbranch_scc1 {sk}")
    atomic_inc(a, WS_FLAGS + FL_LN)
    a.label(sk)

sBlk, sSplit, sCol, sStride, sSeg, sOutB, sFlag = 20, 21, 22, 23, 24, 25, 26
sRow, sW2048, sN, sDma = 27, 28, 29, 30
vL16 = 1
def wtile(kk, T):
    if kk < 32: return ar(8*kk + 4*T, 4)
    return vr(192 + 8*(kk-32) + 4*T, 4)
def wtile_base(kk, T):
    return ("a", 8*kk + 4*T) if kk < 32 else ("v", 192 + 8*(kk-32) + 4*T)

def w1_weights(a, perm_sreg):
    a("; ---- projection weights")
    a("v_and_b32 v2, 63, v0")
    a(f"v_lshlrev_b32 v{vL16}, 4, v2")
    a("v_lshrrev_b32 v3, 5, v2")
    a(f"v_mul_lo_u32 v4, v3, s{sStride}")
    a("v_and_b32 v3, 31, v2")
    a("v_lshl_add_u32 v4, v3, 4, v4")
    a("v_lshrrev_b32 v5, 4, v2")
    a("v_and_b32 v6, 1, v5")
    a("v_lshrrev_b32 v5, 1, v5")
    a("v_bfe_u32 v7, v2, 2, 2")
    a("v_lshl_add_u32 v7, v5, 3, v7")
    a("v_lshlrev_b32 v7, 9, v7")
    a("v_and_b32 v8, 3, v2")
    a("v_lshl_add_u32 v8, v6, 2, v8")
    a("v_lshlrev_b32 v9, 2, v8")
    a("v_lshrrev_b32 v10, 2, v8"); a("v_lshlrev_b32 v10, 4, v10")
    a("v_and_b32 v11, 1, v8"); a("v_lshl_add_u32 v10, v11, 3, v10")
    a("v_bfe_u32 v11, v8, 1, 1"); a("v_lshl_add_u32 v10, v11, 2, v10")
    a(f"s_cmp_lg_u32 s{perm_sreg}, 0")
    a("s_cselect_b64 vcc, -1, 0")
    a("v_cndmask_b32 v9, v9, v10, vcc")
    a("v_lshl_add_u32 v7, v9, 1, v7")
    a(f"s_lshl_b32 s{sT0}, s{sW}, 7")
    a(f"v_add_u32 v7, s{sT0}, v7")
    a(f"s_lshl_b32 s{sW2048}, s{sW}, 11")
    a(f"s_mul_i32 s{sRow}, s{sStride}, s{sW}")
    a(f"s_lshl_b32 s{sRow}, s{sRow}, 2")
    a(f"s_add_u32 s{sRow}, s{sRow}, s{sCol}")
    a(f"s_lshl_b32 s{sT2}, s{sStride}, 1")
    a(f"s_lshl_b32 s{sT3}, s{sStride}, 4")
    NS = 16
    toks = {}
    def issue(k):
        for uu in range(2):
            if uu == 0: a(f"s_mov_b32 s{sT0}, s{sRow}")
            else: a(f"s_add_u32 s{sT0}, s{sRow}, s{sT2}")
            a(f"s_add_u32 m0, s{sW2048}, {(k % NS)*8192 + uu*1024}")
            toks[(k, uu)] = a.vm(f"buffer_load_dwordx4 v4, s[{S_A}:{S_A+3}], s{sT0} offen lds")
        a(f"s_add_u32 s{sRow}, s{sRow}, s{sT3}")
    for k in range(NS): issue(k)
    for k in range(40):
        a.wait(toks[(k, 1)])
        a("s_barrier")
        if k >= 1 and k - 1 + NS < 40: issue(k - 1 + NS)
        a(f"v_add_u32 v12, {(k % NS)*8192}, v7")
        last = None
        for T in range(2):
            cls, b = wtile_base(k, T)
            a.lg(f"ds_read_b64_tr_b16 {cls}[{b}:{b+1}], v12 offset:{64*T}")
            last = a.lg(f"ds_read_b64_tr_b16 {cls}[{b+2}:{b+3}], v12 offset:{64*T + 2048}")
        a.wait(last)
    a("s_barrier")

ACC = [[96, 112], [128, 144]]
FR = [16, 20, 24, 28]
sOutW, sSlot, sSlotD, sLast = 31, 32, 33, 34
def w1_loop(a, kind, confirm=None):
    a(f"; ---- projection loop: {kind}")
    a("v_and_b32 v2, 63, v0")
    a("v_and_b32 v3, 15, v2")
    a("v_bfe_u32 v4, v2, 4, 1")
    a("v_lshrrev_b32 v5, 5, v2")
    vE = 6
    if kind == "kq": a(f"v_lshlrev_b32 v{vE}, 12, v4")
    elif kind == "v": a(f"v_lshlrev_b32 v{vE}, 10, v4")
    else:
        a(f"s_mov_b32 s{sT0}, {ACT_KK*1024}")
        a(f"v_mul_lo_u32 v{vE}, v4, s{sT0}")
    a(f"v_lshl_add_u32 v{vE}, v5, 8, v{vE}")
    a(f"v_lshl_add_u32 v{vE}, v3, 4, v{vE}")
    if kind == "f":
        a(f"s_lshl_b32 s{sT0}, s{sW}, 7")
        a(f"s_add_u32 s{sT0}, s{sT0}, s{sCol}")
        a(f"s_cmp_ge_u32 s{sT0}, {F*2}")
        a(f"s_cselect_b32 s{sT1}, 0x7fffffff, 0")
        a(f"v_or_b32 v{vE}, s{sT1}, v{vE}")
        srd(a, S_B, pB1, F * 2)
        a("v_lshlrev_b32 v7, 4, v5")
        tb = []
        for T in range(2):
            for pp in range(2):
                tb.append(a.vm(f"buffer_load_dwordx4 {vr(32+4*(2*T+pp),4)}, v7, s[{S_B}:{S_B+3}], s{sT0} offen offset:{64*T+32*pp}"))
        a.wait(tb[-1])
        for q in range(4):
            for r in range(4):
                a(f"v_lshlrev_b32 v{160+8*q+2*r}, 16, v{32+4*q+r}")
                a(f"v_and_b32 v{160+8*q+2*r+1}, 0xffff0000, v{32+4*q+r}")
    if confirm: confirm(a)
    if "w1rt" in WOPT: a("s_memtime s[92:93]"); a("s_waitcnt lgkmcnt(0)")
    a(f"s_mov_b32 s{sT3}, 64")
    poll_ge(a, WS_FLAGS + FL_LN, f"s{sT3}")
    if "w1rt" in WOPT: a("s_memtime s[94:95]"); a("s_waitcnt lgkmcnt(0)")
    a(f"s_mul_i32 s{sDma}, s{sW}, 10240")
    a(f"s_mul_i32 s{sT0}, s{sSeg}, 40960")
    a(f"s_add_u32 s{sT0}, s{sT0}, s{sDma}")
    a(f"s_add_u32 s{sRow}, s{sT0}, {WS_XN}")
    a(f"s_add_u32 s{sLast}, s{sRow}, {15*40960}")
    def dma_list():
        G = []
        for q in range(10):
            g = []
            if q == 0: g.append(f"s_add_u32 s{sT1+4}, s{sSlotD}, s{sDma}")
            if q % 4 == 0:
                g.append(f"s_add_u32 s{sT1+5}, s{sRow}, {q*1024}")
                g.append(f"s_add_u32 m0, s{sT1+4}, {q*1024}")
            g.append(f"buffer_load_dwordx4 v{vL16}, {WS}, s{sT1+5} offen offset:{(q%4)*1024} sc1 lds")
            G.append(g)
        G[-1] += [f"s_add_u32 s{sRow}, s{sRow}, 40960", f"s_min_u32 s{sRow}, s{sRow}, s{sLast}",
                  f"s_add_u32 s{sSlotD}, s{sSlotD}, 40960", f"s_cmp_eq_u32 s{sSlotD}, 122880", f"s_cselect_b32 s{sSlotD}, 0, s{sSlotD}"]
        return G
    def dma():
        for g in dma_list():
            for x in g: a(x)
    def rot(r):
        a(f"s_add_u32 s{r}, s{r}, 40960")
        a(f"s_cmp_eq_u32 s{r}, 122880")
        a(f"s_cselect_b32 s{r}, 0, s{r}")
    def epilogue(par):
        L = []
        for T in range(2):
            A = ACC[par][T]
            for pp in range(2):
                o = 40 + 4 * pp
                if kind == "v":
                    src = [A + 4*pp + k for k in range(4)] + [A + 4*(pp+2) + k for k in range(4)]
                    off = T * 2048 + pp * 512
                else:
                    src = [A + 8*pp + k for k in range(8)]
                    off = T * 1024 + pp * 512
                if kind == "f":
                    bias = 160 + 8 * (2*T + pp)
                    for k0 in range(0, 8, 4):
                        ks = range(k0, k0 + 4)
                        t = lambda k: 48 + (k % 4) * 2
                        L += [f"v_add_f32 v{src[k]}, v{src[k]}, v{bias+k}" for k in ks]
                        L += [f"v_mul_f32 v{t(k)}, {fbits(math.log2(math.e)):#x}, v{src[k]}" for k in ks]
                        L += [f"v_min_f32 v{t(k)}, {fbits(30.0):#x}, v{t(k)}" for k in ks]
                        L += [f"v_exp_f32 v{t(k)}, v{t(k)}" for k in ks]
                        L += [f"v_add_f32 v{t(k)+1}, 2.0, v{t(k)}" for k in ks]
                        L += [f"v_mul_f32 v{t(k)}, v{t(k)}, v{t(k)+1}" for k in ks]
                        L += [f"v_add_f32 v{t(k)+1}, 2.0, v{t(k)}" for k in ks]
                        L += [f"v_rcp_f32 v{t(k)+1}, v{t(k)+1}" for k in ks]
                        L += [f"v_mul_f32 v{src[k]}, v{src[k]}, v{t(k)}" for k in ks]
                        L += [f"v_mul_f32 v{src[k]}, v{src[k]}, v{t(k)+1}" for k in ks]
                for r in range(4): L.append(f"v_cvt_pk_bf16_f32 v{o+r}, v{src[2*r]}, v{src[2*r+1]}")
                if "nost" in WOPT: L.append("s_nop 0")
                else: L.append(f"buffer_store_dwordx4 {vr(o,4)}, v{vE}, {WS}, s{sOutB} offen offset:{off}{'' if 'plainst' in WOPT else ' sc1'}")
        return L
    def publish(val):
        sk = a.newlabel("PB")
        a(f"s_cmp_lg_u32 s{sW}, 0"); a(f"s_cbranch_scc1 {sk}")
        a(f"v_mov_b32 v8, {val}")
        a(f"v_mov_b32 v9, s{sFlag}")
        a(f"buffer_store_dword v8, v9, {WS}, 0 offen sc1")
        a.label(sk)
    def out_base(delta):
        a(f"s_add_u32 s{sT0}, s{sSeg}, s{sN}")
        if delta: a(f"s_sub_u32 s{sT0}, s{sT0}, {delta}")
        if kind == "f": a(f"s_mul_i32 s{sOutB}, s{sT0}, {2*ACT_KK*1024}")
        else: a(f"s_lshl_b32 s{sOutB}, s{sT0}, 18")
        a(f"s_add_u32 s{sOutB}, s{sOutB}, s{sOutW}")
    def segment(par, with_epi, wait):
        if "nost" in WOPT: wait = 10
        a(f"s_waitcnt vmcnt({wait})")
        a("s_barrier")
        dg = dma_list()
        if with_epi:
            a(f"s_sub_u32 s{sT2}, s{sN}, 2")
            a(f"s_max_i32 s{sT2}, s{sT2}, 0")
            publish(f"s{sT2}")
            out_base(1)
        fill = epilogue(1 - par) if (with_epi and "noepi" not in WOPT) else []
        per = -(-len(fill) // 74) if fill else 0
        a(f"v_add_u32 v12, s{sSlot}, v{vL16}")
        rt = {}
        def rd(kk): rt[kk] = a.lg(f"ds_read_b128 {vr(FR[kk%4],4)}, v12 offset:{kk*1024}")
        rd(0); rd(1); rd(2)
        for kk in range(40):
            a.wait(rt[kk])
            for T in range(2):
                Dr = vr(ACC[par][T], 16); C = "0" if kk == 0 else Dr
                if kind == "v": a(f"v_mfma_f32_32x32x16_bf16 {Dr}, {vr(FR[kk%4],4)}, {wtile(kk,T)}, {C}")
                else: a(f"v_mfma_f32_32x32x16_bf16 {Dr}, {wtile(kk,T)}, {vr(FR[kk%4],4)}, {C}")
                if T == 0 and kk + 3 < 40: rd(kk + 3)
                if T == 1 and kk % 3 == 0 and dg:
                    for x in dg.pop(0): a(x)
                if kk >= 3:
                    for _ in range(per):
                        if fill: a(fill.pop(0))
        assert not dg
        for x in fill: a(x)
        rot(sSlot)
        a(f"s_add_u32 s{sN}, s{sN}, 1")
    a(f"s_mov_b32 s{sN}, 0")
    a(f"s_mov_b32 s{sSlot}, 0")
    a(f"s_mov_b32 s{sSlotD}, 0")
    a("s_barrier")
    dma(); dma()
    segment(0, False, 10)
    top = a.newlabel("W1T"); mid = a.newlabel("W1M"); done = a.newlabel("W1D")
    segment(1, True, 10)
    a.label(top)
    segment(0, True, 14)
    segment(1, True, 14)
    a(f"s_cmp_lt_u32 s{sN}, 16"); a(f"s_cbranch_scc1 {top}")
    out_base(1)
    for x in epilogue(1): a(x)
    a("s_waitcnt vmcnt(0)")
    a("s_barrier")
    publish("16")

def w1_role(a, confirm=None):
    a("; ==== projection GEMM role")
    lk, lv, lq, lf, go = (a.newlabel(x) for x in ("W1K", "W1V", "W1Q", "W1F", "W1G"))
    a(f"s_lshl_b32 s{sSeg}, s{sSplit}, 4")
    a(f"s_and_b32 s{sT2}, s{sBlk}, 15")
    a(f"s_lshl_b32 s{sCol}, s{sT2}, 9")
    a(f"s_movk_i32 s{sStride}, 8192")
    a(f"s_lshl_b32 s{sT0}, s{sT2}, 1")
    a(f"s_lshr_b32 s{sT1}, s{sW}, 1")
    a(f"s_add_u32 s{sT0}, s{sT0}, s{sT1}")
    a(f"s_lshl_b32 s{sT0}, s{sT0}, 13")
    a(f"s_and_b32 s{sT1}, s{sW}, 1")
    a(f"s_lshl_b32 s{sFlag}, s{sSplit}, 4")
    a(f"s_add_u32 s{sFlag}, s{sFlag}, s{sT2}")
    a(f"s_lshl_b32 s{sFlag}, s{sFlag}, 2")
    a(f"s_cmp_lt_u32 s{sBlk}, 16"); a(f"s_cbranch_scc1 {lk}")
    a(f"s_cmp_lt_u32 s{sBlk}, 32"); a(f"s_cbranch_scc1 {lv}")
    a(f"s_cmp_lt_u32 s{sBlk}, 48"); a(f"s_cbranch_scc1 {lq}")
    a.label(lf)
    a(f"s_sub_u32 s{sT2}, s{sBlk}, 48")
    a(f"s_lshl_b32 s{sCol}, s{sT2}, 9")
    a(f"s_movk_i32 s{sStride}, {F*2}")
    a(f"s_lshl_b32 s{sT0}, s{sT2}, 3")
    a(f"s_lshl_b32 s{sT1}, s{sW}, 1")
    a(f"s_add_u32 s{sT0}, s{sT0}, s{sT1}")
    a(f"s_lshl_b32 s{sT0}, s{sT0}, 10")
    a(f"s_add_u32 s{sOutW}, s{sT0}, {WS_ACT}")
    a(f"s_lshl_b32 s{sFlag}, s{sSplit}, 3")
    a(f"s_add_u32 s{sFlag}, s{sFlag}, s{sT2}")
    a(f"s_lshl_b32 s{sFlag}, s{sFlag}, 2")
    a(f"s_add_u32 s{sFlag}, s{sFlag}, {WS_FLAGS + FL_ACT}")
    srd(a, S_A, pW1, D * F * 2)
    a(f"s_mov_b32 s{sT3+1}, 1")
    w1_weights(a, sT3 + 1)
    w1_loop(a, "f", confirm)
    end = a.newlabel("W1E")
    a(f"s_branch {end}")
    for lab, ptr, base, fl in ((lk, pWk, WS_KX, FL_KV), (lq, pWq, WS_QX, FL_Q)):
        a.label(lab)
        a(f"s_lshl_b32 s{sT1}, s{sT1}, 11")
        a(f"s_add_u32 s{sOutW}, s{sT0}, s{sT1}")
        a(f"s_add_u32 s{sOutW}, s{sOutW}, {base}")
        a(f"s_add_u32 s{sFlag}, s{sFlag}, {WS_FLAGS + fl}")
        srd(a, S_A, ptr, D * H * DH * 2)
        if lab == lk: a(f"s_branch {go}")
    a.label(go)
    a(f"s_mov_b32 s{sT3+1}, 1")
    w1_weights(a, sT3 + 1)
    w1_loop(a, "kq", confirm)
    a(f"s_branch {end}")
    a.label(lv)
    a(f"s_lshl_b32 s{sT1}, s{sT1}, 12")
    a(f"s_add_u32 s{sOutW}, s{sT0}, s{sT1}")
    a(f"s_add_u32 s{sOutW}, s{sOutW}, {WS_VX}")
    a(f"s_add_u32 s{sFlag}, s{sFlag}, {WS_FLAGS + FL_KV + 256}")
    srd(a, S_A, pWv, D * H * DH * 2)
    a(f"s_mov_b32 s{sT3+1}, 0")
    w1_weights(a, sT3 + 1)
    w1_loop(a, "v", confirm)
    a.label(end)

sAi, sSegA, sHead, sBase = 20, 21, 22, 23
sMsk = 36
sLo32, sHi32 = 44, 52
sCc, sOnes, sHalf = 38 + 50, 39 + 50, 40 + 50
def softmax_lane_consts(a):
    c = fbits((128 ** -0.5) * math.log2(math.e))
    a(f"s_mov_b32 s{sCc}, {c:#x}"); a(f"s_mov_b32 s{sOnes}, 0x3f803f80"); a(f"s_mov_b32 s{sHalf}, 0x3f003f00")

def att_role(a):
    a("; ==== attention role")
    softmax_lane_consts(a)
    a("v_and_b32 v2, 63, v0")
    a(f"v_lshlrev_b32 v{vL16}, 4, v2")
    a("v_and_b32 v3, 15, v2")
    a("v_lshrrev_b32 v4, 4, v2")
    for jj in range(4):
        a(f"v_lshl_add_u32 v5, v4, 2, {jj}")
        a(f"v_cmp_le_u32 s[{sMsk+2*jj}:{sMsk+2*jj+1}], v5, v3")
    a(f"v_cmp_gt_u32 s[{sLo32}:{sLo32+1}], 32, v2")
    a(f"v_cmp_le_u32 s[{sHi32}:{sHi32+1}], 32, v2")
    a("v_lshrrev_b32 v5, 1, v4"); a("v_lshl_add_u32 v5, v5, 4, v3"); a("v_lshlrev_b32 v5, 4, v5")
    a("v_and_b32 v6, 1, v4"); a("v_lshl_add_u32 v6, v6, 3, v5")
    a(f"s_lshl_b32 s{sT0}, s{sW}, 11"); a(f"v_add_u32 v6, s{sT0}, v6")
    a("v_lshrrev_b32 v5, 2, v3"); a("v_lshl_add_u32 v5, v4, 3, v5"); a("v_lshlrev_b32 v5, 4, v5")
    a("v_and_b32 v7, 1, v3"); a("v_lshl_add_u32 v7, v7, 3, v5"); a(f"v_add_u32 v7, s{sT0}, v7")
    a(f"s_and_b32 s{sHead}, s{sAi}, 7"); a(f"s_lshl_b32 s{sHead}, s{sHead}, 2"); a(f"s_add_u32 s{sHead}, s{sHead}, s{sW}")
    a(f"s_lshr_b32 s{sSegA}, s{sAi}, 3")
    a("v_and_b32 v8, 3, v2")
    top = a.newlabel("ATT"); end = a.newlabel("ATE")
    a.label(top)
    a(f"s_lshl_b32 s{sT0}, s{sHead}, 7"); a(f"s_add_u32 s{sT0}, s{sT0}, {WS_FLAGS + FL_M}")
    a(f"s_lshr_b32 s{sT1}, s{sSegA}, 4"); a(f"s_lshl_b32 s{sT1}, s{sT1}, 6")
    a(f"s_lshr_b32 s{sT2}, s{sHead}, 1"); a(f"s_lshl_b32 s{sT2}, s{sT2}, 2"); a(f"s_add_u32 s{sT1}, s{sT1}, s{sT2}")
    a(f"v_mov_b32 v9, s{sT0}")
    a(f"s_add_u32 s{sT2}, s{sT1}, {WS_FLAGS + FL_KV}"); a(f"v_mov_b32 v10, s{sT2}")
    a("v_cmp_eq_u32 vcc, 1, v8"); a("v_cndmask_b32 v9, v9, v10, vcc")
    a(f"s_add_u32 s{sT2}, s{sT1}, {WS_FLAGS + FL_KV + 256}"); a(f"v_mov_b32 v10, s{sT2}")
    a("v_cmp_eq_u32 vcc, 2, v8"); a("v_cndmask_b32 v9, v9, v10, vcc")
    a(f"s_add_u32 s{sT2}, s{sT1}, {WS_FLAGS + FL_Q}"); a(f"v_mov_b32 v10, s{sT2}")
    a("v_cmp_eq_u32 vcc, 3, v8"); a("v_cndmask_b32 v9, v9, v10, vcc")
    a(f"s_add_u32 s{sT0}, s{sSegA}, 1"); a(f"v_mov_b32 v11, s{sT0}")
    a(f"s_and_b32 s{sT0}, s{sSegA}, 15"); a(f"s_add_u32 s{sT0}, s{sT0}, 1"); a(f"v_mov_b32 v10, s{sT0}")
    a("v_cmp_eq_u32 vcc, 0, v8"); a("v_cndmask_b32 v11, v10, v11, vcc")
    pl = a.newlabel("ATP")
    a.label(pl)
    a(f"buffer_load_dword v10, v9, {WS}, 0 offen sc1")
    spin(a)
    a("s_waitcnt vmcnt(0)")
    a("v_cmp_gt_u32 vcc, v11, v10")
    backoff(a, pl)
    a(f"s_lshl_b32 s{sBase}, s{sSegA}, 5"); a(f"s_add_u32 s{sBase}, s{sBase}, s{sHead}")
    KV, Q, K, V = 16, 32, 64, 96
    a(f"s_lshl_b32 s{sT0}, s{sBase}, 12"); a(f"s_add_u32 s{sT0}, s{sT0}, {WS_KM}")
    tkv = [a.vm(f"buffer_load_dwordx4 {vr(KV+4*w,4)}, v{vL16}, {WS}, s{sT0} offen offset:{1024*w} sc1") for w in range(4)]
    a(f"s_lshl_b32 s{sT1}, s{sBase}, 13")
    def ld8(reg, base):
        toks = []
        for half in range(2):
            a(f"s_add_u32 s{sT0}, s{sT1}, {base + 4096*half}")
            for q in range(4):
                toks.append(a.vm(f"buffer_load_dwordx4 {vr(reg+16*half+4*q,4)}, v{vL16}, {WS}, s{sT0} offen offset:{1024*q} sc1"))
        return toks
    tq = ld8(Q, WS_QX); tk = ld8(K, WS_KX); tv = ld8(V, WS_VX)
    KM = 128; VLO = 144; VHI = 152
    tw = None
    for w in range(4):
        a.wait(tkv[w])
        tw = a.lg(f"ds_write_b64 v6, {vr(KV+4*w,2)} offset:{512*w}")
        a(f"v_cndmask_b32 v{VLO+2*w}, 0, v{KV+4*w+2}, s[{sLo32}:{sLo32+1}]")
        a(f"v_cndmask_b32 v{VLO+2*w+1}, 0, v{KV+4*w+3}, s[{sLo32}:{sLo32+1}]")
        a(f"v_cndmask_b32 v{VHI+2*w}, 0, v{KV+4*w+2}, s[{sHi32}:{sHi32+1}]")
        a(f"v_cndmask_b32 v{VHI+2*w+1}, 0, v{KV+4*w+3}, s[{sHi32}:{sHi32+1}]")
    a.wait(tw)
    tkm = None
    for m in range(4):
        a.lg(f"ds_read_b64_tr_b16 {vr(KM+4*m,2)}, v7 offset:{512*m}")
        tkm = a.lg(f"ds_read_b64_tr_b16 {vr(KM+4*m+2,2)}, v7 offset:{512*m+64}")
    a.wait(tq[-1], tk[-1], tkm)
    NEG = fbits(-1e30)
    a(f"v_mov_b32 v15, {NEG:#x}")
    O = 192
    for qt in range(2):
        X0, X1, MM = 160, 164, 168
        for m in range(4):
            B = vr(Q + 16*qt + 4*m, 4)
            c = lambda r: "0" if m == 0 else vr(r, 4)
            a(f"v_mfma_f32_16x16x32_bf16 {vr(X0,4)}, {vr(K+4*m,4)}, {B}, {c(X0)}")
            if qt == 1: a(f"v_mfma_f32_16x16x32_bf16 {vr(X1,4)}, {vr(K+16+4*m,4)}, {B}, {c(X1)}")
            a(f"v_mfma_f32_16x16x32_bf16 {vr(MM,4)}, {vr(KM+4*m,4)}, {B}, {c(MM)}")
        diag = X0 if qt == 0 else X1
        for jj in range(4): a(f"v_cndmask_b32 v{diag+jj}, v15, v{diag+jj}, s[{sMsk+2*jj}:{sMsk+2*jj+1}]")
        vals = list(range(X0, X0+4)) + (list(range(X1, X1+4)) if qt == 1 else []) + list(range(MM, MM+4))
        m_, t_ = 172, 173
        a(f"v_max3_f32 v{m_}, v{vals[0]}, v{vals[1]}, v{vals[2]}")
        rest = vals[3:]
        while len(rest) >= 2: a(f"v_max3_f32 v{m_}, v{m_}, v{rest[0]}, v{rest[1]}"); rest = rest[2:]
        if rest: a(f"v_max_f32 v{m_}, v{m_}, v{rest[0]}")
        for p in ("32", "16"):
            a(f"v_mov_b32 v{t_}, v{m_}"); a(f"v_permlane{p}_swap_b32 v{m_}, v{t_}"); a(f"v_max_f32 v{m_}, v{m_}, v{t_}")
        a(f"v_mul_f32 v{m_}, s{sCc}, v{m_}")
        for r in vals: a(f"v_fma_f32 v{r}, v{r}, s{sCc}, -v{m_}")
        for r in vals: a(f"v_exp_f32 v{r}, v{r}")
        PX, PM = 176, 180
        a(f"v_cvt_pk_bf16_f32 v{PX}, v{X0}, v{X0+1}"); a(f"v_cvt_pk_bf16_f32 v{PX+1}, v{X0+2}, v{X0+3}")
        if qt == 1:
            a(f"v_cvt_pk_bf16_f32 v{PX+2}, v{X1}, v{X1+1}"); a(f"v_cvt_pk_bf16_f32 v{PX+3}, v{X1+2}, v{X1+3}")
        else:
            a(f"v_mov_b32 v{PX+2}, 0"); a(f"v_mov_b32 v{PX+3}, 0")
        a(f"v_cvt_pk_bf16_f32 v{PM}, v{MM}, v{MM+1}"); a(f"v_cvt_pk_bf16_f32 v{PM+1}, v{MM+2}, v{MM+3}")
        if qt == 0: a.wait(tv[-1])
        for et in range(8):
            a(f"v_mfma_f32_16x16x32_bf16 {vr(O+4*et,4)}, {vr(V+4*et,4)}, {vr(PX,4)}, 0")
        for et in range(8):
            w, t = et >> 1, et & 1
            A = (VLO if t == 0 else VHI) + 2 * w
            a(f"v_mfma_f32_16x16x16_bf16 {vr(O+4*et,4)}, {vr(A,2)}, {vr(PM,2)}, {vr(O+4*et,4)}")
        l_, u_ = 174, 175
        a(f"v_dot2_f32_bf16 v{l_}, v{PM}, s{sHalf}, 0"); a(f"v_dot2_f32_bf16 v{u_}, v{PX}, s{sOnes}, 0")
        a(f"v_dot2_f32_bf16 v{l_}, v{PM+1}, s{sHalf}, v{l_}"); a(f"v_dot2_f32_bf16 v{u_}, v{PX+1}, s{sOnes}, v{u_}")
        a(f"v_dot2_f32_bf16 v{l_}, v{PX+2}, s{sOnes}, v{l_}"); a(f"v_dot2_f32_bf16 v{u_}, v{PX+3}, s{sOnes}, v{u_}")
        a(f"v_add_f32 v{l_}, v{l_}, v{u_}")
        for p in ("32", "16"):
            a(f"v_mov_b32 v{u_}, v{l_}"); a(f"v_permlane{p}_swap_b32 v{l_}, v{u_}"); a(f"v_add_f32 v{l_}, v{l_}, v{u_}")
        a(f"v_rcp_f32 v{l_}, v{l_}")
        a(f"s_lshl_b32 s{sT0}, s{sSegA}, 1"); a(f"s_add_u32 s{sT0}, s{sT0}, {qt}")
        a(f"s_lshl_b32 s{sT0}, s{sT0}, 7"); a(f"s_lshl_b32 s{sT2}, s{sHead}, 2"); a(f"s_add_u32 s{sT0}, s{sT0}, s{sT2}")
        a(f"s_lshl_b32 s{sT0}, s{sT0}, 10"); a(f"s_add_u32 s{sT0}, s{sT0}, {WS_OX}")
        for m in range(4):
            b = O + 8*m
            for k in range(8): a(f"v_mul_f32 v{b+k}, v{b+k}, v{l_}")
            for r in range(4): a(f"v_cvt_pk_bf16_f32 v{b+r}, v{b+2*r}, v{b+2*r+1}")
            a.vm(f"buffer_store_dwordx4 {vr(b,4)}, v{vL16}, {WS}, s{sT0} offen offset:{1024*m} sc1")
    a.wait_all_vm()
    a(f"s_lshl_b32 s{sT0}, s{sSegA}, 7"); a(f"s_add_u32 s{sT0}, s{sT0}, {WS_FLAGS + FL_OX}")
    atomic_inc(a, f"s{sT0}", vt=12)
    a(f"s_add_u32 s{sSegA}, s{sSegA}, 4")
    a(f"s_cmp_lt_u32 s{sSegA}, {NSEG}"); a(f"s_cbranch_scc1 {top}")
    a("s_waitcnt vmcnt(0)")

sBi, sCb, sTT = 20, 21, 22
def bw(kk, T):
    return (ar(8*kk + 4*T, 4), ("a", 8*kk + 4*T)) if kk < 32 else (vr(144 + 8*(kk-32) + 4*T, 4), ("v", 144 + 8*(kk-32) + 4*T))
def out_role(a):
    a("; ==== output GEMM role")
    a(f"s_mul_i32 s{sT0}, s{sBi}, 13108"); a(f"s_lshr_b32 s{sTT}, s{sT0}, 18")
    a(f"s_mul_i32 s{sT0}, s{sTT}, 20"); a(f"s_sub_u32 s{sCb}, s{sBi}, s{sT0}")
    a("v_and_b32 v2, 63, v0")
    a(f"v_lshlrev_b32 v{vL16}, 4, v2")
    a("v_lshrrev_b32 v3, 2, v2")
    a("v_and_b32 v4, 3, v2")
    a("v_bfe_u32 v5, v3, 2, 1"); a("v_lshlrev_b32 v5, 4, v5")
    a("v_lshrrev_b32 v6, 3, v3"); a("v_lshl_add_u32 v5, v6, 2, v5")
    a("v_and_b32 v6, 3, v3"); a("v_add_u32 v5, v5, v6")
    a(f"s_movk_i32 s{sT0}, 1280")
    a(f"v_mul_lo_u32 v5, v5, s{sT0}"); a("v_lshl_add_u32 v5, v4, 4, v5")
    a(f"v_mul_lo_u32 v6, v3, s{sT0}"); a("v_lshl_add_u32 v6, v4, 4, v6")
    a("v_lshrrev_b32 v7, 4, v2"); a("v_lshlrev_b32 v7, 3, v7"); a("v_bfe_u32 v8, v2, 2, 2"); a("v_add_u32 v7, v7, v8")
    a("v_lshlrev_b32 v7, 6, v7"); a("v_and_b32 v8, 3, v2"); a("v_lshl_add_u32 v7, v8, 4, v7")
    sRing = 24
    a(f"s_lshl_b32 s{sRing}, s{sW}, 15"); a(f"v_add_u32 v7, s{sRing}, v7")
    srd(a, S_A, pWo, H * DH * D * 2)
    srd(a, S_B, pW2, F * D * 2)
    sBo, sB2 = 25, 26
    a(f"s_lshl_b32 s{sT0}, s{sCb}, 6")
    a(f"s_mul_i32 s{sBo}, s{sW}, {1024*1280}"); a(f"s_add_u32 s{sBo}, s{sBo}, s{sT0}")
    a(f"s_mul_i32 s{sB2}, s{sW}, {14*32*1280}"); a(f"s_add_u32 s{sB2}, s{sB2}, s{sT0}")
    toks = {}
    def issue(k):
        slot = k % 16
        for u in range(2):
            if k < 32:
                a(f"s_add_u32 s{sT0}, s{sBo}, {(32*k + 8*u)*1280}")
                a(f"s_add_u32 m0, s{sRing}, {slot*2048 + u*1024}")
                toks[(k, u)] = a.vm(f"buffer_load_dwordx4 v5, s[{S_A}:{S_A+3}], s{sT0} offen lds")
            else:
                a(f"s_add_u32 s{sT0}, s{sB2}, {(32*(k-32) + 16*u)*1280}")
                a(f"s_add_u32 m0, s{sRing}, {slot*2048 + u*1024}")
                toks[(k, u)] = a.vm(f"buffer_load_dwordx4 v6, s[{S_B}:{S_B+3}], s{sT0} offen lds")
    for k in range(16): issue(k)
    for k in range(46):
        a.wait(toks[(k, 1)])
        last = None
        for T in range(2):
            cls, b = bw(k, T)[1]
            a.lg(f"ds_read_b64_tr_b16 {cls}[{b}:{b+1}], v7 offset:{(k%16)*2048 + 8*T}")
            last = a.lg(f"ds_read_b64_tr_b16 {cls}[{b+2}:{b+3}], v7 offset:{(k%16)*2048 + 8*T + 256}")
        a.wait(last)
        if k + 16 < 46: issue(k + 16)
    a("s_barrier")
    srd(a, S_A, pX, S * D * 2)
    srd(a, S_B, pOut, S * D * 2)
    a("v_and_b32 v3, 15, v2"); a(f"s_movk_i32 s{sT0}, 1280"); a(f"v_mul_lo_u32 v3, v3, s{sT0}")
    a("v_lshrrev_b32 v4, 4, v2"); a("v_lshl_add_u32 v3, v4, 4, v3")
    a(f"s_lshl_b32 s{sT0}, s{sCb}, 6"); a(f"v_add_u32 v3, s{sT0}, v3")
    a("v_and_b32 v4, 7, v2"); a("v_min_u32 v4, 6, v4"); a("v_lshlrev_b32 v4, 2, v4")
    RED = 131072
    a(f"s_lshl_b32 s{sT0}, s{sW}, 12"); a(f"v_add_u32 v5, s{sT0}, v{vL16}"); a(f"v_add_u32 v5, {RED}, v5")
    a(f"v_add_u32 v6, {RED}, v{vL16}")
    top = a.newlabel("OUT")
    a.label(top)
    sSg, sOx, sAc = 27, 28, 29
    a(f"s_lshr_b32 s{sSg}, s{sTT}, 1")
    a(f"s_lshr_b32 s{sT0}, s{sSg}, 4"); a(f"s_lshl_b32 s{sT0}, s{sT0}, 5"); a(f"s_add_u32 s{sT0}, s{sT0}, {WS_FLAGS + FL_ACT}")
    a(f"v_add_u32 v8, s{sT0}, v4")
    a(f"s_and_b32 s{sT1}, s{sSg}, 15"); a(f"s_add_u32 s{sT1}, s{sT1}, 1")
    pl = a.newlabel("OP1")
    a.label(pl)
    a(f"buffer_load_dword v9, v8, {WS}, 0 offen sc1")
    spin(a)
    a("s_waitcnt vmcnt(0)")
    a(f"v_cmp_gt_u32 vcc, s{sT1}, v9")
    backoff(a, pl)
    a(f"s_mul_i32 s{sT0}, s{sTT}, {16*1280}")
    tx = a.vm(f"buffer_load_dwordx4 v[12:15], v3, s[{S_A}:{S_A+3}], s{sT0} offen")
    a(f"s_mul_i32 s{sAc}, s{sTT}, {ACT_KK*1024}"); a(f"s_add_u32 s{sAc}, s{sAc}, {WS_ACT}")
    AB, AA = 48, 56
    FB = 64
    ft = {}
    def ld_act(q):
        a(f"s_mul_i32 s{sT0}, s{sW}, 14"); a(f"s_add_u32 s{sT0}, s{sT0}, {q}"); a(f"s_min_u32 s{sT0}, s{sT0}, 53")
        a(f"s_lshl_b32 s{sT0}, s{sT0}, 10"); a(f"s_add_u32 s{sT0}, s{sT0}, s{sAc}")
        ft[q] = a.vm(f"buffer_load_dwordx4 {vr(FB+4*q,4)}, v{vL16}, {WS}, s{sT0} offen sc1")
    for q in range(14): ld_act(q)
    for q in range(14):
        a.wait(ft[q])
        for T in range(2):
            a(f"v_mfma_f32_16x16x32_bf16 {vr(AB+4*T,4)}, {bw(32+q,T)[0]}, {vr(FB+4*q,4)}, {'0' if q == 0 else vr(AB+4*T,4)}")
    a(f"s_lshl_b32 s{sT0}, s{sSg}, 7"); a(f"s_add_u32 s{sT0}, s{sT0}, {WS_FLAGS + FL_OX}")
    a(f"s_mov_b32 s{sT3}, 32")
    poll_ge(a, f"s{sT0}", f"s{sT3}", vt=8, label="OP2")
    a(f"s_lshl_b32 s{sOx}, s{sTT}, 7"); a(f"s_lshl_b32 s{sT0}, s{sW}, 5"); a(f"s_add_u32 s{sOx}, s{sOx}, s{sT0}")
    a(f"s_lshl_b32 s{sOx}, s{sOx}, 10"); a(f"s_add_u32 s{sOx}, s{sOx}, {WS_OX}")
    ot = {}
    def ld_ox(q):
        if q % 4 == 0: a(f"s_add_u32 s{sT0}, s{sOx}, {q*1024}")
        else: a(f"s_add_u32 s{sT0}, s{sOx}, {(q//4)*4096}")
        ot[q] = a.vm(f"buffer_load_dwordx4 {vr(FB+4*(q%16),4)}, v{vL16}, {WS}, s{sT0} offen offset:{(q%4)*1024} sc1")
    for q in range(16): ld_ox(q)
    for q in range(32):
        a.wait(ot[q])
        for T in range(2):
            a(f"v_mfma_f32_16x16x32_bf16 {vr(AA+4*T,4)}, {bw(q,T)[0]}, {vr(FB+4*(q%16),4)}, {'0' if q == 0 else vr(AA+4*T,4)}")
        if q + 16 < 32: ld_ox(q + 16)
    a("s_barrier")
    for k, r in enumerate((AA, AA+4, AB, AB+4)):
        a.lg(f"ds_write_b128 v5, {vr(r,4)} offset:{1024*k}")
    a.wait_all_lg()
    a("s_barrier")
    nx = a.newlabel("ONX")
    a(f"s_cmp_lg_u32 s{sW}, 0"); a(f"s_cbranch_scc1 {nx}")
    rd = []
    for w in range(1, 4):
        for k in range(4):
            rd.append(a.lg(f"ds_read_b128 {vr(FB+16*(w-1)+4*k,4)}, v6 offset:{4096*w + 1024*k}"))
    for w in range(1, 4):
        a.wait(rd[4*(w-1)+3])
        for k, r in enumerate((AA, AA+4, AB, AB+4)):
            for j in range(4): a(f"v_add_f32 v{r+j}, v{r+j}, v{FB+16*(w-1)+4*k+j}")
    a.wait(tx, force=True)
    for pr in range(4):
        A0, A1 = AA + 2*pr, AA + 2*pr + 1
        B0, B1 = AB + 2*pr, AB + 2*pr + 1
        a(f"v_cvt_pk_bf16_f32 v16, v{A0}, v{A1}")
        a(f"v_cvt_pk_bf16_f32 v17, v{B0}, v{B1}")
        a("v_lshlrev_b32 v18, 16, v16"); a("v_and_b32 v19, 0xffff0000, v16")
        a(f"v_lshlrev_b32 v20, 16, v{12+pr}"); a(f"v_and_b32 v21, 0xffff0000, v{12+pr}")
        a("v_add_f32 v18, v18, v20"); a("v_add_f32 v19, v19, v21")
        a("v_cvt_pk_bf16_f32 v16, v18, v19")
        a("v_lshlrev_b32 v18, 16, v16"); a("v_and_b32 v19, 0xffff0000, v16")
        a("v_lshlrev_b32 v20, 16, v17"); a("v_and_b32 v21, 0xffff0000, v17")
        a("v_add_f32 v18, v18, v20"); a("v_add_f32 v19, v19, v21")
        a(f"v_cvt_pk_bf16_f32 v{24+pr}, v18, v19")
    a(f"s_mul_i32 s{sT0}, s{sTT}, {16*1280}")
    a(f"buffer_store_dwordx4 v[24:27], v3, s[{S_B}:{S_B+3}], s{sT0} offen")
    a.label(nx)
    a(f"s_add_u32 s{sTT}, s{sTT}, 4")
    a(f"s_cmp_lt_u32 s{sTT}, 128"); a(f"s_cbranch_scc1 {top}")
    a("s_waitcnt vmcnt(0)")
```

```python
import sys
sys.path.insert(0, "gen")
from asmlib import *
from layout import *
import chain as C
import workers as W
NAME = "parallel_sum__memory_aug_recurrent_mem_tr__dense_activation_mish__prompt_kernel"
sX, sR = 84, 85
sMode = 86
sDbgP = 76
def header_comment():
    lines = open("cdna_kernels/" + NAME[:-7] + ".s.ref").read().split("\n")
    out = []
    for ln in lines:
        if ln.startswith("; @launch"): break
        if ln.startswith(";"): out.append(ln)
    return "\n".join(out)

sConf = 3
OUTLINE = []
def registration(a):
    a("; ==== registration: rank inside the XCD this workgroup runs on")
    WS = W.WS
    nz = a.newlabel("NZ")
    a("s_cmp_lg_u32 s2, 0"); a(f"s_cbranch_scc1 {nz}")
    a("v_lshlrev_b32 v1, 4, v0")
    for k in range(4): a(f"v_mov_b32 v{4+k}, 0")
    for k in range(FLAGS_BYTES // 4096):
        a(f"s_mov_b32 s47, {WS_FLAGS + 4096*k}")
        a(f"buffer_store_dwordx4 v[4:7], v1, {WS}, s47 offen sc1")
    a("s_waitcnt vmcnt(0)")
    a("s_barrier")
    a.label(nz)
    W.srd(a, 8, sDbgP, 256)
    a(f"s_getreg_b32 s{sX}, hwreg(HW_REG_XCC_ID, 0, 4)")
    a(f"s_and_b32 s47, s{sX}, 3"); a("s_lshl_b32 s47, s47, 2")
    a(f"s_lshr_b32 s48, s{sX}, 2"); a("s_lshl_b32 s48, s48, 7"); a("s_add_u32 s47, s47, s48")
    a("s_min_u32 s47, s47, 252")
    nw = a.newlabel("RW")
    a(f"s_cmp_lg_u32 s{W.sW}, 0"); a(f"s_cbranch_scc1 {nw}")
    a("v_mov_b32 v4, s47"); a("v_mov_b32 v5, 1")
    a("s_mov_b64 exec, 1")
    a("buffer_atomic_add v5, v4, s[8:11], 0 offen sc0")
    a("s_waitcnt vmcnt(0)")
    a("s_mov_b64 exec, -1")
    a("v_mov_b32 v6, 0")
    a("s_mov_b64 exec, 1")
    a("ds_write_b32 v6, v5")
    a("s_mov_b64 exec, -1")
    a("s_waitcnt lgkmcnt(0)")
    a.label(nw)
    a("s_barrier")
    a("v_mov_b32 v6, 0")
    a("ds_read_b32 v5, v6")
    a("s_waitcnt lgkmcnt(0)")
    a(f"v_readfirstlane_b32 s{sR}, v5")
    a("s_barrier")
    a(f"s_lshl_b32 s2, s{sX}, 8"); a(f"s_or_b32 s2, s2, s{sR}")
    a(f"s_mov_b32 s{sConf}, 0")
    a(f"s_mov_b32 s{sMode}, 1")

_cf = [0]
def confirm(a, vt, quads=None):
    _cf[0] += 1; n = _cf[0]
    if quads:
        q0, q1 = quads
        a(f"s_load_dwordx4 s[{q0}:{q0+3}], s[{sDbgP}:{sDbgP+1}], 0")
        a(f"s_load_dwordx4 s[{q1}:{q1+3}], s[{sDbgP}:{sDbgP+1}], 128")
        a("s_waitcnt lgkmcnt(0)")
        a("s_mov_b32 s88, 1")
        for k in range(4):
            a(f"s_cmp_eq_u32 s{q0+k}, 32"); a("s_cselect_b32 s88, s88, 0")
            a(f"s_cmp_eq_u32 s{q1+k}, 32"); a("s_cselect_b32 s88, s88, 0")
        a(f"s_or_b32 s{sConf}, s{sConf}, s88")
    a(f"s_cmp_eq_u32 s{sConf}, 0"); a(f"s_cbranch_scc1 L_CF{n}")
    a.label(f"L_CR{n}")
    o = Asm()
    o.label(f"L_CF{n}")
    o(f"v_mbcnt_lo_u32_b32 v{vt}, -1, 0"); o(f"v_mbcnt_hi_u32_b32 v{vt}, -1, v{vt}")
    o(f"v_and_b32 v{vt}, 7, v{vt}")
    o(f"v_and_b32 v{vt+1}, 3, v{vt}"); o(f"v_lshlrev_b32 v{vt+1}, 2, v{vt+1}")
    o(f"v_lshrrev_b32 v{vt}, 2, v{vt}"); o(f"v_lshl_add_u32 v{vt+1}, v{vt}, 7, v{vt+1}")
    o(f"v_mov_b32 v{vt}, 252")
    o.label(f"L_CP{n}")
    o(f"global_load_dword v{vt+2}, v{vt+1}, s[{sDbgP}:{sDbgP+1}] sc1")
    o(f"global_load_dword v{vt+3}, v{vt}, s[{sDbgP}:{sDbgP+1}] sc1")
    W.spin(o)
    o("s_waitcnt vmcnt(0)")
    o(f"v_readfirstlane_b32 s88, v{vt+3}")
    o(f"s_mov_b32 s{sMode}, 1")
    o("s_mov_b32 s100, 0")
    for k in range(8):
        o(f"v_readlane_b32 s89, v{vt+2}, {k}")
        o("s_add_u32 s88, s88, s89")
        o("s_cmp_eq_u32 s89, 32"); o(f"s_cselect_b32 s{sMode}, s{sMode}, 0")
        o(f"s_cmp_ge_u32 s2, {(k+1) << 8}"); o("s_cselect_b32 s89, s89, 0"); o("s_add_u32 s100, s100, s89")
    o("s_cmp_ge_u32 s88, 256"); o(f"s_cbranch_scc1 L_CK{n}")
    o("s_sleep 8")
    o(f"s_branch L_CP{n}")
    o.label(f"L_CK{n}")
    o(f"s_mov_b32 s{sConf}, 1")
    o(f"s_cmp_eq_u32 s{sMode}, 0"); o("s_cbranch_scc1 L_FALLBACK")
    o(f"s_branch L_CR{n}")
    OUTLINE.extend(o.lines)

def fallback(a):
    a.label("L_FALLBACK")
    a("s_waitcnt vmcnt(0) lgkmcnt(0)")
    a("s_barrier")
    a(f"s_mov_b32 s{sMode}, 0")
    a("s_and_b32 s88, s2, 255"); a("s_add_u32 s88, s88, s100")
    a(f"s_lshr_b32 s{sX}, s88, 5"); a(f"s_and_b32 s{sR}, s88, 31")
    a("v_mbcnt_lo_u32_b32 v0, -1, 0"); a("v_mbcnt_hi_u32_b32 v0, -1, v0")
    a(f"s_lshl_b32 s88, s{W.sW}, 6"); a("v_add_u32 v0, s88, v0")
    a("s_branch L_DISPATCH")

def load_pointers(a):
    for reg, off in ((W.pX, 0), (W.pWq, 16), (W.pWk, 24), (W.pWv, 32), (W.pWo, 40), (W.pW1, 64), (W.pB1, 72), (W.pW2, 80), (W.pOut, 88)):
        a(f"s_load_dwordx2 s[{reg}:{reg+1}], s[0:1], {off}")
    a("s_load_dwordx2 s[80:81], s[0:1], 8")
    a("s_waitcnt lgkmcnt(0)")

def build(timing=False, opt=()):
    for o in opt:
        if o.startswith('sleep'): W.SLEEP = int(o[5:])
    OUTLINE.clear(); _cf[0] = 0
    a = Asm()
    a("s_cmp_ge_u32 s2, 256"); a("s_cbranch_scc1 L_END")
    a(f"s_load_dwordx2 s[{sDbgP}:{sDbgP+1}], s[0:1], 96")
    a("s_load_dwordx2 s[78:79], s[0:1], 104")
    a("v_lshrrev_b32 v8, 6, v0"); a("s_nop 1"); a(f"v_readfirstlane_b32 s{W.sW}, v8")
    a("s_waitcnt lgkmcnt(0)")
    W.srd(a, W.S_WS, 78, WS_SIZE)
    a(f"s_mov_b32 s{W.sSpin}, 0x400000")
    if timing:
        a("s_mov_b32 s97, s2")
        a("s_memrealtime s[98:99]"); a("s_waitcnt lgkmcnt(0)"); a("s_mov_b32 s99, s97")
    registration(a)
    if "forceslow" in opt:
        confirm(a, 8)
        a("s_branch L_FALLBACK")
    a(f"s_cmp_lt_u32 s{sR}, 32"); a(f"s_cselect_b32 s88, 1, 0")
    a(f"s_cmp_lt_u32 s{sX}, 8"); a(f"s_cselect_b32 s88, s88, 0")
    a("s_cmp_eq_u32 s88, 1"); a("s_cbranch_scc1 L_DISPATCH")
    confirm(a, 8)
    a.label("L_DISPATCH")
    load_pointers(a)
    wk = a.newlabel("WORKER")
    a(f"s_cmp_lg_u32 s{sX}, 0"); a(f"s_cbranch_scc1 {wk}")
    a(f"s_mov_b32 s{C.sH}, s{sR}")
    a(f"s_mov_b64 s[82:83], s[{W.pWo}:{W.pWo+1}]")
    a(f"s_mov_b64 s[{C.sWq}:{C.sWq+1}], s[{W.pWq}:{W.pWq+1}]")
    a(f"s_mov_b64 s[{C.sWk}:{C.sWk+1}], s[{W.pWk}:{W.pWk+1}]")
    a(f"s_mov_b64 s[{C.sWv}:{C.sWv+1}], s[{W.pWv}:{W.pWv+1}]")
    a(f"s_mov_b64 s[{C.sWo}:{C.sWo+1}], s[82:83]")
    a(f"s_mov_b64 s[{C.sMem0}:{C.sMem0+1}], s[80:81]")
    slow = a.newlabel("CSLOW")
    a(f"s_cmp_eq_u32 s{sMode}, 0"); a(f"s_cbranch_scc1 {slow}")
    C.chain_main(a, True, "CF", opt=opt, confirm=lambda x: confirm(x, 62, (64, 68)))
    a("s_branch L_DONE")
    a.label(slow)
    C.chain_main(a, False, "CS", opt=opt)
    a("s_branch L_DONE")
    a.label(wk)
    sWi = 87
    a(f"s_sub_u32 s{sX}, s{sX}, 1")
    a(f"s_lshl_b32 s{sWi}, s{sX}, 5"); a(f"s_add_u32 s{sWi}, s{sWi}, s{sR}")
    nl = a.newlabel("NLN")
    a(f"s_cmp_ge_u32 s{sWi}, 64"); a(f"s_cbranch_scc1 {nl}")
    W.ln_role(a, sWi, confirm=lambda x: confirm(x, 144))
    a.label(nl)
    n1 = a.newlabel("NW1"); n2 = a.newlabel("NW2")
    a(f"s_lshl_b32 s{W.sBlk}, s{sX}, 3"); a(f"s_lshr_b32 s47, s{sR}, 2"); a(f"s_add_u32 s{W.sBlk}, s{W.sBlk}, s47")
    a(f"s_and_b32 s{W.sSplit}, s{sR}, 3")
    a(f"s_cmp_ge_u32 s{W.sBlk}, {32 if 'kvonly' in opt else 55}"); a(f"s_cbranch_scc1 {n1}")
    W.w1_role(a, confirm=lambda x: confirm(x, 8))
    a(f"s_branch {n2}")
    a.label(n1)
    confirm(a, 8)
    a.label(n2)
    if 'noab' in opt: a("s_branch L_DONE")
    ra = a.newlabel("RA")
    a(f"s_cmp_eq_u32 s{sX}, 4"); a(f"s_cbranch_scc1 {ra}")
    a(f"s_cmp_ge_u32 s{sX}, 4"); a("s_cbranch_scc1 L_DONE")
    a(f"s_cmp_ge_u32 s{sR}, 20"); a("s_cbranch_scc1 L_DONE")
    a(f"s_mul_i32 s{W.sBi}, s{sX}, 20"); a(f"s_add_u32 s{W.sBi}, s{W.sBi}, s{sR}")
    a("s_barrier")
    W.out_role(a)
    a("s_branch L_DONE")
    a.label(ra)
    a(f"s_mov_b32 s{W.sAi}, s{sR}")
    a("s_barrier")
    W.att_role(a)
    a.label("L_DONE")
    if timing:
        a("s_memrealtime s[96:97]"); a("s_waitcnt lgkmcnt(0)")
        a("s_sub_u32 s96, s96, s98")
        a("v_mov_b32 v8, s96"); a("s_lshl_b32 s47, s99, 3"); a("v_mov_b32 v9, s47")
        a(f"v_add_u32 v9, {WS_STAMP}, v9")
        a(f"buffer_store_dword v8, v9, {W.WS}, 0 offen")
        a(f"s_lshl_b32 s47, s{sX}, 8"); a(f"s_add_u32 s47, s47, s{sR}"); a("v_mov_b32 v8, s47")
        a(f"buffer_store_dword v8, v9, {W.WS}, 0 offen offset:4")
        a("s_waitcnt vmcnt(0)")
    a.label("L_END")
    a("s_endpgm")
    a.lines += OUTLINE
    fallback(a)
    a.label("L_TIMEOUT")
    a("v_mov_b32 v8, 0xdead"); a("v_mov_b32 v10, 64")
    a(f"global_store_dword v10, v8, s[{sDbgP}:{sDbgP+1}]")
    a("s_waitcnt vmcnt(0)")
    a("s_endpgm")
    hdr = header_comment() + f"""
; @launch grid=(256,1,1) block=(256,1,1) lds=163840
.amdgcn_target "amdgcn-amd-amdhsa--gfx950"
.text
.globl {NAME}
.p2align 8
.type {NAME},@function
{NAME}:
"""
    ftr = f"""
.section .rodata,"a"
.p2align 6
.amdhsa_kernel {NAME}
  .amdhsa_next_free_vgpr 512
  .amdhsa_next_free_sgpr 102
  .amdhsa_accum_offset 256
  .amdhsa_group_segment_fixed_size 0
  .amdhsa_kernarg_size 112
  .amdhsa_user_sgpr_count 2
  .amdhsa_user_sgpr_kernarg_segment_ptr 1
  .amdhsa_system_sgpr_workgroup_id_x 1
.end_amdhsa_kernel
"""
    return hdr + a.text() + ftr
if __name__ == "__main__":
    out = sys.argv[1] if len(sys.argv) > 1 else "cdna_kernels/" + NAME[:-7] + ".s"
    open(out, "w").write(build()); print("written", out)
```

```python
from asmlib import *
from layout import *

LDS_M, LDS_TQ, LDS_TK, LDS_TO, LDS_KX, LDS_L = 0, 10240, 12288, 14336, 16384, 24576
LDS_TOTAL = 163840

S_WS = 4
S_W = 8
sH, sW, sStep, sTag = 12, 13, 14, 15
sMrd, sMwr, sMpo = 16, 17, 18
sP0, sP1, sPl = 19, 20, 21
sPrd, sRedM, sIsRed = 22, 23, 24
sKV, sKVM = 25, 26
sKM, sVM, sVX = 75, 27, 54
sFlK, sFlV, sPF, sKXb = 95, 71, 73, 72
sKMo, sFlM = 69, 26
sKX0, sFlagCur = 55, 96
sSWb = 90
sSel = 28
sLo32 = 36
sC, sOnes, sHalf, sFE = 38, 39, 40, 41
sW2560, sW512, sLb, sSW, sW2048 = 42, 43, 44, 45, 46
sT0, sT1, sT2, sT3 = 47, 48, 49, 50
sFlagOff = 51
sHi32 = 52
sWq, sWk, sWv, sWo, sMem0 = 56, 58, 60, 62, 64
sDbg = 66
sSpin = 74
def spin(a):
    a(f"s_sub_u32 s{sSpin}, s{sSpin}, 1")
    a("s_cbranch_scc1 L_TIMEOUT")
vL16, vAoff, vIdx, vTr, vTw, vPst, vLb, vFl = 0, 1, 2, 3, 4, 5, 6, 7

def vr(b, n): return f"v[{b}:{b+n-1}]"
def rtile(idx):
    if idx < 32: return f"a[{8*idx}:{8*idx+7}]", ("a", 8 * idx)
    b = 80 + 8 * (idx - 32)
    return f"v[{b}:{b+7}]", ("v", b)

S_TILES = [("q", 0), ("k", 0), ("q", 6), ("k", 7), ("q", 15), ("k", 16), ("q", 18), ("k", 19), ("v", 19)]
L_TILES = [("k", j) for j in (1, 2, 3, 4, 5, 6, 8, 9)] + \
          [("o", n // 4, n % 4) for n in (1, 3, 5, 7, 9, 11, 13, 15, 17)]
ALL_TILES = [("q", j) for j in range(20)] + [("k", j) for j in range(20)] + [("v", j) for j in range(20)] + \
            [("o", p, m) for p in range(5) for m in range(4)]
R_TILES = [t for t in ALL_TILES if t not in S_TILES and t not in L_TILES]
assert len(R_TILES) == 54 and len(L_TILES) == 17 and len(S_TILES) == 9
R_IDX = {t: i for i, t in enumerate(R_TILES)}
L_IDX = {t: i for i, t in enumerate(L_TILES)}
S_IDX = {t: i for i, t in enumerate(S_TILES)}

def srd(a, s, lo, nbytes):
    a(f"s_mov_b32 s{s}, s{lo}")
    a(f"s_and_b32 s{s+1}, s{lo+1}, 0xffff")
    a(f"s_mov_b32 s{s+2}, {nbytes}")
    a(f"s_mov_b32 s{s+3}, 0x20000")

def lane_consts(a):
    a("v_and_b32 v8, 63, v0")
    a("v_and_b32 v9, 15, v8")
    a("v_lshrrev_b32 v10, 4, v8")
    a(f"v_lshlrev_b32 v{vL16}, 4, v8")
    a("v_and_b32 v11, 7, v9")
    a("v_lshl_add_u32 v11, v10, 3, v11")
    a(f"v_lshlrev_b32 v{vAoff}, 4, v11")
    a("v_mov_b32 v12, 0x4444")
    a("v_mov_b32 v13, 0xeeee")
    a("v_cmp_gt_u32 vcc, 8, v9")
    a(f"v_cndmask_b32 v{vIdx}, v13, v12, vcc")
    a("v_lshrrev_b32 v11, 2, v9")
    a("v_lshl_add_u32 v11, v10, 3, v11")
    a("v_lshlrev_b32 v11, 4, v11")
    a("v_and_b32 v12, 1, v9")
    a(f"v_lshl_add_u32 v{vTr}, v12, 3, v11")
    a("v_lshrrev_b32 v11, 1, v10")
    a("v_lshl_add_u32 v11, v11, 4, v9")
    a(f"s_lshl_b32 s{sT0}, s{sW}, 5")
    a(f"v_add_u32 v11, s{sT0}, v11")
    a("v_lshlrev_b32 v11, 4, v11")
    a("v_and_b32 v12, 1, v10")
    a(f"v_lshl_add_u32 v{vTw}, v12, 3, v11")
    a("v_lshlrev_b32 v11, 13, v10")
    a(f"v_lshl_add_u32 v{vPst}, v9, 4, v11")
    a("v_bfe_u32 v11, v9, 1, 2")
    for R in range(4):
        a(f"v_cmp_eq_u32 s[{sSel+2*R}:{sSel+2*R+1}], {R}, v11")
    a(f"v_cmp_gt_u32 s[{sLo32}:{sLo32+1}], 32, v8")
    a(f"v_cmp_le_u32 s[{sHi32}:{sHi32+1}], 32, v8")

def lone_off(a, dst, tmp):
    a(f"v_bfe_u32 v{tmp}, v{vPst}, 14, 1")
    a(f"v_and_b32 v{dst}, 0x20f0, v{vPst}")
    a(f"v_lshl_or_b32 v{dst}, v{tmp}, 3, v{dst}")

def scalar_consts(a):
    a(f"s_mul_i32 s{sW2560}, s{sW}, 2560")
    a(f"s_lshl_b32 s{sW512}, s{sW}, 9")
    a(f"s_lshl_b32 s{sW2048}, s{sW}, 11")
    a(f"s_add_u32 s{sLb}, s{sW2048}, {LDS_L}")
    a(f"s_lshl_b32 s{sT0}, s{sH}, 2")
    a(f"s_add_u32 s{sT0}, s{sT0}, s{sW}")
    a(f"s_mul_i32 s{sT0}, s{sT0}, {9*2048}")
    a(f"s_add_u32 s{sSW}, s{sT0}, {WS_SW}")
    if "sameS" in OPTS:
        a(f"s_mul_i32 s{sSW}, s{sW}, {9*2048}"); a(f"s_add_u32 s{sSW}, s{sSW}, {WS_SW}")
    for k in range(5): a(f"s_add_u32 s{sSWb+k}, s{sSW}, {k*4096}")
    a(f"s_lshl_b32 s{sT0}, s{sH}, 8")
    a(f"s_lshl_b32 s{sT1}, s{sW}, 16")
    a(f"s_add_u32 s{sP0}, s{sT0}, s{sT1}")
    a(f"s_add_u32 s{sP0}, s{sP0}, {WS_P}")
    a(f"s_add_u32 s{sP1}, s{sP0}, {4*8192}")
    a(f"s_lshl_b32 s{sT1}, s{sW}, 14")
    a(f"s_add_u32 s{sPl}, s{sT0}, s{sT1}")
    a(f"s_add_u32 s{sPl}, s{sPl}, {WS_P + 32*8192}")
    a(f"s_lshl_b32 s{sFlM}, s{sH}, 7")
    a(f"s_add_u32 s{sFlM}, s{sFlM}, {FL_M}")
    a(f"s_mov_b32 s{sIsRed}, 0")
    a(f"s_cmp_eq_u32 s{sW}, 0")
    a(f"s_cselect_b32 s{sIsRed}, 1, 0")
    a(f"s_cmp_lt_u32 s{sH}, 8")
    a(f"s_cselect_b32 s{sT1}, 1, 0")
    a(f"s_cmp_eq_u32 s{sW}, 1")
    a(f"s_cselect_b32 s{sT1}, s{sT1}, 0")
    a(f"s_or_b32 s{sIsRed}, s{sIsRed}, s{sT1}")
    a(f"s_add_u32 s{sT2}, s{sH}, 32")
    a(f"s_cmp_eq_u32 s{sW}, 0")
    a(f"s_cselect_b32 s{sT2}, s{sH}, s{sT2}")
    a(f"s_min_u32 s{sT2}, s{sT2}, 39")
    a(f"s_lshl_b32 s{sPrd}, s{sT2}, 13")
    a(f"s_add_u32 s{sPrd}, s{sPrd}, {WS_P}")
    a(f"s_lshr_b32 s{sT0}, s{sT2}, 3")
    a(f"s_mul_i32 s{sT0}, s{sT0}, 20")
    a(f"s_bfe_u32 s{sT1}, s{sT2}, 0x10002")
    a(f"s_lshl_b32 s{sT1}, s{sT1}, 3")
    a(f"s_add_u32 s{sT0}, s{sT0}, s{sT1}")
    a(f"s_bfe_u32 s{sT1}, s{sT2}, 0x10001")
    a(f"s_lshl_b32 s{sT1}, s{sT1}, 2")
    a(f"s_add_u32 s{sT0}, s{sT0}, s{sT1}")
    a(f"s_sub_u32 s{sT1}, s{sT2}, 32")
    a(f"s_lshr_b32 s{sT1}, s{sT1}, 1")
    a(f"s_mul_i32 s{sT1}, s{sT1}, 20")
    a(f"s_add_u32 s{sT1}, s{sT1}, 16")
    a(f"s_cmp_lt_u32 s{sT2}, 32")
    a(f"s_cselect_b32 s{sT0}, s{sT0}, s{sT1}")
    a(f"s_lshl_b32 s{sT0}, s{sT0}, 7")
    a(f"s_and_b32 s{sT1}, s{sT2}, 1")
    a(f"s_lshl_b32 s{sT1}, s{sT1}, 6")
    a(f"s_add_u32 s{sRedM}, s{sT0}, s{sT1}")
    import struct, math
    c = struct.unpack("<I", struct.pack("<f", (128 ** -0.5) * math.log2(math.e)))[0]
    a(f"s_mov_b32 s{sC}, {c:#x}")
    a(f"s_mov_b32 s{sOnes}, 0x3f803f80")
    a(f"s_mov_b32 s{sHalf}, 0x3f003f00")
    a(f"s_mov_b32 s{sFE}, 0xfffffffe")

def unit_src(t):
    if t[0] in "qkv":
        base, X = kstep_base(t[1])
        return {"q": sWq, "k": sWk, "v": sWv}[t[0]], [(base + uu * X) * 8192 for uu in range(2)], False
    p, m = t[1], t[2]
    return sWo, [(32 * m + 16 * uu) * 1280 + 256 * p for uu in range(2)], True

def weights_prologue(a, hook=None):
    vG, vGo, vTa, vTmp = 8, 9, 10, 12
    a(f"v_lshrrev_b32 v11, 4, v{vL16}")
    a("v_lshrrev_b32 v20, 4, v11")
    a("v_and_b32 v21, 15, v11")
    a(f"v_lshlrev_b32 v{vG}, 13, v20")
    a(f"v_lshl_add_u32 v{vG}, v21, 4, v{vG}")
    a("s_movk_i32 s47, 1280")
    a(f"v_mul_lo_u32 v{vGo}, v20, s47")
    a(f"v_lshl_add_u32 v{vGo}, v21, 4, v{vGo}")
    a("v_lshrrev_b32 v22, 2, v21")
    a("v_and_b32 v23, 1, v22")
    a("v_lshl_add_u32 v23, v20, 2, v23")
    a("v_lshlrev_b32 v23, 8, v23")
    a("v_lshrrev_b32 v22, 1, v22")
    a("v_lshl_add_u32 v23, v22, 5, v23")
    a("v_and_b32 v22, 3, v21")
    a("v_lshl_add_u32 v23, v22, 3, v23")
    a(f"s_lshl_b32 s{sT0}, s{sW}, 6")
    a(f"v_add_u32 v{vTa}, s{sT0}, v23")
    sBq, sBo = 96, 97
    a(f"s_lshl_b32 s{sT0}, s{sW}, 15")
    a(f"s_lshl_b32 s{sT1}, s{sH}, 8")
    a(f"s_add_u32 s{sBq}, s{sT0}, s{sT1}")
    a(f"s_lshl_b32 s{sT0}, s{sH}, 7")
    a(f"s_lshl_b32 s{sT1}, s{sW}, 2")
    a(f"s_add_u32 s{sT0}, s{sT0}, s{sT1}")
    a(f"s_mul_i32 s{sBo}, s{sT0}, 1280")
    order = R_TILES + S_TILES + L_TILES
    n = len(order)
    slot = {}
    for k in range(n - 1, -1, -1):
        slot[k] = L_IDX[order[k]] if k >= n - 17 else slot[k + 17]
    cur_ptr = [None]
    toks = {}
    def issue(k):
        t = order[k]
        ptr, offs, is_wo = unit_src(t)
        if cur_ptr[0] != ptr:
            srd(a, S_W, ptr, 5242880); cur_ptr[0] = ptr
        for uu in range(2):
            a(f"s_add_u32 s{sT0}, s{sBo if is_wo else sBq}, {offs[uu]}")
            a(f"s_add_u32 m0, s{sW2048}, {LDS_L + slot[k]*8192 + uu*1024}")
            toks[(k, uu)] = a.vm(f"buffer_load_dwordx4 v{vGo if is_wo else vG}, s[{S_W}:{S_W+3}], s{sT0} offen{WMOD} lds")
    DEPTH = 17
    for k in range(DEPTH): issue(k)
    pendL = None
    for k in range(n):
        t = order[k]
        if hook: hook(k)
        a.wait(toks[(k, 1)])
        a("s_barrier")
        if pendL is not None:
            pk, pb = pendL
            a(f"v_add_u32 v11, s{sLb}, v{vL16}")
            a(f"v_add_u32 v11, {slot[pk]*8192}, v11")
            a.lg(f"ds_write_b128 v11, {vr(pb,4)}")
            a.lg(f"ds_write_b128 v11, {vr(pb+4,4)} offset:1024")
            pendL = None
        if k >= 1 and k - 1 + 17 < n: issue(k - 1 + 17)
        a(f"v_add_u32 v11, {LDS_L + slot[k]*8192}, v{vTa}")
        if t in R_IDX:
            _, (cls, b) = rtile(R_IDX[t])
        else:
            cls, b = "v", (vTmp if k % 2 == 0 else vTmp + 8)
        last = None
        for q, off in enumerate((0, 512, 4096, 4608)):
            last = a.lg(f"ds_read_b64_tr_b16 {cls}[{b+2*q}:{b+2*q+1}], v11 offset:{off}")
        a.wait(last)
        if t in S_IDX:
            si = S_IDX[t]
            a(f"s_add_u32 s{sT1}, s{sSW}, {si*2048}")
            a.vm(f"buffer_store_dwordx4 {vr(b,4)}, v{vL16}, s[{S_WS}:{S_WS+3}], s{sT1} offen")
            a.vm(f"buffer_store_dwordx4 {vr(b+4,4)}, v{vL16}, s[{S_WS}:{S_WS+3}], s{sT1} offen offset:1024")
        if t in L_IDX: pendL = (k, b)
    a("s_barrier")
    pk, pb = pendL
    a(f"v_add_u32 v11, s{sLb}, v{vL16}")
    a(f"v_add_u32 v11, {slot[pk]*8192}, v11")
    a.lg(f"ds_write_b128 v11, {vr(pb,4)}")
    a.lg(f"ds_write_b128 v11, {vr(pb+4,4)} offset:1024")
    a.wait_all()

S_M0 = 80
def mem0_loads(a):
    a("; ---- mem0 loads")
    srd(a, S_M0, sMem0, 8 * 1280)
    T = 44
    a(f"v_lshrrev_b32 v{T+9}, 4, v{vL16}")
    a(f"s_lshl_b32 s{sT0}, s{sW}, 6")
    a(f"v_add_u32 v{T+9}, s{sT0}, v{T+9}")
    a(f"s_mov_b32 s{sT1}, 13108")
    toks = []
    for n in range(5):
        q = 28 + n; b = T - 1
        a(f"v_add_u32 v{q}, {256*n}, v{T+9}")
        a(f"v_lshrrev_b32 v{b+1}, 4, v{q}")
        a(f"v_lshrrev_b32 v{b+2}, 2, v{b+1}")
        a(f"v_and_b32 v{b+3}, 3, v{b+1}")
        a(f"v_mul_u32_u24 v{b+4}, s{sT1}, v{b+2}")
        a(f"v_lshrrev_b32 v{b+4}, 16, v{b+4}")
        a(f"v_mul_u32_u24 v{b+5}, 5, v{b+4}")
        a(f"v_sub_u32 v{b+5}, v{b+2}, v{b+5}")
        a(f"v_and_b32 v{b+6}, 1, v{q}")
        a(f"v_lshrrev_b32 v{b+7}, 1, v{b+5}")
        a(f"v_lshlrev_b32 v{b+7}, 8, v{b+7}")
        a(f"v_and_b32 v{b+8}, 1, v{b+5}")
        a(f"v_lshl_add_u32 v{b+7}, v{b+8}, 4, v{b+7}")
        a(f"v_lshlrev_b32 v{b+8}, 7, v{b+6}")
        a(f"v_lshlrev_b32 v{b+9}, 4, v{b+6}")
        a(f"v_cmp_eq_u32 vcc, 4, v{b+5}")
        a(f"v_cndmask_b32 v{b+8}, v{b+8}, v{b+9}, vcc")
        a(f"v_add_u32 v{b+7}, v{b+7}, v{b+8}")
        a(f"v_lshl_add_u32 v{b+7}, v{b+4}, 5, v{b+7}")
        a(f"v_lshl_add_u32 v{b+7}, v{b+3}, 2, v{b+7}")
        a(f"v_bfe_u32 v{b+8}, v{q}, 1, 3")
        a(f"s_movk_i32 s{sT2}, 1280")
        a(f"v_mul_lo_u32 v{b+8}, v{b+8}, s{sT2}")
        a(f"v_lshl_add_u32 v{b+8}, v{b+7}, 1, v{b+8}")
        toks.append(a.vm(f"buffer_load_dwordx2 {vr(34+2*n,2)}, v{b+8}, s[{S_M0}:{S_M0+3}], 0 offen"))
        a(f"v_lshlrev_b32 v{q}, 3, v{q}")
    return toks
def mem0_writes(a, toks):
    for n in range(5):
        a.wait(toks[n])
        a.lg(f"ds_write_b64 v{28+n}, {vr(34+2*n,2)} offset:{LDS_M}")

def init_exchange(a, sc):
    a("; ---- init exchange buffers")
    for k in range(54, 58): a(f"v_mov_b32 v{k}, 1")
    a.vm(f"buffer_store_dwordx4 v[54:57], v{vPst}, s[{S_WS}:{S_WS+3}], s{sP0} offen{sc}")
    a.vm(f"buffer_store_dwordx4 v[54:57], v{vPst}, s[{S_WS}:{S_WS+3}], s{sP1} offen{sc}")
    lone_off(a, 58, 59)
    a.vm(f"buffer_store_dwordx2 v[54:55], v58, s[{S_WS}:{S_WS+3}], s{sPl} offen{sc}")
    skip = a.newlabel("IX")
    a(f"s_cmp_eq_u32 s{sIsRed}, 0")
    a(f"s_cbranch_scc1 {skip}")
    red_moff(a, 58, 59)
    a("v_mov_b32 v60, -1"); a("v_mov_b32 v61, -1")
    for sl in range(4):
        a(f"s_add_u32 s{sT0}, s{sRedM}, {WS_M + sl*MSLOT}")
        a(f"buffer_store_dwordx2 v[60:61], v58, s[{S_WS}:{S_WS+3}], s{sT0} offen{sc}")
    a.label(skip)

def red_moff(a, dst, tmp):
    a(f"v_lshrrev_b32 v{dst}, 8, v{vL16}")
    a(f"v_lshlrev_b32 v{dst}, 7, v{dst}")
    a(f"v_and_b32 v{tmp}, 0x30, v{vL16}")
    a(f"v_add_u32 v{dst}, v{dst}, v{tmp}")
    a(f"v_bfe_u32 v{tmp}, v{vL16}, 6, 1")
    a(f"v_lshl_add_u32 v{dst}, v{tmp}, 3, v{dst}")

def flag_off(a):
    a(f"s_mov_b32 s{sFlagCur}, s{sFlagOff}")
    a(f"s_add_u32 s{sT0}, s{sStep}, 1")
    a(f"s_lshr_b32 s{sT0}, s{sT0}, 4")
    a(f"s_min_u32 s{sT0}, s{sT0}, 3")
    a(f"s_lshl_b32 s{sT0}, s{sT0}, 6")
    a(f"s_lshr_b32 s{sT1}, s{sH}, 1")
    a(f"s_lshl_b32 s{sT1}, s{sT1}, 2")
    a(f"s_add_u32 s{sFlagOff}, s{sT0}, s{sT1}")
    a(f"s_add_u32 s{sFlagOff}, s{sFlagOff}, {FL_KV}")

PF_DIST = 1
WMOD = ' nt'
KXNT = ' nt'
OPTS = set()
NT = ''
def step_offsets(a):
    a(f"s_lshl_b32 s{sT0}, s{sStep}, 5")
    a(f"s_add_u32 s{sT0}, s{sT0}, s{sH}")
    a(f"s_lshl_b32 s{sT1}, s{sT0 if 'samekv' not in OPTS else sH}, 12")
    a(f"s_lshl_b32 s{sT2}, s{sW}, 10")
    a(f"s_add_u32 s{sT1}, s{sT1}, s{sT2}")
    a(f"s_add_u32 s{sKM}, s{sT1}, {WS_KM}")
    if 'samex' in OPTS: a(f"s_mov_b32 s{sT0}, s{sH}")
    a(f"s_lshl_b32 s{sT1}, s{sT0}, 13")
    a(f"s_add_u32 s{sT1}, s{sT1}, s{sW2048}")
    a(f"s_add_u32 s{sVX}, s{sT1}, {WS_VX}")
    a(f"s_sub_u32 s{sKX0}, s{sVX}, {WS_VX - WS_KX}")
    a(f"s_lshl_b32 s{sT1}, s{sT0}, 13")
    a(f"s_add_u32 s{sKXb}, s{sT1}, {WS_KX + 32*8192}")
    a(f"s_add_u32 s{sPF}, s{sKXb}, 0")
    a(f"s_add_u32 s{sT2}, s{sKXb}, {WS_VX - WS_KX}")
    a(f"s_cmp_lt_u32 s{sW}, 2")
    a(f"s_cselect_b32 s{sPF}, s{sPF}, s{sT2}")
    a(f"s_and_b32 s{sT2}, s{sW}, 1")
    a(f"s_lshl_b32 s{sT2}, s{sT2}, 12")
    a(f"s_add_u32 s{sPF}, s{sPF}, s{sT2}")
    flag_off(a)
    a(f"s_and_b32 s{sT0}, s{sStep}, 3")
    a(f"s_mul_i32 s{sT0}, s{sT0}, {MSLOT}")
    a(f"s_add_u32 s{sMrd}, s{sT0}, s{sW2560}")
    a(f"s_add_u32 s{sMrd}, s{sMrd}, {WS_M}")
    a(f"s_add_u32 s{sMwr}, s{sT0}, s{sRedM}")
    a(f"s_add_u32 s{sMwr}, s{sMwr}, {WS_M}")
    a(f"s_add_u32 s{sT0}, s{sStep}, 2")
    a(f"s_and_b32 s{sT0}, s{sT0}, 3")
    a(f"s_mul_i32 s{sT0}, s{sT0}, {MSLOT}")
    a(f"s_add_u32 s{sMpo}, s{sT0}, s{sRedM}")
    a(f"s_add_u32 s{sMpo}, s{sMpo}, {WS_M}")

def team_barrier(a, off, sc):
    a.wait_all_vm()
    a("s_barrier")
    lab = a.newlabel("TB")
    a(f"s_lshl_b32 s{sT0}, s{sH}, 2")
    a(f"v_mov_b32 v8, s{sT0}")
    a("v_mov_b32 v9, 1")
    skip = a.newlabel("TBs")
    a(f"s_cmp_lg_u32 s{sW}, 0")
    a(f"s_cbranch_scc1 {skip}")
    a(f"buffer_store_dword v9, v8, s[{S_WS}:{S_WS+3}], 0 offen offset:{off}{sc}")
    a.label(skip)
    a(f"v_lshrrev_b32 v8, 2, v{vL16}")
    a("v_and_b32 v8, 0x7c, v8")
    a.label(lab)
    a(f"buffer_load_dword v9, v8, s[{S_WS}:{S_WS+3}], 0 offen offset:{off} sc1")
    spin(a)
    a("s_waitcnt vmcnt(0)")
    a("v_cmp_eq_u32 vcc, 0, v9")
    a(f"s_cbranch_vccnz {lab}")

STAMP_REGS = [76, 78, 80, 82, 84, 86, 88, 56, 58, 60, 62]
class Step:
    def __init__(self, a, fast, stamp=None, opt=()):
        self.a = a
        self.opt = set(opt)
        self.sc = "" if fast else " sc1"
        self.stamp = stamp
        self.outofline = []
        self.nv1 = 18
        for o in self.opt:
            if o.startswith("nv"): self.nv1 = int(o[2:])
    def ws(self): return f"s[{S_WS}:{S_WS+3}]"
    def btile(self, t): return rtile(R_IDX[t])[0]
    def smf(self, acc, A, B):
        self.a(f"v_smfmac_f32_16x16x64_bf16 {vr(acc,4)}, {vr(A,4)}, {B}, v{vIdx}")
    def ld_s_half(self, t, dst, hf):
        if "noS" in self.opt: return None
        si = S_IDX[t]
        off = (si % 2) * 2048 + hf * 1024
        mod = ""
        for o in self.opt:
            if o.startswith("l1=") and si >= int(o[3:]): mod = " sc1"
            if o.startswith("l1nt=") and si >= int(o[5:]): mod = " nt"
        return self.a.vm(f"buffer_load_dwordx4 {vr(dst+4*hf,4)}, v{vL16}, {self.ws()}, s{sSWb + si//2} offen offset:{off}{mod}")
    def ld_s(self, t, dst):
        self.ld_s_half(t, dst, 0)
        return self.ld_s_half(t, dst, 1)
    def ld_l(self, t, dst, bases, base9=None):
        a = self.a
        if "noL" in self.opt: return None
        x = L_IDX[t]
        if base9 is not None: vb = base9; off = (x - 9) * 8192
        else: vb = bases[x // 8]; off = (x % 8) * 8192
        assert 0 <= off < 65536 - 1024
        a.lg(f"ds_read_b128 {vr(dst,4)}, v{vb} offset:{off}")
        return a.lg(f"ds_read_b128 {vr(dst+4,4)}, v{vb} offset:{off+1024}")

    def pre_poll(self):
        a = self.a
        a(f"v_and_b32 v40, 0x1f0, v{vL16}")
        a(f"v_add_u32 v41, s{sW2560}, v{vL16}")
        a(f"v_add_u32 v42, s{sW2560}, v40")
        for k in list(range(8, 16, 2)) + [76, 78]: a(f"v_mov_b64 v[{k}:{k+1}], 0")
        a(f"v_bfe_u32 v16, v{vL16}, 8, 1")
        a(f"v_lshlrev_b32 v16, 8, v16")
        a(f"v_add_u32 v16, s{sFlagOff}, v16")
        a(f"v_lshlrev_b32 v17, 3, v{vL16}")
        a(f"v_add_u32 v17, s{sPF}, v17")
        a(f"v_cndmask_b32 v{vFl}, v16, v17, s[{sLo32}:{sLo32+1}]")

    def early_a(self):
        self.stok = {}
        self.stok[("q", 0)] = self.ld_s(("q", 0), 44)
        if "lx" not in self.opt: self.stok[("k", 0)] = self.ld_s(("k", 0), 52)
    def lx_dma(self):
        si = S_IDX[("k", 0)]
        return [f"s_add_u32 m0, s{sW2048}, {LDS_KX}", f"s_add_u32 s{sT3}, s{sSWb + si//2}, {(si % 2) * 2048}",
                f"@buffer_load_dwordx4 v{vL16}, {self.ws()}, s{sT3} offen lds",
                f"@buffer_load_dwordx4 v{vL16}, {self.ws()}, s{sT3} offen offset:1024 lds"]


    def m_loads(self):
        a = self.a
        a.vm(f"buffer_load_dwordx4 v[28:31], v{vL16}, {self.ws()}, s{sMrd} offen sc1")
        a.vm(f"buffer_load_dwordx4 v[32:35], v{vL16}, {self.ws()}, s{sMrd} offen offset:1024 sc1")
        return a.vm(f"buffer_load_dwordx4 v[36:39], v40, {self.ws()}, s{sMrd} offen offset:2048 sc1")
    def m_check(self):
        a = self.a
        a("v_max3_u32 v43, v29, v31, v33")
        a("v_max3_u32 v43, v43, v35, v37")
        a("v_max_u32 v43, v43, v39")
        a("v_cmp_eq_u32 vcc, -1, v43")

    def poll_m(self):
        a = self.a
        retry = a.newlabel("PMR"); ok = a.newlabel("PMK")
        tm = self.m_loads()
        if "eh" not in self.opt:
            self.early_a()
            a.wait(tm, force=True)
        else:
            self.stok = {("q", 0): None, ("k", 0): None}
            a.wait_all_vm()
        self.m_check()
        a(f"s_cbranch_vccnz {retry}")
        a.label(ok)
        o = Asm(); o._lab = a._lab + 1000
        o.label(retry)
        st = Step(o, True, None, self.opt); st.sc = self.sc
        st.m_loads(); spin(o); o.wait_all_vm(); st.m_check()
        o(f"s_cbranch_vccnz {retry}")
        o(f"s_branch {ok}")
        self.outofline += o.lines
        self.stamp_at(1)
        if self.stamp: a(f"s_mov_b32 s64, s{sSpin}")
        a.lg(f"ds_write_b128 v41, v[28:31] offset:{LDS_M}")
        a.lg(f"ds_write_b128 v41, v[32:35] offset:{LDS_M+1024}")
        a.lg(f"ds_write_b128 v42, v[36:39] offset:{LDS_M+2048}")

    def stamp_at(self, i, red=False):
        if red and "rst" not in self.opt: return
        if "rst" in self.opt and i in (3, 4, 5) and not red: return
        if self.stamp: self.a(f"s_memtime s[{STAMP_REGS[i]}:{STAMP_REGS[i]+1}]")
    def dump_stamps(self):
        if not self.stamp: return
        a = self.a
        a("s_waitcnt lgkmcnt(0)")
        for i in range(11):
            r = STAMP_REGS[i]
            a(f"v_writelane_b32 v43, s{r}, {i}")
        for i, r in enumerate((64, 65, 68)): a(f"v_writelane_b32 v43, s{r}, {11+i}")
        a(f"s_lshl_b32 s{sT0}, s{sH}, 2")
        a(f"s_add_u32 s{sT0}, s{sT0}, s{sW}")
        a(f"s_lshl_b32 s{sT0}, s{sT0}, 12")
        a(f"s_lshl_b32 s{sT1}, s{sStep}, 6")
        a(f"s_add_u32 s{sT0}, s{sT0}, s{sT1}")
        a(f"s_add_u32 s{sT0}, s{sT0}, {WS_STAMP}")
        a(f"v_lshrrev_b32 v42, 2, v{vL16}")
        a("s_mov_b64 s[48:49], exec")
        a("s_mov_b64 exec, 0x3fff")
        a(f"buffer_store_dword v43, v42, {self.ws()}, s{sT0} offen")
        a("s_mov_b64 exec, s[48:49]")

    def body(self, entry_label):
        a = self.a
        self.stamp_at(0)
        if "rt" in self.opt:
            a("s_memrealtime s[88:89]"); a("s_memtime s[86:87]"); a("s_waitcnt lgkmcnt(0)")
            a(f"v_mov_b32 v8, s88"); a(f"v_mov_b32 v9, s86")
            a(f"s_lshl_b32 s89, s{sH}, 2"); a(f"s_add_u32 s89, s89, s{sW}"); a("s_lshl_b32 s89, s89, 9")
            a(f"s_lshl_b32 s88, s{sStep}, 3"); a("s_add_u32 s89, s89, s88"); a(f"s_add_u32 s89, s89, {WS_STAMP + 0x20000}")
            a("v_mov_b32 v10, 0")
            a(f"buffer_store_dwordx2 v[8:9], v10, {self.ws()}, s89 offen")
        self.pre_poll()
        self.poll_m()
        a.label(entry_label)
        stok = self.stok
        sq = {("q",0):44, ("k",0):52, ("q",6):60, ("k",7):68, ("q",15):44, ("k",16):52, ("q",18):60, ("k",19):68}
        if "q6late" not in self.opt: stok[("q",6)] = self.ld_s(("q",6), 60)
        a.wait_all_lg()
        a("s_barrier")
        self.stamp_at(2)
        La = [16, 20, 24]; Lb = [28, 36]
        accV = 76
        NV1 = self.nv1
        atok = {}
        def rdA(j): atok[j] = a.lg(f"ds_read_b128 {vr(La[j%3],4)}, v{vAoff} offset:{LDS_M + 512*j}")
        vbuf = lambda jj: La[(jj - NV1 + 20) % 3]
        def rdAv(jj):
            if jj < 20: atok[("v", jj)] = a.lg(f"ds_read_b128 {vr(vbuf(jj),4)}, v{vAoff} offset:{LDS_M + 512*jj}")
        ltiles = [t for t in L_TILES if t[0] != "o"]
        ltok = {}
        def rdL(x):
            if x < len(ltiles): ltok[ltiles[x]] = self.ld_l(ltiles[x], Lb[x % 2], [vLb])
        rdA(0)
        lxtok = None
        if "lx" in self.opt:
            a(f"v_add_u32 v52, s{sW2048}, v{vL16}")
            a.lg(f"ds_read_b128 v[56:59], v52 offset:{LDS_KX + 1024}")
            lxtok = a.lg(f"ds_read_b128 v[52:55], v52 offset:{LDS_KX}")
            stok[("k", 0)] = lxtok
        rdA(1); rdL(0); rdL(1)
        late = {0: [(("k",7),0)], 1: [(("k",7),1)], 3: [(("q",15),0)], 4: [(("q",15),1)],
                5: [(("k",16),0)], 7: [(("k",16),1)], 8: [(("q",18),0)], 9: [(("q",18),1)],
                10: [(("k",19),0)], 11: [(("k",19),1)]}
        dma = {}
        if "q6late" in self.opt:
            late = {0: [(("q",6),0), (("q",6),1)], 1: [(("k",7),0)], 2: [(("k",7),1)], 3: [(("q",15),0)], 4: [(("q",15),1)],
                    5: [(("k",16),0)], 7: [(("k",16),1)], 8: [(("q",18),0)], 9: [(("q",18),1)], 10: [(("k",19),0)], 11: [(("k",19),1)]}
        nl = 0
        for j in range(20):
            waits = [atok[j]]
            for mat in "qk":
                t = (mat, j)
                if t in L_IDX: waits.append(ltok[t])
                if t in S_IDX and not ("nows" in self.opt or (f"nows{j}" in self.opt)): waits.append(stok[t])
            a.wait(*waits)
            tq_, tk_ = ("q", j), ("k", j)
            self.smf(8, La[j % 3], vr(sq[tq_], 8) if tq_ in S_IDX else self.btile(tq_))
            if j + 2 < 20: rdA(j + 2)
            else: rdAv(NV1 + j + 2 - 20)
            for t, hf in late.get(j, []):
                x = self.ld_s_half(t, sq[t], hf)
                if hf == 1: stok[t] = x
            if j in (13, 14) and "noKX" not in self.opt:
                if j == 13: a(f"s_add_u32 m0, s{sW2048}, {LDS_KX}")
                dma[j] = a.vm(f"buffer_load_dwordx4 v{vL16}, {self.ws()}, s{sKX0} offen offset:{(j-13)*1024} sc1{NT} lds")
            if tk_ in L_IDX: B = vr(Lb[nl % 2], 8)
            elif tk_ in S_IDX: B = vr(sq[tk_], 8)
            else: B = self.btile(tk_)
            self.smf(12, La[j % 3], B)
            if tk_ in L_IDX:
                nl += 1; rdL(nl + 1)
            if j < NV1: self.smf(accV, La[j % 3], self.btile(("v", j)))
        self.stamp_at(3)
        vt = {"n": NV1}
        svt = {}
        def vm_step(lim=19):
            j = vt["n"]
            if j >= lim: return
            t = ("v", j)
            w = [atok[("v", j)]]
            if t in S_IDX: w.append(svt[t]); B = vr(8, 8)
            else: B = self.btile(t)
            a.wait(*w)
            self.smf(accV, vbuf(j), B)
            rdAv(j + 2)
            vt["n"] += 1
        OB = [44, 60]
        def rd_kx(m, tile):
            return a.lg(f"ds_read_b128 {vr(OB[m%2]+8+4*tile,4)}, v{vL16} offset:{LDS_KX + (4*tile+m)*1024}")
        def rd_t(m, which):
            b = OB[m % 2] + 4 * which; base = (LDS_TQ, LDS_TK)[which] + m * 512
            a.lg(f"ds_read_b64_tr_b16 {vr(b,2)}, v{vTr} offset:{base}")
            return a.lg(f"ds_read_b64_tr_b16 {vr(b+2,2)}, v{vTr} offset:{base + 64}")
        kx = {}
        vm_step(); vm_step()
        a("v_cvt_pk_bf16_f32 v42, v8, v9")
        a("v_cvt_pk_bf16_f32 v43, v10, v11")
        tq = a.lg(f"ds_write_b64 v{vTw}, v[42:43] offset:{LDS_TQ}")
        a("v_cvt_pk_bf16_f32 v40, v12, v13")
        a("v_cvt_pk_bf16_f32 v41, v14, v15")
        tk = a.lg(f"ds_write_b64 v{vTw}, v[40:41] offset:{LDS_TK}")
        svt[("v", 19)] = self.ld_s(("v", 19), 8)
        vm_step(); vm_step()
        a.wait(tk, dma.get(14))
        a("s_barrier")
        self.stamp_at(4)
        tt = {}
        tt[(0,0)] = rd_t(0, 0); kx[(0,0)] = rd_kx(0, 0); kx[(0,1)] = rd_kx(0, 1); tt[(0,1)] = rd_t(0, 1)
        tt[(1,0)] = rd_t(1, 0); kx[(1,0)] = rd_kx(1, 0); kx[(1,1)] = rd_kx(1, 1); tt[(1,1)] = rd_t(1, 1)
        vm_step(); vm_step()
        X0, X1, MM = 28, 32, 36
        def sc(m, which):
            b = OB[m % 2]
            D = (X0, X1, MM)[which]; A = (b + 8, b + 12, b + 4)[which]
            need = [tt[(m, 0)], kx[(m, which)] if which < 2 else tt[(m, 1)]]
            a.wait(*need)
            a(f"v_mfma_f32_16x16x32_bf16 {vr(D,4)}, {vr(A,4)}, {vr(b,4)}, {'0' if m == 0 else vr(D,4)}")
        VX0, VX1 = 44, 48
        tvx1 = None
        for m in range(4):
            if m == 3:
                while vt["n"] < 20: vm_step(20)
            sc(m, 0)
            if m < 2: kx[(m+2, 0)] = rd_kx(m + 2, 0)
            if m >= 1 and m <= 2: tt[(m+1, 1)] = rd_t(m + 1, 1)
            sc(m, 1)
            if m < 2: kx[(m+2, 1)] = rd_kx(m + 2, 1)
            sc(m, 2)
            if m < 2: tt[(m+2, 0)] = rd_t(m + 2, 0)
            if m == 2 and "noVX" not in self.opt:
                a.vm(f"buffer_load_dwordx4 {vr(VX0,4)}, v{vL16}, {self.ws()}, s{sVX} offen sc1{NT}")
                tvx1 = a.vm(f"buffer_load_dwordx4 {vr(VX1,4)}, v{vL16}, {self.ws()}, s{sVX} offen offset:1024 sc1{NT}")
        a("v_cvt_pk_bf16_f32 v42, v76, v77")
        a("v_cvt_pk_bf16_f32 v43, v78, v79")
        def batch():
            self.pf_tok = None
            if "noPF" not in self.opt:
                self.pf_tok = a.vm(f"buffer_load_dword v{vFl}, v{vFl}, {self.ws()}, 0 offen sc1")
            else: a(f"v_mov_b32 v{vFl}, 1000")
            if "noKV" not in self.opt:
                a.vm(f"buffer_store_dwordx4 v[40:43], v{vL16}, {self.ws()}, s{sKM} offen sc1")
            if "noFL" not in self.opt:
                a(f"v_mov_b32 v8, s{sStep}")
                a(f"v_mov_b32 v9, 0")
                a.vm(f"buffer_store_dword v8, v9, {self.ws()}, s{sFlM} offen sc1")
        def kv_only():
            if "noKV" not in self.opt:
                a.vm(f"buffer_store_dwordx4 v[40:43], v{vL16}, {self.ws()}, s{sKM} offen sc1")
        late_batch = False
        a(f"s_cmp_eq_u32 s{sStep}, {NSEG-1}")
        a(f"s_cbranch_scc1 {self.exit_label}")
        batch()
        self.stamp_at(5)
        otiles = [t for t in L_TILES if t[0] == "o"]
        slots = [52, 60, 68, 44]
        a(f"v_add_u32 v24, 0x10000, v{vLb}")
        lt = {}
        for k in range(3): lt[otiles[k]] = self.ld_l(otiles[k], slots[k], [vLb, 24])
        a(f"v_cndmask_b32 v76, 0, v42, s[{sLo32}:{sLo32+1}]")
        a(f"v_cndmask_b32 v77, 0, v43, s[{sLo32}:{sLo32+1}]")
        a(f"v_cndmask_b32 v78, 0, v42, s[{sHi32}:{sHi32+1}]")
        a(f"v_cndmask_b32 v79, 0, v43, s[{sHi32}:{sHi32+1}]")
        m_, t_ = 26, 27
        a(f"v_max3_f32 v{m_}, v28, v29, v30")
        a(f"v_max3_f32 v{t_}, v31, v32, v33")
        a(f"v_max3_f32 v{m_}, v{m_}, v34, v35")
        a(f"v_max3_f32 v{t_}, v{t_}, v36, v37")
        a(f"v_max3_f32 v{m_}, v{m_}, v38, v39")
        a(f"v_max_f32 v{m_}, v{m_}, v{t_}")
        a(f"v_mov_b32 v{t_}, v{m_}")
        a(f"v_permlane32_swap_b32 v{m_}, v{t_}")
        a(f"v_max_f32 v{m_}, v{m_}, v{t_}")
        a(f"v_mov_b32 v{t_}, v{m_}")
        a(f"v_permlane16_swap_b32 v{m_}, v{t_}")
        a(f"v_max_f32 v{m_}, v{m_}, v{t_}")
        a(f"v_mul_f32 v{m_}, s{sC}, v{m_}")
        if late_batch:
            batch()
            a(f"s_cmp_eq_u32 s{sStep}, {NSEG-1}")
            a(f"s_cbranch_scc1 {self.exit_label}")
        if "nopk" not in self.opt:
            for r in range(28, 40, 2):
                a(f"v_pk_fma_f32 v[{r}:{r+1}], v[{r}:{r+1}], s[{sC}:{sC+1}], v[{m_}:{m_+1}] op_sel_hi:[1,0,0] neg_lo:[0,0,1] neg_hi:[0,0,1]")
        else:
            for r in range(28, 40): a(f"v_fma_f32 v{r}, v{r}, s{sC}, -v{m_}")
        for r in range(28, 40): a(f"v_exp_f32 v{r}, v{r}")
        a("v_cvt_pk_bf16_f32 v28, v28, v29")
        a("v_cvt_pk_bf16_f32 v29, v30, v31")
        a("v_cvt_pk_bf16_f32 v30, v32, v33")
        a("v_cvt_pk_bf16_f32 v31, v34, v35")
        a("v_cvt_pk_bf16_f32 v36, v36, v37")
        a("v_cvt_pk_bf16_f32 v37, v38, v39")
        self.stamp_at(6)
        O0, O1 = 32, 16
        a.wait(tvx1)
        a(f"v_mfma_f32_16x16x32_bf16 {vr(O0,4)}, {vr(VX0,4)}, v[28:31], 0")
        a(f"v_dot2_f32_bf16 v40, v36, s{sHalf}, 0")
        a(f"v_dot2_f32_bf16 v41, v28, s{sOnes}, 0")
        a(f"v_mfma_f32_16x16x32_bf16 {vr(O1,4)}, {vr(VX1,4)}, v[28:31], 0")
        a(f"v_dot2_f32_bf16 v40, v37, s{sHalf}, v40")
        a(f"v_dot2_f32_bf16 v41, v29, s{sOnes}, v41")
        a(f"v_mfma_f32_16x16x16_bf16 {vr(O0,4)}, v[76:77], v[36:37], {vr(O0,4)}")
        a(f"v_dot2_f32_bf16 v40, v30, s{sOnes}, v40")
        a(f"v_dot2_f32_bf16 v41, v31, s{sOnes}, v41")
        a(f"v_mfma_f32_16x16x16_bf16 {vr(O1,4)}, v[78:79], v[36:37], {vr(O1,4)}")
        lt[otiles[3]] = self.ld_l(otiles[3], slots[3], [vLb, 24])
        a("v_add_f32 v40, v40, v41")
        a("v_mov_b32 v41, v40")
        a("v_permlane32_swap_b32 v40, v41")
        a("v_add_f32 v40, v40, v41")
        a("v_mov_b32 v41, v40")
        a("v_permlane16_swap_b32 v40, v41")
        a("v_add_f32 v40, v40, v41")
        a("v_rcp_f32 v40, v40")
        a(f"v_add_u32 v79, s{sW512}, v{vAoff}")
        for r in (O0, O0+2, O1, O1+2):
            a(f"v_pk_mul_f32 v[{r}:{r+1}], v[{r}:{r+1}], v[40:41] op_sel_hi:[1,0]")
        a(f"v_cvt_pk_bf16_f32 v32, v32, v33")
        a(f"v_cvt_pk_bf16_f32 v33, v34, v35")
        a(f"v_cvt_pk_bf16_f32 v34, v16, v17")
        a(f"v_cvt_pk_bf16_f32 v35, v18, v19")
        two = a.lg(f"ds_write_b128 v79, v[32:35] offset:{LDS_TO}")
        vLo, vLone = 76, 77
        for k in range(8, 28, 2): a(f"v_mov_b64 v[{k}:{k+1}], 0")
        a(f"v_add_u32 v{vLo}, {9*8192}, v{vLb}")
        lone_off(a, vLone, 78)
        a.wait(two)
        a("s_barrier")
        self.stamp_at(7)
        AO = [28, 32, 36, 40]
        aot = [a.lg(f"ds_read_b128 {vr(AO[m],4)}, v{vAoff} offset:{LDS_TO + 512*m}") for m in range(4)]
        acc = [8, 12, 16, 20, 24]
        def pst(b, soff, lone=False):
            if not lone:
                return [f"v_cvt_pk_bf16_f32 v{b}, v{b}, v{b+1}", f"v_cvt_pk_bf16_f32 v{b+1}, v{b+2}, v{b+3}",
                        f"v_cvt_pk_bf16_f32 v{b+2}, v{b+4}, v{b+5}", f"v_cvt_pk_bf16_f32 v{b+3}, v{b+6}, v{b+7}",
                        f"v_bfi_b32 v{b}, 1, s{sTag}, v{b}", f"v_bfi_b32 v{b+2}, 1, s{sTag}, v{b+2}",
                        f"@buffer_store_dwordx4 {vr(b,4)}, v{vPst}, {self.ws()}, s{soff} offen{self.sc}"]
            return [f"v_cvt_pk_bf16_f32 v{b}, v{b}, v{b+1}", f"v_cvt_pk_bf16_f32 v{b+1}, v{b+2}, v{b+3}",
                    f"v_bfi_b32 v{b}, 1, s{sTag}, v{b}",
                    f"@buffer_store_dwordx2 {vr(b,2)}, v{vLone}, {self.ws()}, s{soff} offen{self.sc}"]
        fill = []
        def emit(n):
            for _ in range(n):
                if not fill: return
                x = fill.pop(0)
                if x.startswith("@"): a.vm(x[1:])
                else: a(x)
        nlo = 0
        for n in range(20):
            p, m = divmod(n, 4)
            t = ("o", p, m)
            w = [aot[m]]
            if t in L_IDX: w.append(lt[t]); B = vr(slots[nlo % 4], 8)
            else: B = self.btile(t)
            a.wait(*w)
            self.smf(acc[p], AO[m], B)
            used = 0
            if t in L_IDX:
                nlo += 1
                if nlo + 3 < len(otiles):
                    lt[otiles[nlo+3]] = self.ld_l(otiles[nlo+3], slots[(nlo+3) % 4], None, base9=vLo); used = 2
            if n == 0 and "lx" in self.opt and "noS" not in self.opt: fill += self.lx_dma()
            if n == 9: fill += pst(8, sP0)
            if n == 17: fill += pst(16, sP1)
            emit(2 - used)
        emit(99)
        fill += pst(24, sPl, lone=True); emit(99)
        self.stamp_at(8)
        if self.stamp: a(f"s_mov_b32 s65, s{sSpin}")
        if "eh" in self.opt: self.early_a()
        a(f"s_add_u32 s{sStep}, s{sStep}, 1")
        step_offsets(a)
        nored = a.newlabel("NR")
        a(f"s_cmp_eq_u32 s{sIsRed}, 0")
        a(f"s_cbranch_scc1 {nored}")
        self.reducer()
        a.label(nored)
        a(f"s_waitcnt vmcnt({3 + (0 if 'noKV' in self.opt else 1) + (0 if 'noFL' in self.opt else 1) + (2 if 'lx' in self.opt else 0)})")
        a(f"v_readlane_b32 s{sFlK}, v{vFl}, 32")
        a(f"v_readlane_b32 s{sFlV}, v{vFl}, 48")
        self.check_flag()
        self.stamp_at(9)
        if self.stamp: a(f"s_mov_b32 s68, s{sSpin}")
        a("s_barrier")
        self.stamp_at(10)
        self.dump_stamps()
        a(f"s_xor_b32 s{sTag}, s{sTag}, 1")

    def reducer(self):
        a = self.a
        SEL, ACC, MO, TG, OUT, PO = 40, 60, 64, 65, 66, 68
        a(f"s_add_u32 s{sT1}, s{sPrd}, 4096")
        rd = 2
        for o in self.opt:
            if o.startswith("rd"): rd = int(o[2:])
        if rd: a(f"s_sleep {rd}")
        def setup():
            a(f"v_mov_b32 v70, 0x3f80")
            a(f"v_mov_b32 v71, 0x3f800000")
            a(f"v_bfe_u32 v{TG}, v{vL16}, 4, 1")
            a(f"v_cmp_eq_u32 vcc, 1, v{TG}")
            a(f"v_cndmask_b32 v70, v70, v71, vcc")
            for R in range(4): a(f"v_cndmask_b32 v{SEL+R}, 0, v70, s[{sSel+2*R}:{sSel+2*R+1}]")
            red_moff(a, MO, 70)
            a(f"v_mov_b32 v{PO}, -1"); a(f"v_mov_b32 v{PO+1}, -1")
        def polls():
            toks = []
            for k in range(8):
                sb = sPrd if k < 4 else sT1
                toks.append(a.vm(f"buffer_load_dwordx4 {vr(8+4*k,4)}, v{vL16}, {self.ws()}, s{sb} offen offset:{(k%4)*1024} sc1"))
            return toks
        def reduce(toks, tag):
            a(f"v_mov_b32 v{TG}, {0 if tag == 0 else -1}")
            for k in range(8):
                a.wait(toks[k], force=True)
                if k == 0: self.stamp_at(4, True)
                if k == 7: self.stamp_at(5, True)
                b = 8 + 4 * k
                if tag == 0: a(f"v_or3_b32 v{TG}, v{TG}, v{b}, v{b+2}")
                else:
                    a(f"v_and_b32 v{TG}, v{TG}, v{b}"); a(f"v_and_b32 v{TG}, v{TG}, v{b+2}")
                a(f"v_mfma_f32_16x16x32_bf16 {vr(ACC,4)}, {vr(b,4)}, {vr(SEL,4)}, {'0' if k == 0 else vr(ACC,4)}")
            a(f"v_and_b32 v{TG}, 1, v{TG}")
            a(f"v_cmp_ne_u32 vcc, {tag}, v{TG}")
        self.stamp_at(3, True)
        if "postsetup" not in self.opt: setup()
        toks = polls()
        if "postsetup" in self.opt: setup()
        odd = a.newlabel("RO"); fin = a.newlabel("RF")
        a(f"s_cmp_eq_u32 s{sTag}, 1")
        a(f"s_cbranch_scc1 {odd}")
        base = a.state()
        for tag in (0, 1):
            a.set_state(base)
            if tag == 1: a.label(odd)
            retry = a.newlabel("RR"); ok = a.newlabel("RK")
            reduce(toks, tag)
            a(f"s_cbranch_vccnz {retry}")
            a.label(ok)
            if tag == 0: a(f"s_branch {fin}")
            o = Asm(); o._lab = a._lab + 2000 + tag
            o.label(retry)
            sv = self.a; self.a = o; a_ = a; a = o
            self.stamp_at(3, True)
            t2 = polls(); spin(o); reduce(t2, tag)
            o(f"s_cbranch_vccnz {retry}")
            o(f"s_branch {ok}")
            a = a_; self.a = sv
            self.outofline += o.lines
        a.label(fin)
        a(f"v_cvt_pk_bf16_f32 v{OUT}, v{ACC}, v{ACC+1}")
        a(f"v_cvt_pk_bf16_f32 v{OUT+1}, v{ACC+2}, v{ACC+3}")
        a(f"v_min_u32 v{OUT+1}, s{sFE}, v{OUT+1}")
        a.vm(f"buffer_store_dwordx2 v[{OUT}:{OUT+1}], v{MO}, {self.ws()}, s{sMwr} offen{self.sc}")
        a.vm(f"buffer_store_dwordx2 v[{PO}:{PO+1}], v{MO}, {self.ws()}, s{sMpo} offen{self.sc}")

    def check_flag(self):
        a = self.a
        ok = a.newlabel("FK"); lab = a.newlabel("FS")
        a.label(lab)
        a(f"s_min_u32 s{sT0}, s{sFlK}, s{sFlV}")
        a(f"s_and_b32 s{sT1}, s{sStep}, 15")
        a(f"s_cmp_gt_u32 s{sT0}, s{sT1}")
        a(f"s_cbranch_scc1 {ok}")
        a(f"v_bfe_u32 v40, v{vL16}, 8, 1")
        a(f"v_lshlrev_b32 v40, 8, v40")
        a(f"v_add_u32 v40, s{sFlagCur}, v40")
        a(f"buffer_load_dword v41, v40, {self.ws()}, 0 offen sc1")
        spin(a)
        a("s_waitcnt vmcnt(0)")
        a(f"v_readlane_b32 s{sFlK}, v41, 0")
        a(f"v_readlane_b32 s{sFlV}, v41, 16")
        a(f"s_branch {lab}")
        a.label(ok)


def chain_main(a, fast=True, name="C", stamp=False, timing=False, opt=(), confirm=None):
    global PF_DIST, NT, OPTS, KXNT, WMOD
    WMOD = '' if 'wplain' in opt else ' nt'
    KXNT = '' if 'kxplain' in opt else ' nt'
    OPTS = set(opt)
    PF_DIST = 2 if "pf2" in opt else 1
    NT = "" if "xplain" in opt else " nt"
    def rts(i):
        if "rt" in opt:
            a("s_memrealtime s[88:89]"); a("s_waitcnt lgkmcnt(0)")
            a("s_sub_u32 s88, s88, s98")
            a("v_mov_b32 v8, s88"); a(f"s_lshl_b32 s89, s{sH}, 6"); a(f"s_add_u32 s89, s89, {WS_STAMP + 0x10000 + 4*i}")
            a("v_mov_b32 v9, s89")
            a(f"buffer_store_dword v8, v9, s[{S_WS}:{S_WS+3}], 0 offen")
    rts(0)
    scalar_consts(a)
    lane_consts(a)
    a(f"v_add_u32 v{vLb}, s{sLb}, v{vL16}")
    st = {}
    def hook(k):
        if k == 1: st["m0"] = mem0_loads(a)
        if k == 12: mem0_writes(a, st["m0"])
        if k == 50:
            if confirm: confirm(a)
            init_exchange(a, "" if fast else " sc1")
    rts(1)
    weights_prologue(a, hook)
    rts(2)
    team_barrier(a, FL_TEAM, "" if fast else " sc1")
    rts(3)
    a(f"s_mov_b32 s{sStep}, 0")
    a(f"s_mov_b32 s{sTag}, 0")
    a(f"s_lshr_b32 s{sT1}, s{sH}, 1")
    a(f"s_lshl_b32 s{sT1}, s{sT1}, 2")
    a(f"s_add_u32 s{sFlagOff}, s{sT1}, {FL_KV}")
    lab = a.newlabel("W0")
    a(f"v_bfe_u32 v42, v{vL16}, 8, 1")
    a(f"v_lshlrev_b32 v42, 8, v42")
    a(f"v_add_u32 v42, s{sFlagOff}, v42")
    a.label(lab)
    a(f"buffer_load_dword v{vFl}, v42, s[{S_WS}:{S_WS+3}], 0 offen sc1")
    spin(a)
    a("s_waitcnt vmcnt(0)")
    a(f"v_cmp_eq_u32 vcc, 0, v{vFl}")
    a(f"s_cbranch_vccnz {lab}")
    step_offsets(a)
    rts(4)
    st0 = Step(a, fast, None, opt)
    st0.pre_poll()
    st0.early_a()
    if "lx" in opt:
        for x in st0.lx_dma():
            if x.startswith("@"): a.vm(x[1:])
            else: a(x)
    a.wait_all()
    entry = f"{name}_ENTRY"; top = f"{name}_TOP"; ex = f"{name}_EXIT"
    if timing:
        a("s_memtime s[98:99]"); a("s_waitcnt lgkmcnt(0)")
    a(f"s_branch {entry}")
    a(".p2align 6")
    for o in opt:
        if o.startswith("pad"):
            for _ in range(int(o[3:])): a("s_nop 0")
    a.label(top)
    st = Step(a, fast, stamp, opt)
    st.exit_label = ex
    st.body(entry)
    a(f"s_branch {top}")
    a.lines += st.outofline
    a.label(ex)
    a(f"buffer_store_dwordx4 v[40:43], v{vL16}, s[{S_WS}:{S_WS+3}], s{sKM} offen sc1")
    a(f"v_mov_b32 v8, {NSEG-1}")
    a("v_mov_b32 v9, 0")
    a(f"buffer_store_dword v8, v9, s[{S_WS}:{S_WS+3}], s{sFlM} offen sc1")
    rts(5)
    a.wait_all()
    a("s_barrier")
    a(f"s_lshl_b32 s{sT0}, s{sH}, 7")
    a(f"s_add_u32 s{sT0}, s{sT0}, {FL_M}")
    a(f"v_mov_b32 v43, {NSEG}")
    a(f"v_mov_b32 v40, 0")
    a(f"buffer_store_dword v43, v40, s[{S_WS}:{S_WS+3}], s{sT0} offen sc1")
    a("s_waitcnt vmcnt(0)")
```

```python
from asmlib import *
from layout import *
import struct, math

S_WS = 4
S_A = 8
S_B = 16
sW = 13
sSpin = 74
sT0, sT1, sT2, sT3 = 47, 48, 49, 50
pX, pWq, pWk, pWv, pWo, pW1, pB1, pW2, pOut = 56, 58, 60, 62, 64, 66, 68, 70, 72
WS = f"s[{S_WS}:{S_WS+3}]"
def vr(b, n): return f"v[{b}:{b+n-1}]"
def ar(b, n): return f"a[{b}:{b+n-1}]"
def fbits(x): return struct.unpack("<I", struct.pack("<f", x))[0]
def srd(a, s, lo, nbytes):
    a(f"s_mov_b32 s{s}, s{lo}")
    a(f"s_and_b32 s{s+1}, s{lo+1}, 0xffff")
    a(f"s_mov_b32 s{s+2}, {nbytes}")
    a(f"s_mov_b32 s{s+3}, 0x20000")
SLEEP = 2
WOPT = set()
def spin(a):
    a(f"s_sub_u32 s{sSpin}, s{sSpin}, 1")
    a("s_cbranch_scc1 L_TIMEOUT")
def backoff(a, lab):
    ok = a.newlabel("BK")
    a(f"s_cbranch_vccz {ok}")
    if SLEEP: a(f"s_sleep {SLEEP}")
    a(f"s_branch {lab}")
    a.label(ok)
def poll_ge(a, soff_reg_or_imm, target_sreg, vt=8, label="PG"):
    lab = a.newlabel(label)
    a(f"v_mov_b32 v{vt}, {soff_reg_or_imm}")
    a.label(lab)
    a(f"buffer_load_dword v{vt+1}, v{vt}, {WS}, 0 offen sc1")
    spin(a)
    a("s_waitcnt vmcnt(0)")
    a(f"v_cmp_gt_u32 vcc, {target_sreg}, v{vt+1}")
    backoff(a, lab)
def atomic_inc(a, off, vt=8, by_wave0=True):
    a(f"v_mov_b32 v{vt}, {off}")
    a(f"v_mov_b32 v{vt+1}, 1")
    a("s_mov_b64 exec, 1")
    a(f"buffer_atomic_add v{vt+1}, v{vt}, {WS}, 0 offen")
    a("s_mov_b64 exec, -1")

def ln_role(a, sSeg, confirm=None):
    a("; ==== LayerNorm")
    srd(a, S_A, pX, S * D * 2)
    a("v_and_b32 v1, 63, v0")
    a("v_lshrrev_b32 v2, 3, v1")
    a("v_and_b32 v3, 7, v1")
    a(f"s_lshl_b32 s{sT0}, s{sW}, 3")
    a(f"v_add_u32 v4, s{sT0}, v2")
    a(f"s_movk_i32 s{sT1}, 1280")
    a(f"v_mul_lo_u32 v5, v4, s{sT1}")
    a("v_lshl_add_u32 v5, v3, 4, v5")
    a(f"s_mul_i32 s{sT2}, s{sSeg}, 40960")
    toks = [a.vm(f"buffer_load_dwordx4 {vr(16+4*i,4)}, v5, s[{S_A}:{S_A+3}], s{sT2} offen offset:{128*i}") for i in range(10)]
    a("v_lshrrev_b32 v6, 1, v3")
    a("v_lshlrev_b32 v6, 10, v6")
    a("v_and_b32 v7, 1, v3")
    a("v_lshl_add_u32 v6, v7, 9, v6")
    a("v_lshl_add_u32 v6, v4, 4, v6")
    X = 64
    for i in range(10):
        a.wait(toks[i])
        for r in range(4):
            a(f"v_lshlrev_b32 v{X+8*i+2*r}, 16, v{16+4*i+r}")
            a(f"v_and_b32 v{X+8*i+2*r+1}, 0xffff0000, v{16+4*i+r}")
    def reduce8(r):
        a(f"v_add_f32_dpp v{r}, v{r}, v{r} quad_perm:[1,0,3,2] row_mask:0xf bank_mask:0xf")
        a(f"v_add_f32_dpp v{r}, v{r}, v{r} quad_perm:[2,3,0,1] row_mask:0xf bank_mask:0xf")
        a(f"v_add_f32_dpp v{r}, v{r}, v{r} row_half_mirror row_mask:0xf bank_mask:0xf")
    for k in range(4): a(f"v_add_f32 v{8+k}, v{X+k}, v{X+4+k}")
    for j in range(8, 80): a(f"v_add_f32 v{8+j%4}, v{8+j%4}, v{X+j}")
    a("v_add_f32 v8, v8, v9"); a("v_add_f32 v10, v10, v11"); a("v_add_f32 v8, v8, v10")
    reduce8(8)
    a(f"v_mul_f32 v8, {fbits(1.0/640):#x}, v8")
    for k in range(4): a(f"v_mov_b32 v{9+k}, 0")
    for j in range(80):
        a(f"v_sub_f32 v13, v{X+j}, v8")
        a(f"v_fmac_f32 v{9+j%4}, v13, v13")
    a("v_add_f32 v9, v9, v10"); a("v_add_f32 v11, v11, v12"); a("v_add_f32 v9, v9, v11")
    reduce8(9)
    a(f"v_mul_f32 v9, {fbits(1.0/640):#x}, v9")
    def rb(r):
        a(f"v_cvt_pk_bf16_f32 v{r}, v{r}, v{r}")
        a(f"v_and_b32 v{r}, 0xffff0000, v{r}")
    rb(8); rb(9)
    a(f"v_add_f32 v9, {fbits(1e-5):#x}, v9"); rb(9)
    a("v_sqrt_f32 v9, v9"); rb(9)
    a("v_rcp_f32 v10, v9")
    a("v_fma_f32 v11, -v9, v10, 1.0")
    a("v_fma_f32 v10, v11, v10, v10")
    if confirm: confirm(a)
    for i in range(10):
        for r in range(4):
            x0, x1 = X + 8*i + 2*r, X + 8*i + 2*r + 1
            d = 16 + 4*i + r
            a(f"v_sub_f32 v{x0}, v{x0}, v8")
            a(f"v_sub_f32 v{x1}, v{x1}, v8")
            a(f"v_cvt_pk_bf16_f32 v{d}, v{x0}, v{x1}")
            a(f"v_lshlrev_b32 v{x0}, 16, v{d}")
            a(f"v_and_b32 v{x1}, 0xffff0000, v{d}")
            a(f"v_mul_f32 v{x0}, v{x0}, v10")
            a(f"v_mul_f32 v{x1}, v{x1}, v10")
            a(f"v_cvt_pk_bf16_f32 v{d}, v{x0}, v{x1}")
        a(f"s_add_u32 s{sT3}, s{sT2}, {WS_XN + 4096*i}")
        a.vm(f"buffer_store_dwordx4 {vr(16+4*i,4)}, v6, {WS}, s{sT3} offen sc1")
    a.wait_all_vm()
    a("s_barrier")
    sk = a.newlabel("LNS")
    a(f"s_cmp_lg_u32 s{sW}, 0"); a(f"s_cbranch_scc1 {sk}")
    atomic_inc(a, WS_FLAGS + FL_LN)
    a.label(sk)

sBlk, sSplit, sCol, sStride, sSeg, sOutB, sFlag = 20, 21, 22, 23, 24, 25, 26
sRow, sW2048, sN, sDma = 27, 28, 29, 30
vL16 = 1
def wtile(kk, T):
    if kk < 32: return ar(8*kk + 4*T, 4)
    return vr(192 + 8*(kk-32) + 4*T, 4)
def wtile_base(kk, T):
    return ("a", 8*kk + 4*T) if kk < 32 else ("v", 192 + 8*(kk-32) + 4*T)

def w1_weights(a, perm_sreg):
    a("; ---- projection weights")
    a("v_and_b32 v2, 63, v0")
    a(f"v_lshlrev_b32 v{vL16}, 4, v2")
    a("v_lshrrev_b32 v3, 5, v2")
    a(f"v_mul_lo_u32 v4, v3, s{sStride}")
    a("v_and_b32 v3, 31, v2")
    a("v_lshl_add_u32 v4, v3, 4, v4")
    a("v_lshrrev_b32 v5, 4, v2")
    a("v_and_b32 v6, 1, v5")
    a("v_lshrrev_b32 v5, 1, v5")
    a("v_bfe_u32 v7, v2, 2, 2")
    a("v_lshl_add_u32 v7, v5, 3, v7")
    a("v_lshlrev_b32 v7, 9, v7")
    a("v_and_b32 v8, 3, v2")
    a("v_lshl_add_u32 v8, v6, 2, v8")
    a("v_lshlrev_b32 v9, 2, v8")
    a("v_lshrrev_b32 v10, 2, v8"); a("v_lshlrev_b32 v10, 4, v10")
    a("v_and_b32 v11, 1, v8"); a("v_lshl_add_u32 v10, v11, 3, v10")
    a("v_bfe_u32 v11, v8, 1, 1"); a("v_lshl_add_u32 v10, v11, 2, v10")
    a(f"s_cmp_lg_u32 s{perm_sreg}, 0")
    a("s_cselect_b64 vcc, -1, 0")
    a("v_cndmask_b32 v9, v9, v10, vcc")
    a("v_lshl_add_u32 v7, v9, 1, v7")
    a(f"s_lshl_b32 s{sT0}, s{sW}, 7")
    a(f"v_add_u32 v7, s{sT0}, v7")
    a(f"s_lshl_b32 s{sW2048}, s{sW}, 11")
    a(f"s_mul_i32 s{sRow}, s{sStride}, s{sW}")
    a(f"s_lshl_b32 s{sRow}, s{sRow}, 2")
    a(f"s_add_u32 s{sRow}, s{sRow}, s{sCol}")
    a(f"s_lshl_b32 s{sT2}, s{sStride}, 1")
    a(f"s_lshl_b32 s{sT3}, s{sStride}, 4")
    NS = 16
    toks = {}
    def issue(k):
        for uu in range(2):
            if uu == 0: a(f"s_mov_b32 s{sT0}, s{sRow}")
            else: a(f"s_add_u32 s{sT0}, s{sRow}, s{sT2}")
            a(f"s_add_u32 m0, s{sW2048}, {(k % NS)*8192 + uu*1024}")
            toks[(k, uu)] = a.vm(f"buffer_load_dwordx4 v4, s[{S_A}:{S_A+3}], s{sT0} offen lds")
        a(f"s_add_u32 s{sRow}, s{sRow}, s{sT3}")
    for k in range(NS): issue(k)
    for k in range(40):
        a.wait(toks[(k, 1)])
        a("s_barrier")
        if k >= 1 and k - 1 + NS < 40: issue(k - 1 + NS)
        a(f"v_add_u32 v12, {(k % NS)*8192}, v7")
        last = None
        for T in range(2):
            cls, b = wtile_base(k, T)
            a.lg(f"ds_read_b64_tr_b16 {cls}[{b}:{b+1}], v12 offset:{64*T}")
            last = a.lg(f"ds_read_b64_tr_b16 {cls}[{b+2}:{b+3}], v12 offset:{64*T + 2048}")
        a.wait(last)
    a("s_barrier")

ACC = [[96, 112], [128, 144]]
FR = [16, 20, 24, 28]
sOutW, sSlot, sSlotD, sLast = 31, 32, 33, 34
def w1_loop(a, kind, confirm=None):
    a(f"; ---- projection loop: {kind}")
    a("v_and_b32 v2, 63, v0")
    a("v_and_b32 v3, 15, v2")
    a("v_bfe_u32 v4, v2, 4, 1")
    a("v_lshrrev_b32 v5, 5, v2")
    vE = 6
    if kind == "kq": a(f"v_lshlrev_b32 v{vE}, 12, v4")
    elif kind == "v": a(f"v_lshlrev_b32 v{vE}, 10, v4")
    else:
        a(f"s_mov_b32 s{sT0}, {ACT_KK*1024}")
        a(f"v_mul_lo_u32 v{vE}, v4, s{sT0}")
    a(f"v_lshl_add_u32 v{vE}, v5, 8, v{vE}")
    a(f"v_lshl_add_u32 v{vE}, v3, 4, v{vE}")
    if kind == "f":
        a(f"s_lshl_b32 s{sT0}, s{sW}, 7")
        a(f"s_add_u32 s{sT0}, s{sT0}, s{sCol}")
        a(f"s_cmp_ge_u32 s{sT0}, {F*2}")
        a(f"s_cselect_b32 s{sT1}, 0x7fffffff, 0")
        a(f"v_or_b32 v{vE}, s{sT1}, v{vE}")
        srd(a, S_B, pB1, F * 2)
        a("v_lshlrev_b32 v7, 4, v5")
        tb = []
        for T in range(2):
            for pp in range(2):
                tb.append(a.vm(f"buffer_load_dwordx4 {vr(32+4*(2*T+pp),4)}, v7, s[{S_B}:{S_B+3}], s{sT0} offen offset:{64*T+32*pp}"))
        a.wait(tb[-1])
        for q in range(4):
            for r in range(4):
                a(f"v_lshlrev_b32 v{160+8*q+2*r}, 16, v{32+4*q+r}")
                a(f"v_and_b32 v{160+8*q+2*r+1}, 0xffff0000, v{32+4*q+r}")
    if confirm: confirm(a)
    if "w1rt" in WOPT: a("s_memtime s[92:93]"); a("s_waitcnt lgkmcnt(0)")
    if "w1full" in WOPT:
        a("s_memrealtime s[92:93]"); a("s_waitcnt lgkmcnt(0)"); a("s_sub_u32 s92, s92, s98")
    a(f"s_mov_b32 s{sT3}, 64")
    poll_ge(a, WS_FLAGS + FL_LN, f"s{sT3}")
    if "w1rt" in WOPT: a("s_memtime s[94:95]"); a("s_waitcnt lgkmcnt(0)")
    if "w1full" in WOPT:
        a("s_memrealtime s[94:95]"); a("s_waitcnt lgkmcnt(0)"); a("s_sub_u32 s94, s94, s98")
    a(f"s_mul_i32 s{sDma}, s{sW}, 10240")
    a(f"s_mul_i32 s{sT0}, s{sSeg}, 40960")
    a(f"s_add_u32 s{sT0}, s{sT0}, s{sDma}")
    a(f"s_add_u32 s{sRow}, s{sT0}, {WS_XN}")
    a(f"s_add_u32 s{sLast}, s{sRow}, {15*40960}")
    def dma_list():
        G = []
        for q in range(10):
            g = []
            if q == 0: g.append(f"s_add_u32 s{sT1+4}, s{sSlotD}, s{sDma}")
            if q % 4 == 0:
                g.append(f"s_add_u32 s{sT1+5}, s{sRow}, {q*1024}")
                g.append(f"s_add_u32 m0, s{sT1+4}, {q*1024}")
            g.append(f"buffer_load_dwordx4 v{vL16}, {WS}, s{sT1+5} offen offset:{(q%4)*1024} sc1 lds")
            G.append(g)
        G[-1] += [f"s_add_u32 s{sRow}, s{sRow}, 40960", f"s_min_u32 s{sRow}, s{sRow}, s{sLast}",
                  f"s_add_u32 s{sSlotD}, s{sSlotD}, 40960", f"s_cmp_eq_u32 s{sSlotD}, 122880", f"s_cselect_b32 s{sSlotD}, 0, s{sSlotD}"]
        return G
    def dma():
        for g in dma_list():
            for x in g: a(x)
    def rot(r):
        a(f"s_add_u32 s{r}, s{r}, 40960")
        a(f"s_cmp_eq_u32 s{r}, 122880")
        a(f"s_cselect_b32 s{r}, 0, s{r}")
    def epilogue(par):
        L = []
        for T in range(2):
            A = ACC[par][T]
            for pp in range(2):
                o = 40 + 4 * pp
                if kind == "v":
                    src = [A + 4*pp + k for k in range(4)] + [A + 4*(pp+2) + k for k in range(4)]
                    off = T * 2048 + pp * 512
                else:
                    src = [A + 8*pp + k for k in range(8)]
                    off = T * 1024 + pp * 512
                if kind == "f":
                    bias = 160 + 8 * (2*T + pp)
                    for k0 in range(0, 8, 4):
                        ks = range(k0, k0 + 4)
                        t = lambda k: 48 + (k % 4) * 2
                        L += [f"v_add_f32 v{src[k]}, v{src[k]}, v{bias+k}" for k in ks]
                        L += [f"v_mul_f32 v{t(k)}, {fbits(math.log2(math.e)):#x}, v{src[k]}" for k in ks]
                        L += [f"v_min_f32 v{t(k)}, {fbits(30.0):#x}, v{t(k)}" for k in ks]
                        L += [f"v_exp_f32 v{t(k)}, v{t(k)}" for k in ks]
                        L += [f"v_add_f32 v{t(k)+1}, 2.0, v{t(k)}" for k in ks]
                        L += [f"v_mul_f32 v{t(k)}, v{t(k)}, v{t(k)+1}" for k in ks]
                        L += [f"v_add_f32 v{t(k)+1}, 2.0, v{t(k)}" for k in ks]
                        L += [f"v_rcp_f32 v{t(k)+1}, v{t(k)+1}" for k in ks]
                        L += [f"v_mul_f32 v{src[k]}, v{src[k]}, v{t(k)}" for k in ks]
                        L += [f"v_mul_f32 v{src[k]}, v{src[k]}, v{t(k)+1}" for k in ks]
                for r in range(4): L.append(f"v_cvt_pk_bf16_f32 v{o+r}, v{src[2*r]}, v{src[2*r+1]}")
                if "nost" in WOPT: L.append("s_nop 0")
                else: L.append(f"buffer_store_dwordx4 {vr(o,4)}, v{vE}, {WS}, s{sOutB} offen offset:{off}{'' if 'plainst' in WOPT else ' sc1'}")
        return L
    def publish(val):
        sk = a.newlabel("PB")
        a(f"s_cmp_lg_u32 s{sW}, 0"); a(f"s_cbranch_scc1 {sk}")
        a(f"v_mov_b32 v8, {val}")
        a(f"v_mov_b32 v9, s{sFlag}")
        a(f"buffer_store_dword v8, v9, {WS}, 0 offen sc1")
        a.label(sk)
    def out_base(delta):
        a(f"s_add_u32 s{sT0}, s{sSeg}, s{sN}")
        if delta: a(f"s_sub_u32 s{sT0}, s{sT0}, {delta}")
        if kind == "f": a(f"s_mul_i32 s{sOutB}, s{sT0}, {2*ACT_KK*1024}")
        else: a(f"s_lshl_b32 s{sOutB}, s{sT0}, 18")
        a(f"s_add_u32 s{sOutB}, s{sOutB}, s{sOutW}")
    def segment(par, with_epi, wait):
        if "nost" in WOPT: wait = 10
        a(f"s_waitcnt vmcnt({wait})")
        a("s_barrier")
        dg = dma_list()
        if with_epi:
            a(f"s_sub_u32 s{sT2}, s{sN}, 2")
            a(f"s_max_i32 s{sT2}, s{sT2}, 0")
            publish(f"s{sT2}")
            out_base(1)
        fill = epilogue(1 - par) if (with_epi and "noepi" not in WOPT) else []
        per = -(-len(fill) // 74) if fill else 0
        a(f"v_add_u32 v12, s{sSlot}, v{vL16}")
        rt = {}
        def rd(kk): rt[kk] = a.lg(f"ds_read_b128 {vr(FR[kk%4],4)}, v12 offset:{kk*1024}")
        rd(0); rd(1); rd(2)
        for kk in range(40):
            a.wait(rt[kk])
            for T in range(2):
                Dr = vr(ACC[par][T], 16); C = "0" if kk == 0 else Dr
                if kind == "v": a(f"v_mfma_f32_32x32x16_bf16 {Dr}, {vr(FR[kk%4],4)}, {wtile(kk,T)}, {C}")
                else: a(f"v_mfma_f32_32x32x16_bf16 {Dr}, {wtile(kk,T)}, {vr(FR[kk%4],4)}, {C}")
                if T == 0 and kk + 3 < 40: rd(kk + 3)
                if T == 1 and kk % 3 == 0 and dg:
                    for x in dg.pop(0): a(x)
                if kk >= 3:
                    for _ in range(per):
                        if fill: a(fill.pop(0))
        assert not dg
        for x in fill: a(x)
        rot(sSlot)
        a(f"s_add_u32 s{sN}, s{sN}, 1")
    a(f"s_mov_b32 s{sN}, 0")
    a(f"s_mov_b32 s{sSlot}, 0")
    a(f"s_mov_b32 s{sSlotD}, 0")
    a("s_barrier")
    dma(); dma()
    segment(0, False, 10)
    top = a.newlabel("W1T"); mid = a.newlabel("W1M"); done = a.newlabel("W1D")
    segment(1, True, 10)
    a.label(top)
    segment(0, True, 14)
    segment(1, True, 14)
    a(f"s_cmp_lt_u32 s{sN}, 16"); a(f"s_cbranch_scc1 {top}")
    out_base(1)
    for x in epilogue(1): a(x)
    a("s_waitcnt vmcnt(0)")
    a("s_barrier")
    publish("16")
    if "w1full" in WOPT:
        a("s_memrealtime s[90:91]"); a("s_waitcnt lgkmcnt(0)"); a("s_sub_u32 s90, s90, s98")
        a("v_mov_b32 v8, s92"); a("v_mov_b32 v9, s94"); a("v_mov_b32 v10, s90")
        a("s_lshl_b32 s90, s99, 4"); a(f"s_add_u32 s90, s90, {WS_STAMP + 0x40000}"); a("v_mov_b32 v11, 0")
        a(f"buffer_store_dwordx3 v[8:10], v11, {WS}, s90 offen")

def w1_role(a, confirm=None):
    a("; ==== projection GEMM role")
    lk, lv, lq, lf, go = (a.newlabel(x) for x in ("W1K", "W1V", "W1Q", "W1F", "W1G"))
    a(f"s_lshl_b32 s{sSeg}, s{sSplit}, 4")
    a(f"s_and_b32 s{sT2}, s{sBlk}, 15")
    a(f"s_lshl_b32 s{sCol}, s{sT2}, 9")
    a(f"s_movk_i32 s{sStride}, 8192")
    a(f"s_lshl_b32 s{sT0}, s{sT2}, 1")
    a(f"s_lshr_b32 s{sT1}, s{sW}, 1")
    a(f"s_add_u32 s{sT0}, s{sT0}, s{sT1}")
    a(f"s_lshl_b32 s{sT0}, s{sT0}, 13")
    a(f"s_and_b32 s{sT1}, s{sW}, 1")
    a(f"s_lshl_b32 s{sFlag}, s{sSplit}, 4")
    a(f"s_add_u32 s{sFlag}, s{sFlag}, s{sT2}")
    a(f"s_lshl_b32 s{sFlag}, s{sFlag}, 2")
    a(f"s_cmp_lt_u32 s{sBlk}, 16"); a(f"s_cbranch_scc1 {lk}")
    a(f"s_cmp_lt_u32 s{sBlk}, 32"); a(f"s_cbranch_scc1 {lv}")
    a(f"s_cmp_lt_u32 s{sBlk}, 48"); a(f"s_cbranch_scc1 {lq}")
    a.label(lf)
    a(f"s_sub_u32 s{sT2}, s{sBlk}, 48")
    a(f"s_lshl_b32 s{sCol}, s{sT2}, 9")
    a(f"s_movk_i32 s{sStride}, {F*2}")
    a(f"s_lshl_b32 s{sT0}, s{sT2}, 3")
    a(f"s_lshl_b32 s{sT1}, s{sW}, 1")
    a(f"s_add_u32 s{sT0}, s{sT0}, s{sT1}")
    a(f"s_lshl_b32 s{sT0}, s{sT0}, 10")
    a(f"s_add_u32 s{sOutW}, s{sT0}, {WS_ACT}")
    a(f"s_lshl_b32 s{sFlag}, s{sSplit}, 3")
    a(f"s_add_u32 s{sFlag}, s{sFlag}, s{sT2}")
    a(f"s_lshl_b32 s{sFlag}, s{sFlag}, 2")
    a(f"s_add_u32 s{sFlag}, s{sFlag}, {WS_FLAGS + FL_ACT}")
    srd(a, S_A, pW1, D * F * 2)
    a(f"s_mov_b32 s{sT3+1}, 1")
    w1_weights(a, sT3 + 1)
    w1_loop(a, "f", confirm)
    end = a.newlabel("W1E")
    a(f"s_branch {end}")
    for lab, ptr, base, fl in ((lk, pWk, WS_KX, FL_KV), (lq, pWq, WS_QX, FL_Q)):
        a.label(lab)
        a(f"s_lshl_b32 s{sT1}, s{sT1}, 11")
        a(f"s_add_u32 s{sOutW}, s{sT0}, s{sT1}")
        a(f"s_add_u32 s{sOutW}, s{sOutW}, {base}")
        a(f"s_add_u32 s{sFlag}, s{sFlag}, {WS_FLAGS + fl}")
        srd(a, S_A, ptr, D * H * DH * 2)
        if lab == lk: a(f"s_branch {go}")
    a.label(go)
    a(f"s_mov_b32 s{sT3+1}, 1")
    w1_weights(a, sT3 + 1)
    w1_loop(a, "kq", confirm)
    a(f"s_branch {end}")
    a.label(lv)
    a(f"s_lshl_b32 s{sT1}, s{sT1}, 12")
    a(f"s_add_u32 s{sOutW}, s{sT0}, s{sT1}")
    a(f"s_add_u32 s{sOutW}, s{sOutW}, {WS_VX}")
    a(f"s_add_u32 s{sFlag}, s{sFlag}, {WS_FLAGS + FL_KV + 256}")
    srd(a, S_A, pWv, D * H * DH * 2)
    a(f"s_mov_b32 s{sT3+1}, 0")
    w1_weights(a, sT3 + 1)
    w1_loop(a, "v", confirm)
    a.label(end)

sAi, sSegA, sHead, sBase = 20, 21, 22, 23
sMsk = 36
sLo32, sHi32 = 44, 52
sCc, sOnes, sHalf = 38 + 50, 39 + 50, 40 + 50
def softmax_lane_consts(a):
    c = fbits((128 ** -0.5) * math.log2(math.e))
    a(f"s_mov_b32 s{sCc}, {c:#x}"); a(f"s_mov_b32 s{sOnes}, 0x3f803f80"); a(f"s_mov_b32 s{sHalf}, 0x3f003f00")

def att_role(a):
    a("; ==== attention role")
    softmax_lane_consts(a)
    a("v_and_b32 v2, 63, v0")
    a(f"v_lshlrev_b32 v{vL16}, 4, v2")
    a("v_and_b32 v3, 15, v2")
    a("v_lshrrev_b32 v4, 4, v2")
    for jj in range(4):
        a(f"v_lshl_add_u32 v5, v4, 2, {jj}")
        a(f"v_cmp_le_u32 s[{sMsk+2*jj}:{sMsk+2*jj+1}], v5, v3")
    a(f"v_cmp_gt_u32 s[{sLo32}:{sLo32+1}], 32, v2")
    a(f"v_cmp_le_u32 s[{sHi32}:{sHi32+1}], 32, v2")
    a("v_lshrrev_b32 v5, 1, v4"); a("v_lshl_add_u32 v5, v5, 4, v3"); a("v_lshlrev_b32 v5, 4, v5")
    a("v_and_b32 v6, 1, v4"); a("v_lshl_add_u32 v6, v6, 3, v5")
    a(f"s_lshl_b32 s{sT0}, s{sW}, 11"); a(f"v_add_u32 v6, s{sT0}, v6")
    a("v_lshrrev_b32 v5, 2, v3"); a("v_lshl_add_u32 v5, v4, 3, v5"); a("v_lshlrev_b32 v5, 4, v5")
    a("v_and_b32 v7, 1, v3"); a("v_lshl_add_u32 v7, v7, 3, v5"); a(f"v_add_u32 v7, s{sT0}, v7")
    a(f"s_and_b32 s{sHead}, s{sAi}, 7"); a(f"s_lshl_b32 s{sHead}, s{sHead}, 2"); a(f"s_add_u32 s{sHead}, s{sHead}, s{sW}")
    a(f"s_lshr_b32 s{sSegA}, s{sAi}, 3")
    a("v_and_b32 v8, 3, v2")
    top = a.newlabel("ATT"); end = a.newlabel("ATE")
    a.label(top)
    a(f"s_lshr_b32 s{sT1}, s{sSegA}, 4"); a(f"s_lshl_b32 s{sT1}, s{sT1}, 6")
    a(f"s_lshr_b32 s{sT2}, s{sHead}, 1"); a(f"s_lshl_b32 s{sT2}, s{sT2}, 2"); a(f"s_add_u32 s{sT1}, s{sT1}, s{sT2}")
    a(f"s_add_u32 s{sT2}, s{sT1}, {WS_FLAGS + FL_KV}"); a(f"v_mov_b32 v9, s{sT2}")
    a(f"s_add_u32 s{sT2}, s{sT1}, {WS_FLAGS + FL_KV + 256}"); a(f"v_mov_b32 v10, s{sT2}")
    a("v_cmp_eq_u32 vcc, 2, v8"); a("v_cndmask_b32 v9, v9, v10, vcc")
    a(f"s_add_u32 s{sT2}, s{sT1}, {WS_FLAGS + FL_Q}"); a(f"v_mov_b32 v10, s{sT2}")
    a("v_cmp_eq_u32 vcc, 3, v8"); a("v_cndmask_b32 v9, v9, v10, vcc")
    a(f"s_and_b32 s{sT0}, s{sSegA}, 15"); a(f"s_add_u32 s{sT0}, s{sT0}, 1")
    pl = a.newlabel("ATP")
    a.label(pl)
    a(f"buffer_load_dword v10, v9, {WS}, 0 offen sc1")
    spin(a)
    a("s_waitcnt vmcnt(0)")
    a(f"v_cmp_gt_u32 vcc, s{sT0}, v10")
    backoff(a, pl)
    a(f"s_lshl_b32 s{sBase}, s{sSegA}, 5"); a(f"s_add_u32 s{sBase}, s{sBase}, s{sHead}")
    KV, Q, K, V = 16, 32, 64, 96
    a(f"s_lshl_b32 s{sT1}, s{sBase}, 13")
    def ld8(reg, base):
        toks = []
        for half in range(2):
            a(f"s_add_u32 s{sT0}, s{sT1}, {base + 4096*half}")
            for q in range(4):
                toks.append(a.vm(f"buffer_load_dwordx4 {vr(reg+16*half+4*q,4)}, v{vL16}, {WS}, s{sT0} offen offset:{1024*q} sc1"))
        return toks
    tq = ld8(Q, WS_QX); tk = ld8(K, WS_KX); tv = ld8(V, WS_VX)
    a.wait(tq[-1], tk[-1])
    XA = {0: (160, None), 1: (224, 228)}
    for qt in range(2):
        X0, X1 = XA[qt]
        for m in range(4):
            B = vr(Q + 16*qt + 4*m, 4)
            c = lambda r: "0" if m == 0 else vr(r, 4)
            a(f"v_mfma_f32_16x16x32_bf16 {vr(X0,4)}, {vr(K+4*m,4)}, {B}, {c(X0)}")
            if qt == 1: a(f"v_mfma_f32_16x16x32_bf16 {vr(X1,4)}, {vr(K+16+4*m,4)}, {B}, {c(X1)}")
    a.wait(tv[-1])
    a(f"s_lshl_b32 s{sT0}, s{sHead}, 7"); a(f"s_add_u32 s{sT0}, s{sT0}, {WS_FLAGS + FL_M}")
    a(f"s_add_u32 s{sT3}, s{sSegA}, 1")
    poll_ge(a, f"s{sT0}", f"s{sT3}", vt=9, label="ATM")
    a(f"s_lshl_b32 s{sT0}, s{sBase}, 12"); a(f"s_add_u32 s{sT0}, s{sT0}, {WS_KM}")
    tkv = [a.vm(f"buffer_load_dwordx4 {vr(KV+4*w,4)}, v{vL16}, {WS}, s{sT0} offen offset:{1024*w} sc1") for w in range(4)]
    KM = 128; VLO = 144; VHI = 152
    tw = None
    for w in range(4):
        a.wait(tkv[w])
        tw = a.lg(f"ds_write_b64 v6, {vr(KV+4*w,2)} offset:{512*w}")
        a(f"v_cndmask_b32 v{VLO+2*w}, 0, v{KV+4*w+2}, s[{sLo32}:{sLo32+1}]")
        a(f"v_cndmask_b32 v{VLO+2*w+1}, 0, v{KV+4*w+3}, s[{sLo32}:{sLo32+1}]")
        a(f"v_cndmask_b32 v{VHI+2*w}, 0, v{KV+4*w+2}, s[{sHi32}:{sHi32+1}]")
        a(f"v_cndmask_b32 v{VHI+2*w+1}, 0, v{KV+4*w+3}, s[{sHi32}:{sHi32+1}]")
    a.wait(tw)
    tkm = None
    for m in range(4):
        a.lg(f"ds_read_b64_tr_b16 {vr(KM+4*m,2)}, v7 offset:{512*m}")
        tkm = a.lg(f"ds_read_b64_tr_b16 {vr(KM+4*m+2,2)}, v7 offset:{512*m+64}")
    a.wait(tkm)
    NEG = fbits(-1e30)
    a(f"v_mov_b32 v15, {NEG:#x}")
    O = 192
    MMq = {0: 168, 1: 232}
    for m in range(4):
        for qt in range(2):
            a(f"v_mfma_f32_16x16x32_bf16 {vr(MMq[qt],4)}, {vr(KM+4*m,4)}, {vr(Q+16*qt+4*m,4)}, {'0' if m == 0 else vr(MMq[qt],4)}")
    for qt in range(2):
        X0, X1 = XA[qt]; MM = MMq[qt]
        diag = X0 if qt == 0 else X1
        for jj in range(4): a(f"v_cndmask_b32 v{diag+jj}, v15, v{diag+jj}, s[{sMsk+2*jj}:{sMsk+2*jj+1}]")
        vals = list(range(X0, X0+4)) + (list(range(X1, X1+4)) if qt == 1 else []) + list(range(MM, MM+4))
        m_, t_ = 172, 173
        a(f"v_max3_f32 v{m_}, v{vals[0]}, v{vals[1]}, v{vals[2]}")
        rest = vals[3:]
        while len(rest) >= 2: a(f"v_max3_f32 v{m_}, v{m_}, v{rest[0]}, v{rest[1]}"); rest = rest[2:]
        if rest: a(f"v_max_f32 v{m_}, v{m_}, v{rest[0]}")
        for p in ("32", "16"):
            a(f"v_mov_b32 v{t_}, v{m_}"); a(f"v_permlane{p}_swap_b32 v{m_}, v{t_}"); a(f"v_max_f32 v{m_}, v{m_}, v{t_}")
        a(f"v_mul_f32 v{m_}, s{sCc}, v{m_}")
        for r in vals: a(f"v_fma_f32 v{r}, v{r}, s{sCc}, -v{m_}")
        for r in vals: a(f"v_exp_f32 v{r}, v{r}")
        PX, PM = 176, 180
        a(f"v_cvt_pk_bf16_f32 v{PX}, v{X0}, v{X0+1}"); a(f"v_cvt_pk_bf16_f32 v{PX+1}, v{X0+2}, v{X0+3}")
        if qt == 1:
            a(f"v_cvt_pk_bf16_f32 v{PX+2}, v{X1}, v{X1+1}"); a(f"v_cvt_pk_bf16_f32 v{PX+3}, v{X1+2}, v{X1+3}")
        else:
            a(f"v_mov_b32 v{PX+2}, 0"); a(f"v_mov_b32 v{PX+3}, 0")
        a(f"v_cvt_pk_bf16_f32 v{PM}, v{MM}, v{MM+1}"); a(f"v_cvt_pk_bf16_f32 v{PM+1}, v{MM+2}, v{MM+3}")
        for et in range(8):
            a(f"v_mfma_f32_16x16x32_bf16 {vr(O+4*et,4)}, {vr(V+4*et,4)}, {vr(PX,4)}, 0")
        for et in range(8):
            w, t = et >> 1, et & 1
            A = (VLO if t == 0 else VHI) + 2 * w
            a(f"v_mfma_f32_16x16x16_bf16 {vr(O+4*et,4)}, {vr(A,2)}, {vr(PM,2)}, {vr(O+4*et,4)}")
        l_, u_ = 174, 175
        a(f"v_dot2_f32_bf16 v{l_}, v{PM}, s{sHalf}, 0"); a(f"v_dot2_f32_bf16 v{u_}, v{PX}, s{sOnes}, 0")
        a(f"v_dot2_f32_bf16 v{l_}, v{PM+1}, s{sHalf}, v{l_}"); a(f"v_dot2_f32_bf16 v{u_}, v{PX+1}, s{sOnes}, v{u_}")
        a(f"v_dot2_f32_bf16 v{l_}, v{PX+2}, s{sOnes}, v{l_}"); a(f"v_dot2_f32_bf16 v{u_}, v{PX+3}, s{sOnes}, v{u_}")
        a(f"v_add_f32 v{l_}, v{l_}, v{u_}")
        for p in ("32", "16"):
            a(f"v_mov_b32 v{u_}, v{l_}"); a(f"v_permlane{p}_swap_b32 v{l_}, v{u_}"); a(f"v_add_f32 v{l_}, v{l_}, v{u_}")
        a(f"v_rcp_f32 v{l_}, v{l_}")
        a(f"s_lshl_b32 s{sT0}, s{sSegA}, 1"); a(f"s_add_u32 s{sT0}, s{sT0}, {qt}")
        a(f"s_lshl_b32 s{sT0}, s{sT0}, 7"); a(f"s_lshl_b32 s{sT2}, s{sHead}, 2"); a(f"s_add_u32 s{sT0}, s{sT0}, s{sT2}")
        a(f"s_lshl_b32 s{sT0}, s{sT0}, 10"); a(f"s_add_u32 s{sT0}, s{sT0}, {WS_OX}")
        for m in range(4):
            b = O + 8*m
            for k in range(8): a(f"v_mul_f32 v{b+k}, v{b+k}, v{l_}")
            for r in range(4): a(f"v_cvt_pk_bf16_f32 v{b+r}, v{b+2*r}, v{b+2*r+1}")
            a.vm(f"buffer_store_dwordx4 {vr(b,4)}, v{vL16}, {WS}, s{sT0} offen offset:{1024*m} sc1")
    a.wait_all_vm()
    a(f"s_lshl_b32 s{sT0}, s{sSegA}, 7"); a(f"s_add_u32 s{sT0}, s{sT0}, {WS_FLAGS + FL_OX}")
    atomic_inc(a, f"s{sT0}", vt=12)
    a(f"s_add_u32 s{sSegA}, s{sSegA}, 4")
    a(f"s_cmp_lt_u32 s{sSegA}, {NSEG}"); a(f"s_cbranch_scc1 {top}")
    a("s_waitcnt vmcnt(0)")

sBi, sCb, sTT = 20, 21, 22
def bw(kk, T):
    return (ar(8*kk + 4*T, 4), ("a", 8*kk + 4*T)) if kk < 32 else (vr(144 + 8*(kk-32) + 4*T, 4), ("v", 144 + 8*(kk-32) + 4*T))
def out_role(a):
    a("; ==== output GEMM role")
    a(f"s_mul_i32 s{sT0}, s{sBi}, 13108"); a(f"s_lshr_b32 s{sTT}, s{sT0}, 18")
    a(f"s_mul_i32 s{sT0}, s{sTT}, 20"); a(f"s_sub_u32 s{sCb}, s{sBi}, s{sT0}")
    a("v_and_b32 v2, 63, v0")
    a(f"v_lshlrev_b32 v{vL16}, 4, v2")
    a("v_lshrrev_b32 v3, 2, v2")
    a("v_and_b32 v4, 3, v2")
    a("v_bfe_u32 v5, v3, 2, 1"); a("v_lshlrev_b32 v5, 4, v5")
    a("v_lshrrev_b32 v6, 3, v3"); a("v_lshl_add_u32 v5, v6, 2, v5")
    a("v_and_b32 v6, 3, v3"); a("v_add_u32 v5, v5, v6")
    a(f"s_movk_i32 s{sT0}, 1280")
    a(f"v_mul_lo_u32 v5, v5, s{sT0}"); a("v_lshl_add_u32 v5, v4, 4, v5")
    a(f"v_mul_lo_u32 v6, v3, s{sT0}"); a("v_lshl_add_u32 v6, v4, 4, v6")
    a("v_lshrrev_b32 v7, 4, v2"); a("v_lshlrev_b32 v7, 3, v7"); a("v_bfe_u32 v8, v2, 2, 2"); a("v_add_u32 v7, v7, v8")
    a("v_lshlrev_b32 v7, 6, v7"); a("v_and_b32 v8, 3, v2"); a("v_lshl_add_u32 v7, v8, 4, v7")
    sRing = 24
    a(f"s_lshl_b32 s{sRing}, s{sW}, 15"); a(f"v_add_u32 v7, s{sRing}, v7")
    srd(a, S_A, pWo, H * DH * D * 2)
    srd(a, S_B, pW2, F * D * 2)
    sBo, sB2 = 25, 26
    a(f"s_lshl_b32 s{sT0}, s{sCb}, 6")
    a(f"s_mul_i32 s{sBo}, s{sW}, {1024*1280}"); a(f"s_add_u32 s{sBo}, s{sBo}, s{sT0}")
    a(f"s_mul_i32 s{sB2}, s{sW}, {14*32*1280}"); a(f"s_add_u32 s{sB2}, s{sB2}, s{sT0}")
    toks = {}
    def issue(k):
        slot = k % 16
        for u in range(2):
            if k < 32:
                a(f"s_add_u32 s{sT0}, s{sBo}, {(32*k + 8*u)*1280}")
                a(f"s_add_u32 m0, s{sRing}, {slot*2048 + u*1024}")
                toks[(k, u)] = a.vm(f"buffer_load_dwordx4 v5, s[{S_A}:{S_A+3}], s{sT0} offen lds")
            else:
                a(f"s_add_u32 s{sT0}, s{sB2}, {(32*(k-32) + 16*u)*1280}")
                a(f"s_add_u32 m0, s{sRing}, {slot*2048 + u*1024}")
                toks[(k, u)] = a.vm(f"buffer_load_dwordx4 v6, s[{S_B}:{S_B+3}], s{sT0} offen lds")
    for k in range(16): issue(k)
    for k in range(46):
        a.wait(toks[(k, 1)])
        last = None
        for T in range(2):
            cls, b = bw(k, T)[1]
            a.lg(f"ds_read_b64_tr_b16 {cls}[{b}:{b+1}], v7 offset:{(k%16)*2048 + 8*T}")
            last = a.lg(f"ds_read_b64_tr_b16 {cls}[{b+2}:{b+3}], v7 offset:{(k%16)*2048 + 8*T + 256}")
        a.wait(last)
        if k + 16 < 46: issue(k + 16)
    a("s_barrier")
    srd(a, S_A, pX, S * D * 2)
    srd(a, S_B, pOut, S * D * 2)
    sGrp, sHf, sActOk = 30, 31, 32
    a(f"s_mov_b32 s{sGrp}, s{sTT}")
    a(f"s_mov_b32 s{sActOk}, 0")
    a("v_and_b32 v4, 7, v2"); a("v_min_u32 v4, 6, v4"); a("v_lshlrev_b32 v4, 2, v4")
    RED = 131072
    a(f"s_lshl_b32 s{sT0}, s{sW}, 12"); a(f"v_add_u32 v5, s{sT0}, v{vL16}"); a(f"v_add_u32 v5, {RED}, v5")
    a(f"v_add_u32 v6, {RED}, v{vL16}")
    sSg, sOx, sAc = 27, 28, 29
    AB, AA, FB = 32, 48, 64
    def lane_offsets(half):
        if not half:
            a("v_and_b32 v3, 15, v2"); a(f"s_movk_i32 s{sT0}, 1280"); a(f"v_mul_lo_u32 v3, v3, s{sT0}")
            a("v_lshrrev_b32 v8, 4, v2"); a("v_lshl_add_u32 v3, v8, 4, v3")
            a(f"s_lshl_b32 s{sT0}, s{sCb}, 6"); a(f"v_add_u32 v3, s{sT0}, v3")
            a("v_mov_b32 v7, v3"); a(f"v_mov_b32 v10, v{vL16}")
        else:
            a(f"s_and_b32 s{sHf}, s{sGrp}, 1")
            a("v_and_b32 v3, 7, v2"); a(f"s_lshl_b32 s{sT0}, s{sHf}, 3"); a(f"v_add_u32 v3, s{sT0}, v3")
            a(f"s_movk_i32 s{sT0}, 1280"); a(f"v_mul_lo_u32 v3, v3, s{sT0}")
            a("v_lshrrev_b32 v8, 4, v2"); a("v_lshl_add_u32 v3, v8, 4, v3")
            a(f"s_lshl_b32 s{sT0}, s{sCb}, 6"); a(f"v_add_u32 v3, s{sT0}, v3")
            a("v_bfe_u32 v8, v2, 3, 1"); a("v_lshlrev_b32 v8, 30, v8"); a("v_or_b32 v7, v3, v8")
            a("v_bfe_u32 v10, v2, 3, 1"); a("v_lshlrev_b32 v10, 10, v10")
            a("v_lshrrev_b32 v11, 4, v2"); a("v_lshl_add_u32 v10, v11, 8, v10")
            a("v_and_b32 v11, 7, v2"); a("v_lshl_add_u32 v10, v11, 4, v10")
            a(f"s_lshl_b32 s{sT0}, s{sHf}, 7"); a(f"v_add_u32 v10, s{sT0}, v10")
    def task(half):
        a(f"s_lshr_b32 s{sSg}, s{sTT}, 1")
        ok = a.newlabel("OPK")
        a(f"s_lshr_b32 s{sT0}, s{sSg}, 4"); a(f"s_add_u32 s{sT2}, s{sT0}, 1")
        a(f"s_cmp_ge_u32 s{sActOk}, s{sT2}"); a(f"s_cbranch_scc1 {ok}")
        a(f"s_lshl_b32 s{sT0}, s{sT0}, 5"); a(f"s_add_u32 s{sT0}, s{sT0}, {WS_FLAGS + FL_ACT}")
        a(f"v_add_u32 v8, s{sT0}, v4")
        a(f"s_and_b32 s{sT1}, s{sSg}, 15"); a(f"s_add_u32 s{sT1}, s{sT1}, 1")
        pl = a.newlabel("OP1")
        a.label(pl)
        a(f"buffer_load_dword v9, v8, {WS}, 0 offen sc1")
        spin(a)
        a("s_waitcnt vmcnt(0)")
        a(f"v_cmp_gt_u32 vcc, s{sT1}, v9")
        backoff(a, pl)
        a("v_cmp_gt_u32 vcc, 16, v9")
        a(f"s_cbranch_vccnz {ok}")
        a(f"s_mov_b32 s{sActOk}, s{sT2}")
        a.label(ok)
        a(f"s_mul_i32 s{sT0}, s{sTT}, {16*1280}")
        tx = a.vm(f"buffer_load_dwordx4 v[12:15], v3, s[{S_A}:{S_A+3}], s{sT0} offen")
        a(f"s_mul_i32 s{sAc}, s{sTT}, {ACT_KK*1024}"); a(f"s_add_u32 s{sAc}, s{sAc}, {WS_ACT}")
        np_ = 2 if half else 1
        def mm(acc, kk0, q, first):
            for par in range(np_):
                for T in range(2):
                    D_ = vr(acc+8*par+4*T, 4)
                    a(f"v_mfma_f32_16x16x32_bf16 {D_}, {bw(kk0+np_*q+par,T)[0]}, {vr(FB+4*(q%16),4)}, {'0' if first else D_}")
        ft = {}
        nq = 14 // np_
        for q in range(nq):
            a(f"s_mul_i32 s{sT0}, s{sW}, 14"); a(f"s_add_u32 s{sT0}, s{sT0}, {np_*q}"); a(f"s_min_u32 s{sT0}, s{sT0}, {54-np_}")
            a(f"s_lshl_b32 s{sT0}, s{sT0}, 10"); a(f"s_add_u32 s{sT0}, s{sT0}, s{sAc}")
            ft[q] = a.vm(f"buffer_load_dwordx4 {vr(FB+4*q,4)}, v10, {WS}, s{sT0} offen sc1")
        for q in range(nq):
            a.wait(ft[q]); mm(AB, 32, q, q == 0)
        a(f"s_lshl_b32 s{sT0}, s{sSg}, 7"); a(f"s_add_u32 s{sT0}, s{sT0}, {WS_FLAGS + FL_OX}")
        a(f"s_mov_b32 s{sT3}, 32")
        pw = a.newlabel("OPW")
        a(f"s_cmp_lg_u32 s{sW}, 0"); a(f"s_cbranch_scc1 {pw}")
        poll_ge(a, f"s{sT0}", f"s{sT3}", vt=8, label="OP2")
        a.label(pw)
        a("s_barrier")
        a(f"s_lshl_b32 s{sOx}, s{sTT}, 7"); a(f"s_lshl_b32 s{sT0}, s{sW}, 5"); a(f"s_add_u32 s{sOx}, s{sOx}, s{sT0}")
        a(f"s_lshl_b32 s{sOx}, s{sOx}, 10"); a(f"s_add_u32 s{sOx}, s{sOx}, {WS_OX}")
        ot = {}
        no = 32 // np_
        def ld_ox(q):
            st = 1024 * np_; per = 4 // np_
            a(f"s_add_u32 s{sT0}, s{sOx}, {(q//per)*per*st}")
            ot[q] = a.vm(f"buffer_load_dwordx4 {vr(FB+4*(q%16),4)}, v10, {WS}, s{sT0} offen offset:{(q%per)*st} sc1")
        for q in range(16): ld_ox(q)
        for q in range(no):
            a.wait(ot[q]); mm(AA, 0, q, q == 0)
            if q + 16 < no: ld_ox(q + 16)
        if half:
            for base in (AA, AB):
                for k in range(8):
                    a(f"v_add_f32_dpp v{base+k}, v{base+8+k}, v{base+k} row_ror:8 row_mask:0xf bank_mask:0xf")
        a("s_barrier")
        for k, r in enumerate((AA, AA+4, AB, AB+4)):
            a.lg(f"ds_write_b128 v5, {vr(r,4)} offset:{1024*k}")
        a.wait_all_lg()
        a("s_barrier")
        nx = a.newlabel("ONX")
        a(f"s_cmp_lg_u32 s{sW}, 0"); a(f"s_cbranch_scc1 {nx}")
        rd = []
        for w in range(1, 4):
            for k in range(4):
                rd.append(a.lg(f"ds_read_b128 {vr(FB+16*(w-1)+4*k,4)}, v6 offset:{4096*w + 1024*k}"))
        for w in range(1, 4):
            a.wait(rd[4*(w-1)+3])
            for k, r in enumerate((AA, AA+4, AB, AB+4)):
                for j in range(4): a(f"v_add_f32 v{r+j}, v{r+j}, v{FB+16*(w-1)+4*k+j}")
        a.wait(tx, force=True)
        for pr in range(4):
            A0, A1 = AA + 2*pr, AA + 2*pr + 1
            B0, B1 = AB + 2*pr, AB + 2*pr + 1
            a(f"v_cvt_pk_bf16_f32 v16, v{A0}, v{A1}")
            a(f"v_cvt_pk_bf16_f32 v17, v{B0}, v{B1}")
            a("v_lshlrev_b32 v18, 16, v16"); a("v_and_b32 v19, 0xffff0000, v16")
            a(f"v_lshlrev_b32 v20, 16, v{12+pr}"); a(f"v_and_b32 v21, 0xffff0000, v{12+pr}")
            a("v_add_f32 v18, v18, v20"); a("v_add_f32 v19, v19, v21")
            a("v_cvt_pk_bf16_f32 v16, v18, v19")
            a("v_lshlrev_b32 v18, 16, v16"); a("v_and_b32 v19, 0xffff0000, v16")
            a("v_lshlrev_b32 v20, 16, v17"); a("v_and_b32 v21, 0xffff0000, v17")
            a("v_add_f32 v18, v18, v20"); a("v_add_f32 v19, v19, v21")
            a(f"v_cvt_pk_bf16_f32 v{24+pr}, v18, v19")
        a(f"s_mul_i32 s{sT0}, s{sTT}, {16*1280}")
        a(f"buffer_store_dwordx4 v[24:27], v7, s[{S_B}:{S_B+3}], s{sT0} offen")
        a.label(nx)
    extra = a.newlabel("OUX"); fin = a.newlabel("OUF")
    a(f"s_cmp_ge_u32 s{sGrp}, 4"); a(f"s_cbranch_scc1 {extra}")
    lane_offsets(False)
    top = a.newlabel("OUT")
    a.label(top)
    task(False)
    a(f"s_add_u32 s{sTT}, s{sTT}, 4")
    a(f"s_cmp_lt_u32 s{sTT}, 124"); a(f"s_cbranch_scc1 {top}")
    a(f"s_branch {fin}")
    a.label(extra)
    lab = a.newlabel("OUW"); ok3 = a.newlabel("OUB")
    a(f"s_cmp_lg_u32 s{sW}, 0"); a(f"s_cbranch_scc1 {ok3}")
    a(f"v_mov_b32 v8, {WS_FLAGS + FL_OX + 59*128}")
    a.label(lab)
    a(f"buffer_load_dword v9, v8, {WS}, 0 offen sc1")
    spin(a)
    a("s_waitcnt vmcnt(0)")
    a("v_cmp_gt_u32 vcc, 32, v9")
    ok2 = a.newlabel("OUK")
    a(f"s_cbranch_vccz {ok2}")
    a("s_sleep 48")
    a(f"s_branch {lab}")
    a.label(ok2)
    a.label(ok3)
    a("s_barrier")
    a.label(fin)
    lane_offsets(True)
    a(f"s_lshr_b32 s{sTT}, s{sGrp}, 1"); a(f"s_add_u32 s{sTT}, s{sTT}, 124")
    task(True)
    a("s_waitcnt vmcnt(0)")
```

```python
import sys
sys.path.insert(0, "gen")
from asmlib import *
from layout import *
import chain as C
import workers as W
NAME = "parallel_sum__memory_aug_recurrent_mem_tr__dense_activation_mish__prompt_kernel"
sX, sR = 84, 85
sMode = 86
sDbgP = 76
def header_comment():
    lines = open("cdna_kernels/" + NAME[:-7] + ".s.ref").read().split("\n")
    out = []
    for ln in lines:
        if ln.startswith("; @launch"): break
        if ln.startswith(";"): out.append(ln)
    return "\n".join(out)

sConf = 3
OUTLINE = []
OPTS = set()
def registration(a):
    a("; ==== registration: rank inside the XCD this workgroup runs on")
    WS = W.WS
    nz = a.newlabel("NZ")
    a("s_cmp_lg_u32 s2, 0"); a(f"s_cbranch_scc1 {nz}")
    a("v_lshlrev_b32 v1, 4, v0")
    for k in range(4): a(f"v_mov_b32 v{4+k}, 0")
    for k in range(FLAGS_BYTES // 4096):
        a(f"s_mov_b32 s47, {WS_FLAGS + 4096*k}")
        a(f"buffer_store_dwordx4 v[4:7], v1, {WS}, s47 offen sc1")
    a("s_waitcnt vmcnt(0)")
    a("s_barrier")
    a.label(nz)
    W.srd(a, 8, sDbgP, 256)
    a(f"s_getreg_b32 s{sX}, hwreg(HW_REG_XCC_ID, 0, 4)")
    if "fakexcc" in OPTS:
        a("s_mul_i32 s47, s2, 1639"); a(f"s_lshr_b32 s{sX}, s47, 16")
    a(f"s_and_b32 s47, s{sX}, 3"); a("s_lshl_b32 s47, s47, 2")
    a(f"s_lshr_b32 s48, s{sX}, 2"); a("s_lshl_b32 s48, s48, 7"); a("s_add_u32 s47, s47, s48")
    a("s_min_u32 s47, s47, 252")
    nw = a.newlabel("RW")
    a(f"s_cmp_lg_u32 s{W.sW}, 0"); a(f"s_cbranch_scc1 {nw}")
    a("v_mov_b32 v4, s47"); a("v_mov_b32 v5, 1")
    a("s_mov_b64 exec, 1")
    a("buffer_atomic_add v5, v4, s[8:11], 0 offen sc0")
    a("s_waitcnt vmcnt(0)")
    a("s_mov_b64 exec, -1")
    a("v_mov_b32 v6, 0")
    a("s_mov_b64 exec, 1")
    a("ds_write_b32 v6, v5")
    a("s_mov_b64 exec, -1")
    a("s_waitcnt lgkmcnt(0)")
    a.label(nw)
    a("s_barrier")
    a("v_mov_b32 v6, 0")
    a("ds_read_b32 v5, v6")
    a("s_waitcnt lgkmcnt(0)")
    a(f"v_readfirstlane_b32 s{sR}, v5")
    a("s_barrier")
    a(f"s_lshl_b32 s2, s{sX}, 8"); a(f"s_or_b32 s2, s2, s{sR}")
    a(f"s_mov_b32 s{sConf}, 0")
    a(f"s_mov_b32 s{sMode}, 1")

_cf = [0]
def confirm(a, vt, quads=None):
    _cf[0] += 1; n = _cf[0]
    if quads:
        q0, q1 = quads
        a(f"s_load_dwordx4 s[{q0}:{q0+3}], s[{sDbgP}:{sDbgP+1}], 0")
        a(f"s_load_dwordx4 s[{q1}:{q1+3}], s[{sDbgP}:{sDbgP+1}], 128")
        a("s_waitcnt lgkmcnt(0)")
        a("s_mov_b32 s88, 1")
        for k in range(4):
            a(f"s_cmp_eq_u32 s{q0+k}, 32"); a("s_cselect_b32 s88, s88, 0")
            a(f"s_cmp_eq_u32 s{q1+k}, 32"); a("s_cselect_b32 s88, s88, 0")
        a(f"s_or_b32 s{sConf}, s{sConf}, s88")
    a(f"s_cmp_eq_u32 s{sConf}, 0"); a(f"s_cbranch_scc1 L_CF{n}")
    a.label(f"L_CR{n}")
    o = Asm()
    o.label(f"L_CF{n}")
    o(f"v_mbcnt_lo_u32_b32 v{vt}, -1, 0"); o(f"v_mbcnt_hi_u32_b32 v{vt}, -1, v{vt}")
    o(f"v_and_b32 v{vt}, 7, v{vt}")
    o(f"v_and_b32 v{vt+1}, 3, v{vt}"); o(f"v_lshlrev_b32 v{vt+1}, 2, v{vt+1}")
    o(f"v_lshrrev_b32 v{vt}, 2, v{vt}"); o(f"v_lshl_add_u32 v{vt+1}, v{vt}, 7, v{vt+1}")
    o(f"v_mov_b32 v{vt}, 252")
    o.label(f"L_CP{n}")
    o(f"global_load_dword v{vt+2}, v{vt+1}, s[{sDbgP}:{sDbgP+1}] sc1")
    o(f"global_load_dword v{vt+3}, v{vt}, s[{sDbgP}:{sDbgP+1}] sc1")
    W.spin(o)
    o("s_waitcnt vmcnt(0)")
    o(f"v_readfirstlane_b32 s88, v{vt+3}")
    o(f"s_mov_b32 s{sMode}, 1")
    o("s_mov_b32 s100, 0")
    for k in range(8):
        o(f"v_readlane_b32 s89, v{vt+2}, {k}")
        o("s_add_u32 s88, s88, s89")
        o("s_cmp_eq_u32 s89, 32"); o(f"s_cselect_b32 s{sMode}, s{sMode}, 0")
        o(f"s_cmp_ge_u32 s2, {(k+1) << 8}"); o("s_cselect_b32 s89, s89, 0"); o("s_add_u32 s100, s100, s89")
    o("s_cmp_ge_u32 s88, 256"); o(f"s_cbranch_scc1 L_CK{n}")
    o("s_sleep 8")
    o(f"s_branch L_CP{n}")
    o.label(f"L_CK{n}")
    o(f"s_mov_b32 s{sConf}, 1")
    o(f"s_cmp_eq_u32 s{sMode}, 0"); o("s_cbranch_scc1 L_FALLBACK")
    o(f"s_branch L_CR{n}")
    OUTLINE.extend(o.lines)

def fallback(a):
    a.label("L_FALLBACK")
    a("s_waitcnt vmcnt(0) lgkmcnt(0)")
    a("s_barrier")
    a(f"s_mov_b32 s{sMode}, 0")
    a("s_and_b32 s88, s2, 255"); a("s_add_u32 s88, s88, s100")
    a(f"s_lshr_b32 s{sX}, s88, 5"); a(f"s_and_b32 s{sR}, s88, 31")
    a("v_mbcnt_lo_u32_b32 v0, -1, 0"); a("v_mbcnt_hi_u32_b32 v0, -1, v0")
    a(f"s_lshl_b32 s88, s{W.sW}, 6"); a("v_add_u32 v0, s88, v0")
    a("s_branch L_DISPATCH")

def load_pointers(a):
    for reg, off in ((W.pX, 0), (W.pWq, 16), (W.pWk, 24), (W.pWv, 32), (W.pWo, 40), (W.pW1, 64), (W.pB1, 72), (W.pW2, 80), (W.pOut, 88)):
        a(f"s_load_dwordx2 s[{reg}:{reg+1}], s[0:1], {off}")
    a("s_load_dwordx2 s[80:81], s[0:1], 8")
    a("s_waitcnt lgkmcnt(0)")

def build(timing=False, opt=()):
    for o in opt:
        if o.startswith('sleep'): W.SLEEP = int(o[5:])
    W.WOPT = set(opt)
    global OPTS
    OPTS = set(opt)
    OUTLINE.clear(); _cf[0] = 0
    a = Asm()
    a("s_cmp_ge_u32 s2, 256"); a("s_cbranch_scc1 L_END")
    a(f"s_load_dwordx2 s[{sDbgP}:{sDbgP+1}], s[0:1], 96")
    a("s_load_dwordx2 s[78:79], s[0:1], 104")
    a("v_lshrrev_b32 v8, 6, v0"); a("s_nop 1"); a(f"v_readfirstlane_b32 s{W.sW}, v8")
    a("s_waitcnt lgkmcnt(0)")
    W.srd(a, W.S_WS, 78, WS_SIZE)
    a(f"s_mov_b32 s{W.sSpin}, 0x400000")
    if timing:
        a("s_mov_b32 s97, s2")
        a("s_memrealtime s[98:99]"); a("s_waitcnt lgkmcnt(0)"); a("s_mov_b32 s99, s97")
    registration(a)
    if "forceslow" in opt:
        confirm(a, 8)
        a("s_branch L_FALLBACK")
    a(f"s_cmp_lt_u32 s{sR}, 32"); a(f"s_cselect_b32 s88, 1, 0")
    a(f"s_cmp_lt_u32 s{sX}, 8"); a(f"s_cselect_b32 s88, s88, 0")
    a("s_cmp_eq_u32 s88, 1"); a("s_cbranch_scc1 L_DISPATCH")
    confirm(a, 8)
    a.label("L_DISPATCH")
    load_pointers(a)
    wk = a.newlabel("WORKER")
    a(f"s_cmp_lg_u32 s{sX}, 0"); a(f"s_cbranch_scc1 {wk}")
    a(f"s_mov_b32 s{C.sH}, s{sR}")
    if "hrot" in opt:
        a(f"s_add_u32 s{C.sH}, s{C.sH}, 1"); a(f"s_and_b32 s{C.sH}, s{C.sH}, 31")
    a(f"s_mov_b64 s[82:83], s[{W.pWo}:{W.pWo+1}]")
    a(f"s_mov_b64 s[{C.sWq}:{C.sWq+1}], s[{W.pWq}:{W.pWq+1}]")
    a(f"s_mov_b64 s[{C.sWk}:{C.sWk+1}], s[{W.pWk}:{W.pWk+1}]")
    a(f"s_mov_b64 s[{C.sWv}:{C.sWv+1}], s[{W.pWv}:{W.pWv+1}]")
    a(f"s_mov_b64 s[{C.sWo}:{C.sWo+1}], s[82:83]")
    a(f"s_mov_b64 s[{C.sMem0}:{C.sMem0+1}], s[80:81]")
    slow = a.newlabel("CSLOW")
    a(f"s_cmp_eq_u32 s{sMode}, 0"); a(f"s_cbranch_scc1 {slow}")
    C.chain_main(a, True, "CF", stamp=("stamp" in opt), opt=opt, confirm=lambda x: confirm(x, 62, (64, 68)))
    a("s_branch L_DONE")
    a.label(slow)
    C.chain_main(a, False, "CS", opt=opt)
    a("s_branch L_DONE")
    a.label(wk)
    sWi = 87
    a(f"s_sub_u32 s{sX}, s{sX}, 1")
    a(f"s_lshl_b32 s{sWi}, s{sX}, 5"); a(f"s_add_u32 s{sWi}, s{sWi}, s{sR}")
    if "nowarm" not in opt:
        W.srd(a, W.S_A, W.pWo, H * DH * D * 2)
        a("v_lshlrev_b32 v1, 4, v0")
        a(f"s_mul_i32 s47, s{sWi}, 24576")
        for k in range(6):
            a(f"buffer_load_dwordx4 v[{160+4*k}:{163+4*k}], v1, s[{W.S_A}:{W.S_A+3}], s47 offen")
            a("s_add_u32 s47, s47, 4096")
    nl = a.newlabel("NLN")
    a(f"s_cmp_ge_u32 s{sWi}, 64"); a(f"s_cbranch_scc1 {nl}")
    W.ln_role(a, sWi, confirm=lambda x: confirm(x, 144))
    a.label(nl)
    n1 = a.newlabel("NW1"); n2 = a.newlabel("NW2")
    a(f"s_lshl_b32 s{W.sBlk}, s{sX}, 3"); a(f"s_lshr_b32 s47, s{sR}, 2"); a(f"s_add_u32 s{W.sBlk}, s{W.sBlk}, s47")
    a(f"s_and_b32 s{W.sSplit}, s{sR}, 3")
    a(f"s_cmp_ge_u32 s{W.sBlk}, {32 if 'kvonly' in opt else 55}"); a(f"s_cbranch_scc1 {n1}")
    W.w1_role(a, confirm=lambda x: confirm(x, 8))
    a(f"s_branch {n2}")
    a.label(n1)
    confirm(a, 8)
    a.label(n2)
    if 'noab' in opt: a("s_branch L_DONE")
    ra = a.newlabel("RA"); rb = a.newlabel("RB"); rx = a.newlabel("RX")
    a(f"s_cmp_eq_u32 s{sX}, 4"); a(f"s_cbranch_scc1 {ra}")
    a(f"s_cmp_ge_u32 s{sR}, 20"); a(f"s_cbranch_scc1 {rx}")
    a(f"s_cmp_gt_u32 s{sX}, 4"); a(f"s_cselect_b32 s47, 1, 0"); a(f"s_sub_u32 s47, s{sX}, s47")
    a(f"s_mul_i32 s{W.sBi}, s47, 20"); a(f"s_add_u32 s{W.sBi}, s{W.sBi}, s{sR}")
    a(f"s_branch {rb}")
    a.label(rx)
    a(f"s_cmp_ge_u32 s{sX}, 4"); a("s_cbranch_scc1 L_DONE")
    a(f"s_mul_i32 s47, s{sX}, 12"); a(f"s_add_u32 s47, s47, s{sR}"); a("s_sub_u32 s47, s47, 20")
    a("s_cmp_ge_u32 s47, 40"); a("s_cbranch_scc1 L_DONE")
    a(f"s_add_u32 s{W.sBi}, s47, 120")
    a.label(rb)
    a("s_barrier")
    W.out_role(a)
    a("s_branch L_DONE")
    a.label(ra)
    a(f"s_mov_b32 s{W.sAi}, s{sR}")
    a("s_barrier")
    W.att_role(a)
    a.label("L_DONE")
    if timing:
        a("s_memrealtime s[96:97]"); a("s_waitcnt lgkmcnt(0)")
        a("s_sub_u32 s96, s96, s98")
        a("v_mov_b32 v8, s96"); a("s_lshl_b32 s47, s99, 3"); a("v_mov_b32 v9, s47")
        a(f"v_add_u32 v9, {WS_STAMP}, v9")
        a(f"buffer_store_dword v8, v9, {W.WS}, 0 offen")
        a(f"s_lshl_b32 s47, s{sX}, 8"); a(f"s_add_u32 s47, s47, s{sR}"); a("v_mov_b32 v8, s47")
        a(f"buffer_store_dword v8, v9, {W.WS}, 0 offen offset:4")
        a("s_waitcnt vmcnt(0)")
    a.label("L_END")
    a("s_endpgm")
    a.lines += OUTLINE
    fallback(a)
    a.label("L_TIMEOUT")
    a("v_mov_b32 v8, 0xdead"); a("v_mov_b32 v10, 64")
    a(f"global_store_dword v10, v8, s[{sDbgP}:{sDbgP+1}]")
    a("s_waitcnt vmcnt(0)")
    a("s_endpgm")
    hdr = header_comment() + f"""
; @launch grid=(256,1,1) block=(256,1,1) lds=163840
.amdgcn_target "amdgcn-amd-amdhsa--gfx950"
.text
.globl {NAME}
.p2align 8
.type {NAME},@function
{NAME}:
"""
    ftr = f"""
.section .rodata,"a"
.p2align 6
.amdhsa_kernel {NAME}
  .amdhsa_next_free_vgpr 512
  .amdhsa_next_free_sgpr 102
  .amdhsa_accum_offset 256
  .amdhsa_group_segment_fixed_size 0
  .amdhsa_kernarg_size 112
  .amdhsa_user_sgpr_count 2
  .amdhsa_user_sgpr_kernarg_segment_ptr 1
  .amdhsa_system_sgpr_workgroup_id_x 1
.end_amdhsa_kernel
"""
    return hdr + a.text() + ftr
if __name__ == "__main__":
    out = sys.argv[1] if len(sys.argv) > 1 else "cdna_kernels/" + NAME[:-7] + ".s"
    open(out, "w").write(build()); print("written", out)
```

```python
from asmlib import *
from layout import *

LDS_M, LDS_TQ, LDS_TK, LDS_TO, LDS_KX, LDS_L = 0, 10240, 12288, 14336, 16384, 24576
LDS_TOTAL = 163840

S_WS = 4
S_W = 8
sH, sW, sStep, sTag = 12, 13, 14, 15
sMrd, sMwr, sMpo = 16, 17, 18
sP0, sP1, sPl = 19, 20, 21
sPrd, sRedM, sIsRed = 22, 23, 24
sKV, sKVM = 25, 26
sKM, sVM, sVX = 75, 27, 54
sFlK, sFlV, sPF, sKXb = 95, 71, 73, 72
sKMo, sFlM = 69, 26
sKX0, sFlagCur = 55, 96
sSWb = 90
sSel = 28
sLo32 = 36
sC, sOnes, sHalf, sFE = 38, 39, 40, 41
sW2560, sW512, sLb, sSW, sW2048 = 42, 43, 44, 45, 46
sT0, sT1, sT2, sT3 = 47, 48, 49, 50
sFlagOff = 51
sHi32 = 52
sWq, sWk, sWv, sWo, sMem0 = 56, 58, 60, 62, 64
sDbg = 76
sSpin = 74
def spin(a):
    a(f"s_sub_u32 s{sSpin}, s{sSpin}, 1")
    a("s_cbranch_scc1 L_TIMEOUT")
vL16, vAoff, vIdx, vTr, vTw, vPst, vLb, vFl = 0, 1, 2, 3, 4, 5, 6, 7

def vr(b, n): return f"v[{b}:{b+n-1}]"
def rtile(idx):
    if idx < 32: return f"a[{8*idx}:{8*idx+7}]", ("a", 8 * idx)
    b = 72 + 8 * (idx - 32)
    return f"v[{b}:{b+7}]", ("v", b)

S_TILES = [("q", 0), ("k", 0), ("q", 6), ("k", 7), ("q", 13), ("k", 15), ("q", 18), ("k", 19)]
L_TILES = [("k", j) for j in (2, 4, 6, 8, 10, 12, 14, 16)] + \
          [("o", n // 4, n % 4) for n in (1, 3, 5, 7, 9, 11, 13, 15, 17)]
ALL_TILES = [("q", j) for j in range(20)] + [("k", j) for j in range(20)] + [("v", j) for j in range(20)] + \
            [("o", p, m) for p in range(5) for m in range(4)]
R_TILES = [t for t in ALL_TILES if t not in S_TILES and t not in L_TILES]
assert len(R_TILES) == 55 and len(L_TILES) == 17 and len(S_TILES) == 8
FIRST_ROUND = {("q", 0): 40, ("k", 0): 48, ("q", 6): 56}
R_IDX = {t: i for i, t in enumerate(R_TILES)}
L_IDX = {t: i for i, t in enumerate(L_TILES)}
S_IDX = {t: i for i, t in enumerate(S_TILES)}

def srd(a, s, lo, nbytes):
    a(f"s_mov_b32 s{s}, s{lo}")
    a(f"s_and_b32 s{s+1}, s{lo+1}, 0xffff")
    a(f"s_mov_b32 s{s+2}, {nbytes}")
    a(f"s_mov_b32 s{s+3}, 0x20000")

def lane_consts(a):
    a("v_and_b32 v8, 63, v0")
    a("v_and_b32 v9, 15, v8")
    a("v_lshrrev_b32 v10, 4, v8")
    a(f"v_lshlrev_b32 v{vL16}, 4, v8")
    a("v_and_b32 v11, 7, v9")
    a("v_lshl_add_u32 v11, v10, 3, v11")
    a(f"v_lshlrev_b32 v{vAoff}, 4, v11")
    a("v_mov_b32 v12, 0x4444")
    a("v_mov_b32 v13, 0xeeee")
    a("v_cmp_gt_u32 vcc, 8, v9")
    a(f"v_cndmask_b32 v{vIdx}, v13, v12, vcc")
    a("v_lshrrev_b32 v11, 2, v9")
    a("v_lshl_add_u32 v11, v10, 3, v11")
    a("v_lshlrev_b32 v11, 4, v11")
    a("v_and_b32 v12, 1, v9")
    a(f"v_lshl_add_u32 v{vTr}, v12, 3, v11")
    a("v_lshrrev_b32 v11, 1, v10")
    a("v_lshl_add_u32 v11, v11, 4, v9")
    a(f"s_lshl_b32 s{sT0}, s{sW}, 5")
    a(f"v_add_u32 v11, s{sT0}, v11")
    a("v_lshlrev_b32 v11, 4, v11")
    a("v_and_b32 v12, 1, v10")
    a(f"v_lshl_add_u32 v{vTw}, v12, 3, v11")
    a("v_lshlrev_b32 v11, 13, v10")
    a(f"v_lshl_add_u32 v{vPst}, v9, 4, v11")
    a("v_bfe_u32 v11, v9, 1, 2")
    for R in range(4):
        a(f"v_cmp_eq_u32 s[{sSel+2*R}:{sSel+2*R+1}], {R}, v11")
    a(f"v_cmp_gt_u32 s[{sLo32}:{sLo32+1}], 32, v8")
    a(f"v_cmp_le_u32 s[{sHi32}:{sHi32+1}], 32, v8")

def lone_off(a, dst, tmp):
    a(f"v_bfe_u32 v{tmp}, v{vPst}, 14, 1")
    a(f"v_and_b32 v{dst}, 0x20f0, v{vPst}")
    a(f"v_lshl_or_b32 v{dst}, v{tmp}, 3, v{dst}")

def scalar_consts(a):
    a(f"s_mul_i32 s{sW2560}, s{sW}, 2560")
    a(f"s_lshl_b32 s{sW512}, s{sW}, 9")
    a(f"s_lshl_b32 s{sW2048}, s{sW}, 11")
    a(f"s_add_u32 s{sLb}, s{sW2048}, {LDS_L}")
    a(f"s_lshl_b32 s{sT0}, s{sH}, 2")
    a(f"s_add_u32 s{sT0}, s{sT0}, s{sW}")
    a(f"s_mul_i32 s{sT0}, s{sT0}, {9*2048}")
    a(f"s_add_u32 s{sSW}, s{sT0}, {WS_SW}")
    for k in range(5): a(f"s_add_u32 s{sSWb+k}, s{sSW}, {k*4096}")
    a(f"s_lshl_b32 s{sT0}, s{sH}, 8")
    a(f"s_lshl_b32 s{sT1}, s{sW}, 16")
    a(f"s_add_u32 s{sP0}, s{sT0}, s{sT1}")
    a(f"s_add_u32 s{sP0}, s{sP0}, {WS_P}")
    a(f"s_add_u32 s{sP1}, s{sP0}, {4*8192}")
    a(f"s_lshl_b32 s{sT1}, s{sW}, 14")
    a(f"s_add_u32 s{sPl}, s{sT0}, s{sT1}")
    a(f"s_add_u32 s{sPl}, s{sPl}, {WS_P + 32*8192}")
    a(f"s_lshl_b32 s{sFlM}, s{sH}, 7")
    a(f"s_add_u32 s{sFlM}, s{sFlM}, {FL_M}")
    a(f"s_mov_b32 s{sIsRed}, 0")
    a(f"s_cmp_eq_u32 s{sW}, 0")
    a(f"s_cselect_b32 s{sIsRed}, 1, 0")
    a(f"s_cmp_lt_u32 s{sH}, 8")
    a(f"s_cselect_b32 s{sT1}, 1, 0")
    a(f"s_cmp_eq_u32 s{sW}, 1")
    a(f"s_cselect_b32 s{sT1}, s{sT1}, 0")
    a(f"s_or_b32 s{sIsRed}, s{sIsRed}, s{sT1}")
    a(f"s_add_u32 s{sT2}, s{sH}, 32")
    a(f"s_cmp_eq_u32 s{sW}, 0")
    a(f"s_cselect_b32 s{sT2}, s{sH}, s{sT2}")
    a(f"s_min_u32 s{sT2}, s{sT2}, 39")
    a(f"s_lshl_b32 s{sPrd}, s{sT2}, 13")
    a(f"s_add_u32 s{sPrd}, s{sPrd}, {WS_P}")
    a(f"s_lshr_b32 s{sT0}, s{sT2}, 3")
    a(f"s_mul_i32 s{sT0}, s{sT0}, 20")
    a(f"s_bfe_u32 s{sT1}, s{sT2}, 0x10002")
    a(f"s_lshl_b32 s{sT1}, s{sT1}, 3")
    a(f"s_add_u32 s{sT0}, s{sT0}, s{sT1}")
    a(f"s_bfe_u32 s{sT1}, s{sT2}, 0x10001")
    a(f"s_lshl_b32 s{sT1}, s{sT1}, 2")
    a(f"s_add_u32 s{sT0}, s{sT0}, s{sT1}")
    a(f"s_sub_u32 s{sT1}, s{sT2}, 32")
    a(f"s_lshr_b32 s{sT1}, s{sT1}, 1")
    a(f"s_mul_i32 s{sT1}, s{sT1}, 20")
    a(f"s_add_u32 s{sT1}, s{sT1}, 16")
    a(f"s_cmp_lt_u32 s{sT2}, 32")
    a(f"s_cselect_b32 s{sT0}, s{sT0}, s{sT1}")
    a(f"s_lshl_b32 s{sT0}, s{sT0}, 7")
    a(f"s_and_b32 s{sT1}, s{sT2}, 1")
    a(f"s_lshl_b32 s{sT1}, s{sT1}, 6")
    a(f"s_add_u32 s{sRedM}, s{sT0}, s{sT1}")
    import struct, math
    c = struct.unpack("<I", struct.pack("<f", (128 ** -0.5) * math.log2(math.e)))[0]
    a(f"s_mov_b32 s{sC}, {c:#x}")
    a(f"s_mov_b32 s{sOnes}, 0x3f803f80")
    a(f"s_mov_b32 s{sHalf}, 0x3f003f00")
    a(f"s_mov_b32 s{sFE}, 0xfffffffe")

def unit_src(t):
    if t[0] in "qkv":
        base, X = kstep_base(t[1])
        return {"q": sWq, "k": sWk, "v": sWv}[t[0]], [(base + uu * X) * 8192 for uu in range(2)], False
    p, m = t[1], t[2]
    return sWo, [(32 * m + 16 * uu) * 1280 + 256 * p for uu in range(2)], True

def weights_prologue(a, hook=None):
    vG, vGo, vTa, vTmp = 8, 9, 10, 12
    a(f"v_lshrrev_b32 v11, 4, v{vL16}")
    a("v_lshrrev_b32 v20, 4, v11")
    a("v_and_b32 v21, 15, v11")
    a(f"v_lshlrev_b32 v{vG}, 13, v20")
    a(f"v_lshl_add_u32 v{vG}, v21, 4, v{vG}")
    a("s_movk_i32 s47, 1280")
    a(f"v_mul_lo_u32 v{vGo}, v20, s47")
    a(f"v_lshl_add_u32 v{vGo}, v21, 4, v{vGo}")
    a("v_lshrrev_b32 v22, 2, v21")
    a("v_and_b32 v23, 1, v22")
    a("v_lshl_add_u32 v23, v20, 2, v23")
    a("v_lshlrev_b32 v23, 8, v23")
    a("v_lshrrev_b32 v22, 1, v22")
    a("v_lshl_add_u32 v23, v22, 5, v23")
    a("v_and_b32 v22, 3, v21")
    a("v_lshl_add_u32 v23, v22, 3, v23")
    a(f"s_lshl_b32 s{sT0}, s{sW}, 6")
    a(f"v_add_u32 v{vTa}, s{sT0}, v23")
    sBq, sBo = 96, 97
    a(f"s_lshl_b32 s{sT0}, s{sW}, 15")
    a(f"s_lshl_b32 s{sT1}, s{sH}, 8")
    a(f"s_add_u32 s{sBq}, s{sT0}, s{sT1}")
    a(f"s_lshl_b32 s{sT0}, s{sH}, 7")
    a(f"s_lshl_b32 s{sT1}, s{sW}, 2")
    a(f"s_add_u32 s{sT0}, s{sT0}, s{sT1}")
    a(f"s_mul_i32 s{sBo}, s{sT0}, 1280")
    order = R_TILES + S_TILES + L_TILES
    n = len(order)
    slot = {}
    for k in range(n - 1, -1, -1):
        slot[k] = L_IDX[order[k]] if k >= n - 17 else slot[k + 17]
    cur_ptr = [None]
    toks = {}
    def issue(k):
        t = order[k]
        ptr, offs, is_wo = unit_src(t)
        if cur_ptr[0] != ptr:
            srd(a, S_W, ptr, 5242880); cur_ptr[0] = ptr
        for uu in range(2):
            a(f"s_add_u32 s{sT0}, s{sBo if is_wo else sBq}, {offs[uu]}")
            a(f"s_add_u32 m0, s{sW2048}, {LDS_L + slot[k]*8192 + uu*1024}")
            toks[(k, uu)] = a.vm(f"buffer_load_dwordx4 v{vGo if is_wo else vG}, s[{S_W}:{S_W+3}], s{sT0} offen{WMOD} lds")
    DEPTH = 17
    for k in range(DEPTH): issue(k)
    pendL = None
    for k in range(n):
        t = order[k]
        if hook: hook(k)
        a.wait(toks[(k, 1)])
        a("s_barrier")
        if pendL is not None:
            pk, pb = pendL
            a(f"v_add_u32 v11, s{sLb}, v{vL16}")
            a(f"v_add_u32 v11, {slot[pk]*8192}, v11")
            a.lg(f"ds_write_b128 v11, {vr(pb,4)}")
            a.lg(f"ds_write_b128 v11, {vr(pb+4,4)} offset:1024")
            pendL = None
        if k >= 1 and k - 1 + 17 < n: issue(k - 1 + 17)
        a(f"v_add_u32 v11, {LDS_L + slot[k]*8192}, v{vTa}")
        if t in R_IDX:
            _, (cls, b) = rtile(R_IDX[t])
        elif t in FIRST_ROUND:
            cls, b = "v", FIRST_ROUND[t]
        else:
            cls, b = "v", (vTmp if k % 2 == 0 else vTmp + 8)
        last = None
        for q, off in enumerate((0, 512, 4096, 4608)):
            last = a.lg(f"ds_read_b64_tr_b16 {cls}[{b+2*q}:{b+2*q+1}], v11 offset:{off}")
        a.wait(last)
        if t in S_IDX:
            si = S_IDX[t]
            a(f"s_add_u32 s{sT1}, s{sSW}, {si*2048}")
            a.vm(f"buffer_store_dwordx4 {vr(b,4)}, v{vL16}, s[{S_WS}:{S_WS+3}], s{sT1} offen")
            a.vm(f"buffer_store_dwordx4 {vr(b+4,4)}, v{vL16}, s[{S_WS}:{S_WS+3}], s{sT1} offen offset:1024")
        if t in L_IDX: pendL = (k, b)
    a("s_barrier")
    pk, pb = pendL
    a(f"v_add_u32 v11, s{sLb}, v{vL16}")
    a(f"v_add_u32 v11, {slot[pk]*8192}, v11")
    a.lg(f"ds_write_b128 v11, {vr(pb,4)}")
    a.lg(f"ds_write_b128 v11, {vr(pb+4,4)} offset:1024")
    a.wait_all()

S_M0 = 80
def mem0_loads(a):
    a("; ---- mem0 loads")
    srd(a, S_M0, sMem0, 8 * 1280)
    T = 44
    a(f"v_lshrrev_b32 v{T+9}, 4, v{vL16}")
    a(f"s_lshl_b32 s{sT0}, s{sW}, 6")
    a(f"v_add_u32 v{T+9}, s{sT0}, v{T+9}")
    a(f"s_mov_b32 s{sT1}, 13108")
    toks = []
    for n in range(5):
        q = 28 + n; b = T - 1
        a(f"v_add_u32 v{q}, {256*n}, v{T+9}")
        a(f"v_lshrrev_b32 v{b+1}, 4, v{q}")
        a(f"v_lshrrev_b32 v{b+2}, 2, v{b+1}")
        a(f"v_and_b32 v{b+3}, 3, v{b+1}")
        a(f"v_mul_u32_u24 v{b+4}, s{sT1}, v{b+2}")
        a(f"v_lshrrev_b32 v{b+4}, 16, v{b+4}")
        a(f"v_mul_u32_u24 v{b+5}, 5, v{b+4}")
        a(f"v_sub_u32 v{b+5}, v{b+2}, v{b+5}")
        a(f"v_and_b32 v{b+6}, 1, v{q}")
        a(f"v_lshrrev_b32 v{b+7}, 1, v{b+5}")
        a(f"v_lshlrev_b32 v{b+7}, 8, v{b+7}")
        a(f"v_and_b32 v{b+8}, 1, v{b+5}")
        a(f"v_lshl_add_u32 v{b+7}, v{b+8}, 4, v{b+7}")
        a(f"v_lshlrev_b32 v{b+8}, 7, v{b+6}")
        a(f"v_lshlrev_b32 v{b+9}, 4, v{b+6}")
        a(f"v_cmp_eq_u32 vcc, 4, v{b+5}")
        a(f"v_cndmask_b32 v{b+8}, v{b+8}, v{b+9}, vcc")
        a(f"v_add_u32 v{b+7}, v{b+7}, v{b+8}")
        a(f"v_lshl_add_u32 v{b+7}, v{b+4}, 5, v{b+7}")
        a(f"v_lshl_add_u32 v{b+7}, v{b+3}, 2, v{b+7}")
        a(f"v_bfe_u32 v{b+8}, v{q}, 1, 3")
        a(f"s_movk_i32 s{sT2}, 1280")
        a(f"v_mul_lo_u32 v{b+8}, v{b+8}, s{sT2}")
        a(f"v_lshl_add_u32 v{b+8}, v{b+7}, 1, v{b+8}")
        toks.append(a.vm(f"buffer_load_dwordx2 {vr(34+2*n,2)}, v{b+8}, s[{S_M0}:{S_M0+3}], 0 offen"))
        a(f"v_lshlrev_b32 v{q}, 3, v{q}")
    return toks
def mem0_writes(a, toks):
    for n in range(5):
        a.wait(toks[n])
        a.lg(f"ds_write_b64 v{28+n}, {vr(34+2*n,2)} offset:{LDS_M}")

def init_exchange(a, sc):
    a("; ---- init exchange buffers")
    for k in range(54, 58): a(f"v_mov_b32 v{k}, 1")
    a.vm(f"buffer_store_dwordx4 v[54:57], v{vPst}, s[{S_WS}:{S_WS+3}], s{sP0} offen{sc}")
    a.vm(f"buffer_store_dwordx4 v[54:57], v{vPst}, s[{S_WS}:{S_WS+3}], s{sP1} offen{sc}")
    lone_off(a, 58, 59)
    a.vm(f"buffer_store_dwordx2 v[54:55], v58, s[{S_WS}:{S_WS+3}], s{sPl} offen{sc}")
    skip = a.newlabel("IX")
    a(f"s_cmp_eq_u32 s{sIsRed}, 0")
    a(f"s_cbranch_scc1 {skip}")
    red_moff(a, 58, 59)
    a("v_mov_b32 v60, -1"); a("v_mov_b32 v61, -1")
    for sl in range(4):
        a(f"s_add_u32 s{sT0}, s{sRedM}, {WS_M + sl*MSLOT}")
        a(f"buffer_store_dwordx2 v[60:61], v58, s[{S_WS}:{S_WS+3}], s{sT0} offen{sc}")
    a.label(skip)

def red_moff(a, dst, tmp):
    a(f"v_lshrrev_b32 v{dst}, 8, v{vL16}")
    a(f"v_lshlrev_b32 v{dst}, 7, v{dst}")
    a(f"v_and_b32 v{tmp}, 0x30, v{vL16}")
    a(f"v_add_u32 v{dst}, v{dst}, v{tmp}")
    a(f"v_bfe_u32 v{tmp}, v{vL16}, 6, 1")
    a(f"v_lshl_add_u32 v{dst}, v{tmp}, 3, v{dst}")

def flag_off(a):
    a(f"s_mov_b32 s{sFlagCur}, s{sFlagOff}")
    a(f"s_add_u32 s{sT0}, s{sStep}, 1")
    a(f"s_lshr_b32 s{sT0}, s{sT0}, 4")
    a(f"s_min_u32 s{sT0}, s{sT0}, 3")
    a(f"s_lshl_b32 s{sT0}, s{sT0}, 6")
    a(f"s_lshr_b32 s{sT1}, s{sH}, 1")
    a(f"s_lshl_b32 s{sT1}, s{sT1}, 2")
    a(f"s_add_u32 s{sFlagOff}, s{sT0}, s{sT1}")
    a(f"s_add_u32 s{sFlagOff}, s{sFlagOff}, {FL_KV}")

PF_DIST = 1
WMOD = ' nt'
KXNT = ' nt'
OPTS = set()
NT = ''
def step_offsets(a):
    a(f"s_lshl_b32 s{sT0}, s{sStep}, 5")
    a(f"s_add_u32 s{sT0}, s{sT0}, s{sH}")
    a(f"s_lshl_b32 s{sT1}, s{sT0 if 'samekv' not in OPTS else sH}, 12")
    a(f"s_lshl_b32 s{sT2}, s{sW}, 10")
    a(f"s_add_u32 s{sT1}, s{sT1}, s{sT2}")
    a(f"s_add_u32 s{sKM}, s{sT1}, {WS_KM}")
    if 'samex' in OPTS: a(f"s_mov_b32 s{sT0}, s{sH}")
    a(f"s_lshl_b32 s{sT1}, s{sT0}, 13")
    a(f"s_add_u32 s{sT1}, s{sT1}, s{sW2048}")
    a(f"s_add_u32 s{sVX}, s{sT1}, {WS_VX}")
    a(f"s_sub_u32 s{sKX0}, s{sVX}, {WS_VX - WS_KX}")
    a(f"s_lshl_b32 s{sT1}, s{sT0}, 13")
    a(f"s_add_u32 s{sKXb}, s{sT1}, {WS_KX + 32*8192}")
    a(f"s_add_u32 s{sPF}, s{sKXb}, 0")
    a(f"s_add_u32 s{sT2}, s{sKXb}, {WS_VX - WS_KX}")
    a(f"s_cmp_lt_u32 s{sW}, 2")
    a(f"s_cselect_b32 s{sPF}, s{sPF}, s{sT2}")
    a(f"s_and_b32 s{sT2}, s{sW}, 1")
    a(f"s_lshl_b32 s{sT2}, s{sT2}, 12")
    a(f"s_add_u32 s{sPF}, s{sPF}, s{sT2}")
    flag_off(a)
    a(f"s_and_b32 s{sT0}, s{sStep}, 3")
    a(f"s_mul_i32 s{sT0}, s{sT0}, {MSLOT}")
    a(f"s_add_u32 s{sMrd}, s{sT0}, s{sW2560}")
    a(f"s_add_u32 s{sMrd}, s{sMrd}, {WS_M}")
    a(f"s_add_u32 s{sMwr}, s{sT0}, s{sRedM}")
    a(f"s_add_u32 s{sMwr}, s{sMwr}, {WS_M}")
    a(f"s_add_u32 s{sT0}, s{sStep}, 2")
    a(f"s_and_b32 s{sT0}, s{sT0}, 3")
    a(f"s_mul_i32 s{sT0}, s{sT0}, {MSLOT}")
    a(f"s_add_u32 s{sMpo}, s{sT0}, s{sRedM}")
    a(f"s_add_u32 s{sMpo}, s{sMpo}, {WS_M}")

def team_barrier(a, off, sc):
    a.wait_all_vm()
    a("s_barrier")
    lab = a.newlabel("TB")
    a(f"s_lshl_b32 s{sT0}, s{sH}, 2")
    a(f"v_mov_b32 v8, s{sT0}")
    a("v_mov_b32 v9, 1")
    skip = a.newlabel("TBs")
    a(f"s_cmp_lg_u32 s{sW}, 0")
    a(f"s_cbranch_scc1 {skip}")
    a(f"buffer_store_dword v9, v8, s[{S_WS}:{S_WS+3}], 0 offen offset:{off}{sc}")
    a.label(skip)
    a(f"v_lshrrev_b32 v8, 2, v{vL16}")
    a("v_and_b32 v8, 0x7c, v8")
    a.label(lab)
    a(f"buffer_load_dword v9, v8, s[{S_WS}:{S_WS+3}], 0 offen offset:{off} sc1")
    spin(a)
    a("s_waitcnt vmcnt(0)")
    a("v_cmp_eq_u32 vcc, 0, v9")
    a(f"s_cbranch_vccnz {lab}")

STAMP_REGS = [66, 78, 80, 82, 84, 86, 88, 56, 58, 60, 62]
class Step:
    def __init__(self, a, fast, stamp=None, opt=()):
        self.a = a
        self.opt = set(opt)
        self.sc = "" if fast else " sc1"
        self.stamp = stamp
        self.outofline = []
        self.nv1 = 14
        for o in self.opt:
            if o.startswith("nv"): self.nv1 = int(o[2:])
    def ws(self): return f"s[{S_WS}:{S_WS+3}]"
    def btile(self, t): return rtile(R_IDX[t])[0]
    def smf(self, acc, A, B):
        self.a(f"v_smfmac_f32_16x16x64_bf16 {vr(acc,4)}, {vr(A,4)}, {B}, v{vIdx}")
    def ld_s_half(self, t, dst, hf):
        if "noS" in self.opt: return None
        si = S_IDX[t]
        off = (si % 2) * 2048 + hf * 1024
        mod = ""
        for o in self.opt:
            if o.startswith("l1=") and si >= int(o[3:]): mod = " sc1"
            if o.startswith("l1nt=") and si >= int(o[5:]): mod = " nt"
        return self.a.vm(f"buffer_load_dwordx4 {vr(dst+4*hf,4)}, v{vL16}, {self.ws()}, s{sSWb + si//2} offen offset:{off}{mod}")
    def ld_s(self, t, dst):
        self.ld_s_half(t, dst, 0)
        return self.ld_s_half(t, dst, 1)
    def ld_l(self, t, dst, bases, base9=None):
        a = self.a
        if "noL" in self.opt: return None
        x = L_IDX[t]
        if base9 is not None: vb = base9; off = (x - 9) * 8192
        else: vb = bases[x // 8]; off = (x % 8) * 8192
        assert 0 <= off < 65536 - 1024
        a.lg(f"ds_read_b128 {vr(dst,4)}, v{vb} offset:{off}")
        return a.lg(f"ds_read_b128 {vr(dst+4,4)}, v{vb} offset:{off+1024}")

    def pre_poll(self):
        a = self.a
        a(f"v_and_b32 v32, 0x1f0, v{vL16}")
        a(f"v_add_u32 v33, s{sW2560}, v{vL16}")
        a(f"v_add_u32 v34, s{sW2560}, v32")
        for k in range(8, 20, 2): a(f"v_mov_b64 v[{k}:{k+1}], 0")
        a(f"v_bfe_u32 v36, v{vL16}, 8, 1")
        a(f"v_lshlrev_b32 v36, 8, v36")
        a(f"v_add_u32 v36, s{sFlagOff}, v36")
        a(f"v_lshlrev_b32 v37, 3, v{vL16}")
        a(f"v_add_u32 v37, s{sPF}, v37")
        a(f"v_cndmask_b32 v{vFl}, v36, v37, s[{sLo32}:{sLo32+1}]")

    def early_a(self):
        self.stok = {}
        self.stok[("q", 0)] = self.ld_s(("q", 0), 40)
        self.stok[("k", 0)] = self.ld_s(("k", 0), 48)

    def m_loads(self):
        a = self.a
        a.vm(f"buffer_load_dwordx4 v[20:23], v{vL16}, {self.ws()}, s{sMrd} offen sc1")
        a.vm(f"buffer_load_dwordx4 v[24:27], v{vL16}, {self.ws()}, s{sMrd} offen offset:1024 sc1")
        return a.vm(f"buffer_load_dwordx4 v[28:31], v32, {self.ws()}, s{sMrd} offen offset:2048 sc1")
    def m_check(self):
        a = self.a
        a("v_max3_u32 v35, v21, v23, v25")
        a("v_max3_u32 v35, v35, v27, v29")
        a("v_max_u32 v35, v35, v31")
        a("v_cmp_eq_u32 vcc, -1, v35")

    def poll_m(self):
        a = self.a
        retry = a.newlabel("PMR"); ok = a.newlabel("PMK")
        tm = self.m_loads()
        self.early_a()
        a.wait(tm, force=True)
        self.m_check()
        a(f"s_cbranch_vccnz {retry}")
        a.label(ok)
        o = Asm(); o._lab = a._lab + 1000
        o.label(retry)
        st = Step(o, True, None, self.opt); st.sc = self.sc
        st.m_loads(); spin(o); o.wait_all_vm(); st.m_check()
        o(f"s_cbranch_vccnz {retry}")
        o(f"s_branch {ok}")
        self.outofline += o.lines
        self.stamp_at(1)
        if self.stamp: a(f"s_mov_b32 s64, s{sSpin}")
        a.lg(f"ds_write_b128 v33, v[20:23] offset:{LDS_M}")
        a.lg(f"ds_write_b128 v33, v[24:27] offset:{LDS_M+1024}")
        a.lg(f"ds_write_b128 v34, v[28:31] offset:{LDS_M+2048}")

    def stamp_at(self, i, red=False):
        if red and "rst" not in self.opt: return
        if "rst" in self.opt and i in (3, 4, 5) and not red: return
        if self.stamp: self.a(f"s_memtime s[{STAMP_REGS[i]}:{STAMP_REGS[i]+1}]")
    def dump_stamps(self):
        if not self.stamp: return
        a = self.a
        a("s_waitcnt lgkmcnt(0)")
        for i in range(11):
            r = STAMP_REGS[i]
            a(f"v_writelane_b32 v59, s{r}, {i}")
        for i, r in enumerate((64, 65, 68)): a(f"v_writelane_b32 v59, s{r}, {11+i}")
        a(f"s_lshl_b32 s{sT0}, s{sH}, 2")
        a(f"s_add_u32 s{sT0}, s{sT0}, s{sW}")
        a(f"s_lshl_b32 s{sT0}, s{sT0}, 12")
        a(f"s_lshl_b32 s{sT1}, s{sStep}, 6")
        a(f"s_add_u32 s{sT0}, s{sT0}, s{sT1}")
        a(f"s_add_u32 s{sT0}, s{sT0}, {WS_STAMP}")
        a(f"v_lshrrev_b32 v58, 2, v{vL16}")
        a("s_mov_b64 s[48:49], exec")
        a("s_mov_b64 exec, 0x3fff")
        a(f"buffer_store_dword v59, v58, {self.ws()}, s{sT0} offen")
        a("s_mov_b64 exec, s[48:49]")

    def body(self, entry_label):
        a = self.a
        self.stamp_at(0)
        if "rt" in self.opt:
            a("s_memrealtime s[88:89]"); a("s_memtime s[86:87]"); a("s_waitcnt lgkmcnt(0)")
            a(f"v_mov_b32 v8, s88"); a(f"v_mov_b32 v9, s86")
            a(f"s_lshl_b32 s89, s{sH}, 2"); a(f"s_add_u32 s89, s89, s{sW}"); a("s_lshl_b32 s89, s89, 9")
            a(f"s_lshl_b32 s88, s{sStep}, 3"); a("s_add_u32 s89, s89, s88"); a(f"s_add_u32 s89, s89, {WS_STAMP + 0x20000}")
            a("v_mov_b32 v10, 0")
            a(f"buffer_store_dwordx2 v[8:9], v10, {self.ws()}, s89 offen")
        self.pre_poll()
        self.poll_m()
        stok = self.stok
        sq = {("q",0):40, ("k",0):48, ("q",6):56, ("k",7):64, ("q",13):40, ("k",15):48, ("q",18):56, ("k",19):64}
        stok[("q",6)] = self.ld_s(("q",6), 56)
        a.label(entry_label)
        a.wait_all_lg()
        a("s_barrier")
        self.stamp_at(2)
        La = [20, 24, 28]; Lb = 32
        accQ, accK, accV = 8, 12, 16
        atok = {}
        def rdA(j):
            if j < 20: atok[j] = a.lg(f"ds_read_b128 {vr(La[j%3],4)}, v{vAoff} offset:{LDS_M + 512*j}")
        ltiles = [t for t in L_TILES if t[0] != "o"]
        ltok = {}
        def rdL(x):
            if x < len(ltiles): ltok[ltiles[x]] = self.ld_l(ltiles[x], Lb, [vLb])
        rdA(0); rdA(1); rdL(0)
        pos = [0, 1, 3, 4, 5, 7, 8, 9, 11, 12]
        dj = 14
        for o in self.opt:
            if o.startswith("late="): pos = [int(x) for x in o[5:].split(",")]
            if o.startswith("dma="): dj = int(o[4:])
        late = {}
        for (t, hf), j in zip([(("k",7),0), (("k",7),1), (("q",13),0), (("q",13),1), (("k",15),0), (("k",15),1),
                               (("q",18),0), (("q",18),1), (("k",19),0), (("k",19),1)], pos):
            late.setdefault(j, []).append((t, hf))
        assert pos[2] >= 1 and pos[4] >= 1 and pos[6] >= 6 and pos[8] >= 8
        dma = {}
        nl = 0
        def vmf(j): self.smf(accV, La[j % 3], self.btile(("v", j)))
        for j in range(20):
            waits = [atok[j]]
            for mat in "qk":
                t = (mat, j)
                if t in L_IDX: waits.append(ltok[t])
                if t in S_IDX and "nows" not in self.opt: waits.append(stok[t])
            a.wait(*waits)
            tq_, tk_ = ("q", j), ("k", j)
            self.smf(accQ, La[j % 3], vr(sq[tq_], 8) if tq_ in S_IDX else self.btile(tq_))
            if j != 18: rdA(j + 2)
            for t, hf in late.get(j, []):
                x = self.ld_s_half(t, sq[t], hf)
                if hf == 1: stok[t] = x
            if j in (dj, dj + 1) and "noKX" not in self.opt:
                if j == dj: a(f"s_add_u32 m0, s{sW2048}, {LDS_KX}")
                dma[j - dj] = a.vm(f"buffer_load_dwordx4 v{vL16}, {self.ws()}, s{sKX0} offen offset:{(j-dj)*1024} sc1{NT} lds")
            if tk_ in L_IDX: B = vr(Lb, 8)
            elif tk_ in S_IDX: B = vr(sq[tk_], 8)
            else: B = self.btile(tk_)
            self.smf(accK, La[j % 3], B)
            if tk_ in L_IDX:
                nl += 1; rdL(nl)
            if j < 18: vmf(j)
        vmf(18); vmf(19)
        self.stamp_at(3)
        OB = [40, 56]
        def rd_kx(m, tile):
            return a.lg(f"ds_read_b128 {vr(OB[m%2]+8+4*tile,4)}, v{vL16} offset:{LDS_KX + (4*tile+m)*1024}")
        def rd_t(m, which):
            b = OB[m % 2] + 4 * which; base = (LDS_TQ, LDS_TK)[which] + m * 512
            a.lg(f"ds_read_b64_tr_b16 {vr(b,2)}, v{vTr} offset:{base}")
            return a.lg(f"ds_read_b64_tr_b16 {vr(b+2,2)}, v{vTr} offset:{base + 64}")
        kx = {}
        a(f"v_mov_b32 v38, s{sStep}")
        a(f"v_mov_b32 v39, 0")
        a("v_cvt_pk_bf16_f32 v34, v8, v9")
        a("v_cvt_pk_bf16_f32 v35, v10, v11")
        tq = a.lg(f"ds_write_b64 v{vTw}, v[34:35] offset:{LDS_TQ}")
        a("v_cvt_pk_bf16_f32 v32, v12, v13")
        a("v_cvt_pk_bf16_f32 v33, v14, v15")
        tk = a.lg(f"ds_write_b64 v{vTw}, v[32:33] offset:{LDS_TK}")
        VX0, VX1 = 8, 12
        tvx1 = None
        if "noVX" not in self.opt:
            a.vm(f"buffer_load_dwordx4 {vr(VX0,4)}, v{vL16}, {self.ws()}, s{sVX} offen sc1{NT}")
            tvx1 = a.vm(f"buffer_load_dwordx4 {vr(VX1,4)}, v{vL16}, {self.ws()}, s{sVX} offen offset:1024 sc1{NT}")
        a("v_cvt_pk_bf16_f32 v34, v16, v17")
        a("v_cvt_pk_bf16_f32 v35, v18, v19")
        def pf():
            self.pf_tok = None
            if "noPF" not in self.opt:
                self.pf_tok = a.vm(f"buffer_load_dword v{vFl}, v{vFl}, {self.ws()}, 0 offen sc1")
            else: a(f"v_mov_b32 v{vFl}, 1000")
        def kv():
            if "noKV" not in self.opt:
                a.vm(f"buffer_store_dwordx4 v[32:35], v{vL16}, {self.ws()}, s{sKM} offen sc1")
            if "noFL" not in self.opt:
                a.vm(f"buffer_store_dword v38, v39, {self.ws()}, s{sFlM} offen sc1")
        pfpos = "d3"
        for o in self.opt:
            if o.startswith("pf@"): pfpos = o[3:]
        kvpos = "c1"
        for o in self.opt:
            if o.startswith("kv@"): kvpos = o[3:]
        def kv_at(pos):
            if pos == kvpos: kv()
        def batch(at_c):
            if at_c: kv_at("c0")
        def pf_at(pos):
            if pos == pfpos: pf()
        a(f"s_cmp_eq_u32 s{sStep}, {NSEG-1}")
        a(f"s_cbranch_scc1 {self.exit_label}")
        batch(True)
        a(f"v_cndmask_b32 v16, 0, v34, s[{sLo32}:{sLo32+1}]")
        a(f"v_cndmask_b32 v17, 0, v35, s[{sLo32}:{sLo32+1}]")
        a(f"v_cndmask_b32 v18, 0, v34, s[{sHi32}:{sHi32+1}]")
        a(f"v_cndmask_b32 v19, 0, v35, s[{sHi32}:{sHi32+1}]")
        a.wait(tk, dma.get(1))
        a("s_barrier")
        self.stamp_at(4)
        tt = {}
        tt[(0,0)] = rd_t(0, 0); kx[(0,0)] = rd_kx(0, 0); kx[(0,1)] = rd_kx(0, 1); tt[(0,1)] = rd_t(0, 1)
        tt[(1,0)] = rd_t(1, 0); kx[(1,0)] = rd_kx(1, 0); kx[(1,1)] = rd_kx(1, 1); tt[(1,1)] = rd_t(1, 1)
        kv_at("c1")
        X0, X1, MM = 20, 24, 28
        def sc(m, which):
            b = OB[m % 2]
            D = (X0, X1, MM)[which]; A = (b + 8, b + 12, b + 4)[which]
            need = [tt[(m, 0)], kx[(m, which)] if which < 2 else tt[(m, 1)]]
            a.wait(*need)
            a(f"v_mfma_f32_16x16x32_bf16 {vr(D,4)}, {vr(A,4)}, {vr(b,4)}, {'0' if m == 0 else vr(D,4)}")
        for m in range(4):
            sc(m, 0)
            if m < 2: kx[(m+2, 0)] = rd_kx(m + 2, 0)
            if m >= 1 and m <= 2: tt[(m+1, 1)] = rd_t(m + 1, 1)
            sc(m, 1)
            if m < 2: kx[(m+2, 1)] = rd_kx(m + 2, 1)
            sc(m, 2)
            if m < 2: tt[(m+2, 0)] = rd_t(m + 2, 0)
            if m < 3: kv_at(f"d{m}"); pf_at(f"d{m}")
        pf_at("d3")
        self.stamp_at(5)
        otiles = [t for t in L_TILES if t[0] == "o"]
        slots = [48, 56, 64]
        a(f"v_add_u32 v38, 0x10000, v{vLb}")
        lt = {}
        for k in range(3): lt[otiles[k]] = self.ld_l(otiles[k], slots[k], [vLb, 38])
        m_, t_ = 36, 37
        a(f"v_max3_f32 v{m_}, v20, v21, v22")
        a(f"v_max3_f32 v{t_}, v23, v24, v25")
        a(f"v_max3_f32 v{m_}, v{m_}, v26, v27")
        a(f"v_max3_f32 v{t_}, v{t_}, v28, v29")
        a(f"v_max3_f32 v{m_}, v{m_}, v30, v31")
        a(f"v_max_f32 v{m_}, v{m_}, v{t_}")
        a(f"v_mov_b32 v{t_}, v{m_}")
        a(f"v_permlane32_swap_b32 v{m_}, v{t_}")
        a(f"v_max_f32 v{m_}, v{m_}, v{t_}")
        a(f"v_mov_b32 v{t_}, v{m_}")
        a(f"v_permlane16_swap_b32 v{m_}, v{t_}")
        a(f"v_max_f32 v{m_}, v{m_}, v{t_}")
        a(f"v_mul_f32 v{m_}, s{sC}, v{m_}")
        pf_at("e1")
        for r in range(20, 32, 2):
            a(f"v_pk_fma_f32 v[{r}:{r+1}], v[{r}:{r+1}], s[{sC}:{sC+1}], v[{m_}:{m_+1}] op_sel_hi:[1,0,0] neg_lo:[0,0,1] neg_hi:[0,0,1]")
        for r in range(20, 32): a(f"v_exp_f32 v{r}, v{r}")
        a("v_cvt_pk_bf16_f32 v20, v20, v21")
        a("v_cvt_pk_bf16_f32 v21, v22, v23")
        a("v_cvt_pk_bf16_f32 v22, v24, v25")
        a("v_cvt_pk_bf16_f32 v23, v26, v27")
        a("v_cvt_pk_bf16_f32 v28, v28, v29")
        a("v_cvt_pk_bf16_f32 v29, v30, v31")
        pf_at("e2")
        self.stamp_at(6)
        O0, O1 = 24, 32
        a.wait(tvx1)
        a(f"v_mfma_f32_16x16x32_bf16 {vr(O0,4)}, {vr(VX0,4)}, v[20:23], 0")
        a(f"v_dot2_f32_bf16 v36, v28, s{sHalf}, 0")
        a(f"v_dot2_f32_bf16 v37, v20, s{sOnes}, 0")
        a(f"v_mfma_f32_16x16x32_bf16 {vr(O1,4)}, {vr(VX1,4)}, v[20:23], 0")
        a(f"v_dot2_f32_bf16 v36, v29, s{sHalf}, v36")
        a(f"v_dot2_f32_bf16 v37, v21, s{sOnes}, v37")
        a(f"v_mfma_f32_16x16x16_bf16 {vr(O0,4)}, v[16:17], v[28:29], {vr(O0,4)}")
        a(f"v_dot2_f32_bf16 v36, v22, s{sOnes}, v36")
        a(f"v_dot2_f32_bf16 v37, v23, s{sOnes}, v37")
        a(f"v_mfma_f32_16x16x16_bf16 {vr(O1,4)}, v[18:19], v[28:29], {vr(O1,4)}")
        pf_at("f")
        a(f"v_add_u32 v39, s{sW512}, v{vAoff}")
        vLo, vLone = 44, 45
        a(f"v_add_u32 v{vLo}, {9*8192}, v{vLb}")
        a("v_add_f32 v36, v36, v37")
        a("v_mov_b32 v37, v36")
        a("v_permlane32_swap_b32 v36, v37")
        a("v_add_f32 v36, v36, v37")
        a("v_mov_b32 v37, v36")
        a("v_permlane16_swap_b32 v36, v37")
        a("v_add_f32 v36, v36, v37")
        a("v_rcp_f32 v36, v36")
        lone_off(a, vLone, 46)
        for r in (O0, O0+2, O1, O1+2):
            a(f"v_pk_mul_f32 v[{r}:{r+1}], v[{r}:{r+1}], v[36:37] op_sel_hi:[1,0]")
        a(f"v_cvt_pk_bf16_f32 v24, v24, v25")
        a(f"v_cvt_pk_bf16_f32 v25, v26, v27")
        a(f"v_cvt_pk_bf16_f32 v26, v32, v33")
        a(f"v_cvt_pk_bf16_f32 v27, v34, v35")
        two = a.lg(f"ds_write_b128 v39, v[24:27] offset:{LDS_TO}")
        for k in range(8, 24, 2): a(f"v_mov_b64 v[{k}:{k+1}], 0")
        a.wait(two)
        a("s_barrier")
        self.stamp_at(7)
        AO = [28, 32, 36, 40]
        aot = [a.lg(f"ds_read_b128 {vr(AO[m],4)}, v{vAoff} offset:{LDS_TO + 512*m}") for m in range(4)]
        a("v_mov_b64 v[24:25], 0"); a("v_mov_b64 v[26:27], 0")
        acc = [8, 12, 16, 20, 24]
        def pst(b, soff, lone=False):
            if not lone:
                return [f"v_cvt_pk_bf16_f32 v{b}, v{b}, v{b+1}", f"v_cvt_pk_bf16_f32 v{b+1}, v{b+2}, v{b+3}",
                        f"v_cvt_pk_bf16_f32 v{b+2}, v{b+4}, v{b+5}", f"v_cvt_pk_bf16_f32 v{b+3}, v{b+6}, v{b+7}",
                        f"v_bfi_b32 v{b}, 1, s{sTag}, v{b}", f"v_bfi_b32 v{b+2}, 1, s{sTag}, v{b+2}",
                        f"@buffer_store_dwordx4 {vr(b,4)}, v{vPst}, {self.ws()}, s{soff} offen{self.sc}"]
            return [f"v_cvt_pk_bf16_f32 v{b}, v{b}, v{b+1}", f"v_cvt_pk_bf16_f32 v{b+1}, v{b+2}, v{b+3}",
                    f"v_bfi_b32 v{b}, 1, s{sTag}, v{b}",
                    f"@buffer_store_dwordx2 {vr(b,2)}, v{vLone}, {self.ws()}, s{soff} offen{self.sc}"]
        fill = []
        def emit(n):
            for _ in range(n):
                if not fill: return
                x = fill.pop(0)
                if x.startswith("@"): a.vm(x[1:])
                else: a(x)
        nlo = 0
        for n in range(20):
            p, m = divmod(n, 4)
            t = ("o", p, m)
            w = [aot[m]]
            if t in L_IDX: w.append(lt[t]); B = vr(slots[nlo % 3], 8)
            else: B = self.btile(t)
            a.wait(*w)
            self.smf(acc[p], AO[m], B)
            used = 0
            if t in L_IDX:
                nlo += 1
                if nlo + 2 < len(otiles):
                    lt[otiles[nlo+2]] = self.ld_l(otiles[nlo+2], slots[(nlo+2) % 3], None, base9=vLo); used = 2
            if n == 9: fill += pst(8, sP0)
            if n == 17: fill += pst(16, sP1)
            emit(2 - used)
        emit(99)
        fill += pst(24, sPl, lone=True); emit(99)
        self.stamp_at(8)
        if self.stamp: a(f"s_mov_b32 s65, s{sSpin}")
        a(f"s_add_u32 s{sStep}, s{sStep}, 1")
        step_offsets(a)
        nored = a.newlabel("NR")
        a(f"s_cmp_eq_u32 s{sIsRed}, 0")
        a(f"s_cbranch_scc1 {nored}")
        self.reducer()
        a.label(nored)
        a(f"s_waitcnt vmcnt(3)")
        a(f"v_readlane_b32 s{sFlK}, v{vFl}, 32")
        a(f"v_readlane_b32 s{sFlV}, v{vFl}, 48")
        self.check_flag()
        self.stamp_at(9)
        if self.stamp: a(f"s_mov_b32 s68, s{sSpin}")
        a("s_barrier")
        self.stamp_at(10)
        self.dump_stamps()
        a(f"s_xor_b32 s{sTag}, s{sTag}, 1")

    def reducer(self):
        a = self.a
        SEL, ACC, MO, TG, OUT, PO = 40, 44, 48, 49, 50, 52
        a(f"s_add_u32 s{sT1}, s{sPrd}, 4096")
        rd = 2
        for o in self.opt:
            if o.startswith("rd"): rd = int(o[2:])
        if rd: a(f"s_sleep {rd}")
        def setup():
            a(f"v_mov_b32 v54, 0x3f80")
            a(f"v_mov_b32 v55, 0x3f800000")
            a(f"v_bfe_u32 v{TG}, v{vL16}, 4, 1")
            a(f"v_cmp_eq_u32 vcc, 1, v{TG}")
            a(f"v_cndmask_b32 v54, v54, v55, vcc")
            for R in range(4): a(f"v_cndmask_b32 v{SEL+R}, 0, v54, s[{sSel+2*R}:{sSel+2*R+1}]")
            red_moff(a, MO, 54)
            a(f"v_mov_b32 v{PO}, -1"); a(f"v_mov_b32 v{PO+1}, -1")
        def polls():
            toks = []
            for k in range(8):
                sb = sPrd if k < 4 else sT1
                toks.append(a.vm(f"buffer_load_dwordx4 {vr(8+4*k,4)}, v{vL16}, {self.ws()}, s{sb} offen offset:{(k%4)*1024} sc1"))
            return toks
        def reduce(toks, tag):
            a(f"v_mov_b32 v{TG}, {0 if tag == 0 else -1}")
            for k in range(8):
                a.wait(toks[k], force=True)
                if k == 0: self.stamp_at(4, True)
                if k == 7: self.stamp_at(5, True)
                b = 8 + 4 * k
                if tag == 0: a(f"v_or3_b32 v{TG}, v{TG}, v{b}, v{b+2}")
                else:
                    a(f"v_and_b32 v{TG}, v{TG}, v{b}"); a(f"v_and_b32 v{TG}, v{TG}, v{b+2}")
                a(f"v_mfma_f32_16x16x32_bf16 {vr(ACC,4)}, {vr(b,4)}, {vr(SEL,4)}, {'0' if k == 0 else vr(ACC,4)}")
            a(f"v_and_b32 v{TG}, 1, v{TG}")
            a(f"v_cmp_ne_u32 vcc, {tag}, v{TG}")
        self.stamp_at(3, True)
        if "postsetup" not in self.opt: setup()
        toks = polls()
        if "postsetup" in self.opt: setup()
        odd = a.newlabel("RO"); fin = a.newlabel("RF")
        a(f"s_cmp_eq_u32 s{sTag}, 1")
        a(f"s_cbranch_scc1 {odd}")
        base = a.state()
        for tag in (0, 1):
            a.set_state(base)
            if tag == 1: a.label(odd)
            retry = a.newlabel("RR"); ok = a.newlabel("RK")
            reduce(toks, tag)
            a(f"s_cbranch_vccnz {retry}")
            a.label(ok)
            if tag == 0: a(f"s_branch {fin}")
            o = Asm(); o._lab = a._lab + 2000 + tag
            o.label(retry)
            sv = self.a; self.a = o; a_ = a; a = o
            self.stamp_at(3, True)
            t2 = polls(); spin(o); reduce(t2, tag)
            o(f"s_cbranch_vccnz {retry}")
            o(f"s_branch {ok}")
            a = a_; self.a = sv
            self.outofline += o.lines
        a.label(fin)
        a(f"v_cvt_pk_bf16_f32 v{OUT}, v{ACC}, v{ACC+1}")
        a(f"v_cvt_pk_bf16_f32 v{OUT+1}, v{ACC+2}, v{ACC+3}")
        a(f"v_min_u32 v{OUT+1}, s{sFE}, v{OUT+1}")
        a.vm(f"buffer_store_dwordx2 v[{OUT}:{OUT+1}], v{MO}, {self.ws()}, s{sMwr} offen{self.sc}")
        a.vm(f"buffer_store_dwordx2 v[{PO}:{PO+1}], v{MO}, {self.ws()}, s{sMpo} offen{self.sc}")

    def check_flag(self):
        a = self.a
        ok = a.newlabel("FK"); lab = a.newlabel("FS")
        a.label(lab)
        a(f"s_min_u32 s{sT0}, s{sFlK}, s{sFlV}")
        a(f"s_and_b32 s{sT1}, s{sStep}, 15")
        a(f"s_cmp_gt_u32 s{sT0}, s{sT1}")
        a(f"s_cbranch_scc1 {ok}")
        a(f"v_bfe_u32 v56, v{vL16}, 8, 1")
        a(f"v_lshlrev_b32 v56, 8, v56")
        a(f"v_add_u32 v56, s{sFlagCur}, v56")
        a(f"buffer_load_dword v57, v56, {self.ws()}, 0 offen sc1")
        spin(a)
        a("s_waitcnt vmcnt(0)")
        a(f"v_readlane_b32 s{sFlK}, v57, 0")
        a(f"v_readlane_b32 s{sFlV}, v57, 16")
        a(f"s_branch {lab}")
        a.label(ok)


def chain_main(a, fast=True, name="C", stamp=False, timing=False, opt=(), confirm=None):
    global PF_DIST, NT, OPTS, KXNT, WMOD
    WMOD = '' if 'wplain' in opt else ' nt'
    KXNT = '' if 'kxplain' in opt else ' nt'
    OPTS = set(opt)
    PF_DIST = 2 if "pf2" in opt else 1
    NT = "" if "xplain" in opt else " nt"
    def rts(i):
        if "rt" in opt:
            a("s_memrealtime s[88:89]"); a("s_waitcnt lgkmcnt(0)")
            a("s_sub_u32 s88, s88, s98")
            a("v_mov_b32 v8, s88"); a(f"s_lshl_b32 s89, s{sH}, 6"); a(f"s_add_u32 s89, s89, {WS_STAMP + 0x10000 + 4*i}")
            a("v_mov_b32 v9, s89")
            a(f"buffer_store_dword v8, v9, s[{S_WS}:{S_WS+3}], 0 offen")
    rts(0)
    if "rt" in opt:
        a("v_mov_b32 v8, s98"); a(f"s_lshl_b32 s89, s{sH}, 6"); a(f"s_add_u32 s89, s89, {WS_STAMP + 0x10000 + 60}")
        a("v_mov_b32 v9, s89"); a(f"buffer_store_dword v8, v9, s[{S_WS}:{S_WS+3}], 0 offen")
    scalar_consts(a)
    lane_consts(a)
    a(f"v_add_u32 v{vLb}, s{sLb}, v{vL16}")
    st = {}
    def hook(k):
        if k == 1: st["m0"] = mem0_loads(a)
        if k == 12: mem0_writes(a, st["m0"])
        if k == 50:
            if confirm: confirm(a)
            init_exchange(a, "" if fast else " sc1")
        if k == 64:
            early = "xksc"
            for o in opt:
                if o.startswith("we="): early = o[3:]
            warm_early(early)
    def warm(what):
        a(f"v_lshlrev_b32 v28, 3, v{vL16}")
        if "x" in what:
            a(f"s_lshl_b32 s{sT0}, s{sH}, 13"); a(f"s_lshl_b32 s{sT1}, s{sW}, 11"); a(f"s_add_u32 s{sT0}, s{sT0}, s{sT1}")
            a(f"s_add_u32 s{sT1}, s{sT0}, {WS_KX}"); a(f"s_add_u32 s{sT0}, s{sT0}, {WS_VX}")
            a("s_mov_b64 exec, 0xffff")
            a(f"buffer_load_dword v29, v28, s[{S_WS}:{S_WS+3}], s{sT1} offen sc1")
            a(f"buffer_load_dword v30, v28, s[{S_WS}:{S_WS+3}], s{sT0} offen sc1")
            a("s_mov_b64 exec, -1")
        if "s" in what:
            for k in range(2):
                a(f"s_add_u32 s{sT0}, s{sSW}, {3*2048 + k*8192}")
                if k == 1: a("s_mov_b64 exec, 0xffff")
                a(f"buffer_load_dword v{31+k}, v28, s[{S_WS}:{S_WS+3}], s{sT0} offen")
            a("s_mov_b64 exec, -1")
        if "k" in what:
            a(f"s_lshl_b32 s{sT0}, s{sH}, 12"); a(f"s_add_u32 s{sT0}, s{sT0}, {WS_KM}")
            a(f"buffer_load_dword v33, v{vL16}, s[{S_WS}:{S_WS+3}], s{sT0} offen sc1")
        if "c" in what:
            pcl = a.newlabel("PC")
            a("s_getpc_b64 s[48:49]")
            a.label(pcl)
            a(f"s_add_u32 s48, s48, {name}_TOP-{pcl}")
            a("s_addc_u32 s49, s49, 0")
            a("global_load_dword v34, v28, s[48:49]")
    warm_early = warm
    rts(1)
    weights_prologue(a, hook)
    rts(2)
    a(f"s_mov_b32 s{sStep}, 0")
    a(f"s_mov_b32 s{sTag}, 0")
    a(f"s_lshr_b32 s{sT1}, s{sH}, 1")
    a(f"s_lshl_b32 s{sT1}, s{sT1}, 2")
    a(f"s_add_u32 s{sFlagOff}, s{sT1}, {FL_KV}")
    lab = a.newlabel("W0")
    a(f"v_bfe_u32 v35, v{vL16}, 8, 1")
    a(f"v_lshlrev_b32 v35, 8, v35")
    a(f"v_add_u32 v35, s{sFlagOff}, v35")
    a.label(lab)
    a(f"buffer_load_dword v{vFl}, v35, s[{S_WS}:{S_WS+3}], 0 offen sc1")
    spin(a)
    a("s_waitcnt vmcnt(0)")
    a(f"v_cmp_eq_u32 vcc, 0, v{vFl}")
    a(f"s_cbranch_vccnz {lab}")
    step_offsets(a)
    late = "x"
    for o in opt:
        if o.startswith("wl="): late = o[3:]
    rts(6)
    warm(late)
    if "rt" in opt:
        a.wait_all_vm()
        rts(7)
    team_barrier(a, FL_TEAM, "" if fast else " sc1")
    rts(3)
    rts(4)
    st0 = Step(a, fast, None, opt)
    st0.pre_poll()
    a.wait_all()
    entry = f"{name}_ENTRY"; top = f"{name}_TOP"; ex = f"{name}_EXIT"
    if timing:
        a("s_memtime s[98:99]"); a("s_waitcnt lgkmcnt(0)")
    a(f"s_branch {entry}")
    a(".p2align 6")
    for o in opt:
        if o.startswith("pad"):
            for _ in range(int(o[3:])): a("s_nop 0")
    a.label(top)
    st = Step(a, fast, stamp, opt)
    st.exit_label = ex
    st.body(entry)
    a(f"s_branch {top}")
    a.lines += st.outofline
    a.label(ex)
    a(f"buffer_store_dwordx4 v[32:35], v{vL16}, s[{S_WS}:{S_WS+3}], s{sKM} offen sc1")
    a(f"v_mov_b32 v38, {NSEG-1}")
    a("v_mov_b32 v39, 0")
    a(f"buffer_store_dword v38, v39, s[{S_WS}:{S_WS+3}], s{sFlM} offen sc1")
    rts(5)
    a.wait_all()
    a("s_barrier")
    a(f"s_lshl_b32 s{sT0}, s{sH}, 7")
    a(f"s_add_u32 s{sT0}, s{sT0}, {FL_M}")
    a(f"v_mov_b32 v43, {NSEG}")
    a(f"v_mov_b32 v40, 0")
    a(f"buffer_store_dword v43, v40, s[{S_WS}:{S_WS+3}], s{sT0} offen sc1")
    a("s_waitcnt vmcnt(0)")
```

```python
from asmlib import *
from layout import *
import struct, math

S_WS = 4
S_A = 8
S_B = 16
sW = 13
sSpin = 74
sT0, sT1, sT2, sT3 = 47, 48, 49, 50
pX, pWq, pWk, pWv, pWo, pW1, pB1, pW2, pOut = 56, 58, 60, 62, 64, 66, 68, 70, 72
WS = f"s[{S_WS}:{S_WS+3}]"
def vr(b, n): return f"v[{b}:{b+n-1}]"
def ar(b, n): return f"a[{b}:{b+n-1}]"
def fbits(x): return struct.unpack("<I", struct.pack("<f", x))[0]
def srd(a, s, lo, nbytes):
    a(f"s_mov_b32 s{s}, s{lo}")
    a(f"s_and_b32 s{s+1}, s{lo+1}, 0xffff")
    a(f"s_mov_b32 s{s+2}, {nbytes}")
    a(f"s_mov_b32 s{s+3}, 0x20000")
SLEEP = 2
WOPT = set()
def spin(a):
    a(f"s_sub_u32 s{sSpin}, s{sSpin}, 1")
    a("s_cbranch_scc1 L_TIMEOUT")
def backoff(a, lab):
    ok = a.newlabel("BK")
    a(f"s_cbranch_vccz {ok}")
    if SLEEP: a(f"s_sleep {SLEEP}")
    a(f"s_branch {lab}")
    a.label(ok)
def poll_ge(a, soff_reg_or_imm, target_sreg, vt=8, label="PG"):
    lab = a.newlabel(label)
    a(f"v_mov_b32 v{vt}, {soff_reg_or_imm}")
    a.label(lab)
    a(f"buffer_load_dword v{vt+1}, v{vt}, {WS}, 0 offen sc1")
    spin(a)
    a("s_waitcnt vmcnt(0)")
    a(f"v_cmp_gt_u32 vcc, {target_sreg}, v{vt+1}")
    backoff(a, lab)
def atomic_inc(a, off, vt=8, by_wave0=True):
    a(f"v_mov_b32 v{vt}, {off}")
    a(f"v_mov_b32 v{vt+1}, 1")
    a("s_mov_b64 exec, 1")
    a(f"buffer_atomic_add v{vt+1}, v{vt}, {WS}, 0 offen")
    a("s_mov_b64 exec, -1")

def ln_role(a, sSeg, confirm=None):
    a("; ==== LayerNorm")
    srd(a, S_A, pX, S * D * 2)
    a("v_and_b32 v1, 63, v0")
    a("v_lshrrev_b32 v2, 3, v1")
    a("v_and_b32 v3, 7, v1")
    a(f"s_lshl_b32 s{sT0}, s{sW}, 3")
    a(f"v_add_u32 v4, s{sT0}, v2")
    a(f"s_movk_i32 s{sT1}, 1280")
    a(f"v_mul_lo_u32 v5, v4, s{sT1}")
    a("v_lshl_add_u32 v5, v3, 4, v5")
    a(f"s_mul_i32 s{sT2}, s{sSeg}, 40960")
    toks = [a.vm(f"buffer_load_dwordx4 {vr(16+4*i,4)}, v5, s[{S_A}:{S_A+3}], s{sT2} offen offset:{128*i}") for i in range(10)]
    a("v_lshrrev_b32 v6, 1, v3")
    a("v_lshlrev_b32 v6, 10, v6")
    a("v_and_b32 v7, 1, v3")
    a("v_lshl_add_u32 v6, v7, 9, v6")
    a("v_lshl_add_u32 v6, v4, 4, v6")
    X = 64
    for i in range(10):
        a.wait(toks[i])
        for r in range(4):
            a(f"v_lshlrev_b32 v{X+8*i+2*r}, 16, v{16+4*i+r}")
            a(f"v_and_b32 v{X+8*i+2*r+1}, 0xffff0000, v{16+4*i+r}")
    def reduce8(r):
        a(f"v_add_f32_dpp v{r}, v{r}, v{r} quad_perm:[1,0,3,2] row_mask:0xf bank_mask:0xf")
        a(f"v_add_f32_dpp v{r}, v{r}, v{r} quad_perm:[2,3,0,1] row_mask:0xf bank_mask:0xf")
        a(f"v_add_f32_dpp v{r}, v{r}, v{r} row_half_mirror row_mask:0xf bank_mask:0xf")
    for k in range(4): a(f"v_add_f32 v{8+k}, v{X+k}, v{X+4+k}")
    for j in range(8, 80): a(f"v_add_f32 v{8+j%4}, v{8+j%4}, v{X+j}")
    a("v_add_f32 v8, v8, v9"); a("v_add_f32 v10, v10, v11"); a("v_add_f32 v8, v8, v10")
    reduce8(8)
    a(f"v_mul_f32 v8, {fbits(1.0/640):#x}, v8")
    for k in range(4): a(f"v_mov_b32 v{9+k}, 0")
    for j in range(80):
        a(f"v_sub_f32 v13, v{X+j}, v8")
        a(f"v_fmac_f32 v{9+j%4}, v13, v13")
    a("v_add_f32 v9, v9, v10"); a("v_add_f32 v11, v11, v12"); a("v_add_f32 v9, v9, v11")
    reduce8(9)
    a(f"v_mul_f32 v9, {fbits(1.0/640):#x}, v9")
    def rb(r):
        a(f"v_cvt_pk_bf16_f32 v{r}, v{r}, v{r}")
        a(f"v_and_b32 v{r}, 0xffff0000, v{r}")
    rb(8); rb(9)
    a(f"v_add_f32 v9, {fbits(1e-5):#x}, v9"); rb(9)
    a("v_sqrt_f32 v9, v9"); rb(9)
    a("v_rcp_f32 v10, v9")
    a("v_fma_f32 v11, -v9, v10, 1.0")
    a("v_fma_f32 v10, v11, v10, v10")
    if confirm: confirm(a)
    for i in range(10):
        for r in range(4):
            x0, x1 = X + 8*i + 2*r, X + 8*i + 2*r + 1
            d = 16 + 4*i + r
            a(f"v_sub_f32 v{x0}, v{x0}, v8")
            a(f"v_sub_f32 v{x1}, v{x1}, v8")
            a(f"v_cvt_pk_bf16_f32 v{d}, v{x0}, v{x1}")
            a(f"v_lshlrev_b32 v{x0}, 16, v{d}")
            a(f"v_and_b32 v{x1}, 0xffff0000, v{d}")
            a(f"v_mul_f32 v{x0}, v{x0}, v10")
            a(f"v_mul_f32 v{x1}, v{x1}, v10")
            a(f"v_cvt_pk_bf16_f32 v{d}, v{x0}, v{x1}")
        a(f"s_add_u32 s{sT3}, s{sT2}, {WS_XN + 4096*i}")
        a.vm(f"buffer_store_dwordx4 {vr(16+4*i,4)}, v6, {WS}, s{sT3} offen sc1")
    a.wait_all_vm()
    a("s_barrier")
    sk = a.newlabel("LNS")
    a(f"s_cmp_lg_u32 s{sW}, 0"); a(f"s_cbranch_scc1 {sk}")
    atomic_inc(a, WS_FLAGS + FL_LN)
    a.label(sk)

sBlk, sSplit, sCol, sStride, sSeg, sOutB, sFlag = 20, 21, 22, 23, 24, 25, 26
sRow, sW2048, sN, sDma = 27, 28, 29, 30
vL16 = 1
def wtile(kk, T):
    if kk < 32: return ar(8*kk + 4*T, 4)
    return vr(192 + 8*(kk-32) + 4*T, 4)
def wtile_base(kk, T):
    return ("a", 8*kk + 4*T) if kk < 32 else ("v", 192 + 8*(kk-32) + 4*T)

def w1_weights(a, perm_sreg):
    a("; ---- projection weights")
    a("v_and_b32 v2, 63, v0")
    a(f"v_lshlrev_b32 v{vL16}, 4, v2")
    a("v_lshrrev_b32 v3, 5, v2")
    a(f"v_mul_lo_u32 v4, v3, s{sStride}")
    a("v_and_b32 v3, 31, v2")
    a("v_lshl_add_u32 v4, v3, 4, v4")
    a("v_lshrrev_b32 v5, 4, v2")
    a("v_and_b32 v6, 1, v5")
    a("v_lshrrev_b32 v5, 1, v5")
    a("v_bfe_u32 v7, v2, 2, 2")
    a("v_lshl_add_u32 v7, v5, 3, v7")
    a("v_lshlrev_b32 v7, 9, v7")
    a("v_and_b32 v8, 3, v2")
    a("v_lshl_add_u32 v8, v6, 2, v8")
    a("v_lshlrev_b32 v9, 2, v8")
    a("v_lshrrev_b32 v10, 2, v8"); a("v_lshlrev_b32 v10, 4, v10")
    a("v_and_b32 v11, 1, v8"); a("v_lshl_add_u32 v10, v11, 3, v10")
    a("v_bfe_u32 v11, v8, 1, 1"); a("v_lshl_add_u32 v10, v11, 2, v10")
    a(f"s_cmp_lg_u32 s{perm_sreg}, 0")
    a("s_cselect_b64 vcc, -1, 0")
    a("v_cndmask_b32 v9, v9, v10, vcc")
    a("v_lshl_add_u32 v7, v9, 1, v7")
    a(f"s_lshl_b32 s{sT0}, s{sW}, 7")
    a(f"v_add_u32 v7, s{sT0}, v7")
    a(f"s_lshl_b32 s{sW2048}, s{sW}, 11")
    a(f"s_mul_i32 s{sRow}, s{sStride}, s{sW}")
    a(f"s_lshl_b32 s{sRow}, s{sRow}, 2")
    a(f"s_add_u32 s{sRow}, s{sRow}, s{sCol}")
    a(f"s_lshl_b32 s{sT2}, s{sStride}, 1")
    a(f"s_lshl_b32 s{sT3}, s{sStride}, 4")
    NS = 16
    toks = {}
    def issue(k):
        for uu in range(2):
            if uu == 0: a(f"s_mov_b32 s{sT0}, s{sRow}")
            else: a(f"s_add_u32 s{sT0}, s{sRow}, s{sT2}")
            a(f"s_add_u32 m0, s{sW2048}, {(k % NS)*8192 + uu*1024}")
            toks[(k, uu)] = a.vm(f"buffer_load_dwordx4 v4, s[{S_A}:{S_A+3}], s{sT0} offen lds")
        a(f"s_add_u32 s{sRow}, s{sRow}, s{sT3}")
    for k in range(NS): issue(k)
    for k in range(40):
        a.wait(toks[(k, 1)])
        a("s_barrier")
        if k >= 1 and k - 1 + NS < 40: issue(k - 1 + NS)
        a(f"v_add_u32 v12, {(k % NS)*8192}, v7")
        last = None
        for T in range(2):
            cls, b = wtile_base(k, T)
            a.lg(f"ds_read_b64_tr_b16 {cls}[{b}:{b+1}], v12 offset:{64*T}")
            last = a.lg(f"ds_read_b64_tr_b16 {cls}[{b+2}:{b+3}], v12 offset:{64*T + 2048}")
        a.wait(last)
    a("s_barrier")

ACC = [[96, 112], [128, 144]]
FR = [16, 20, 24, 28]
sOutW, sSlot, sSlotD, sLast = 31, 32, 33, 34
def w1_loop(a, kind, confirm=None):
    a(f"; ---- projection loop: {kind}")
    a("v_and_b32 v2, 63, v0")
    a("v_and_b32 v3, 15, v2")
    a("v_bfe_u32 v4, v2, 4, 1")
    a("v_lshrrev_b32 v5, 5, v2")
    vE = 6
    if kind == "kq": a(f"v_lshlrev_b32 v{vE}, 12, v4")
    elif kind == "v": a(f"v_lshlrev_b32 v{vE}, 10, v4")
    else:
        a(f"s_mov_b32 s{sT0}, {ACT_KK*1024}")
        a(f"v_mul_lo_u32 v{vE}, v4, s{sT0}")
    a(f"v_lshl_add_u32 v{vE}, v5, 8, v{vE}")
    a(f"v_lshl_add_u32 v{vE}, v3, 4, v{vE}")
    if kind == "f":
        a(f"s_lshl_b32 s{sT0}, s{sW}, 7")
        a(f"s_add_u32 s{sT0}, s{sT0}, s{sCol}")
        a(f"s_cmp_ge_u32 s{sT0}, {F*2}")
        a(f"s_cselect_b32 s{sT1}, 0x7fffffff, 0")
        a(f"v_or_b32 v{vE}, s{sT1}, v{vE}")
        srd(a, S_B, pB1, F * 2)
        a("v_lshlrev_b32 v7, 4, v5")
        tb = []
        for T in range(2):
            for pp in range(2):
                tb.append(a.vm(f"buffer_load_dwordx4 {vr(32+4*(2*T+pp),4)}, v7, s[{S_B}:{S_B+3}], s{sT0} offen offset:{64*T+32*pp}"))
        a.wait(tb[-1])
        for q in range(4):
            for r in range(4):
                a(f"v_lshlrev_b32 v{160+8*q+2*r}, 16, v{32+4*q+r}")
                a(f"v_and_b32 v{160+8*q+2*r+1}, 0xffff0000, v{32+4*q+r}")
    if confirm: confirm(a)
    if "w1rt" in WOPT: a("s_memtime s[92:93]"); a("s_waitcnt lgkmcnt(0)")
    if "w1full" in WOPT:
        a("s_memrealtime s[92:93]"); a("s_waitcnt lgkmcnt(0)"); a("s_sub_u32 s92, s92, s98")
    lw = a.newlabel("LNW"); lp = a.newlabel("LNP"); lk = a.newlabel("LNK")
    a(f"s_cmp_lg_u32 s{sW}, 0"); a(f"s_cbranch_scc1 {lw}")
    a(f"v_mov_b32 v8, {WS_FLAGS + FL_LN}")
    a.label(lp)
    a(f"buffer_load_dword v9, v8, {WS}, 0 offen sc1")
    spin(a)
    a("s_waitcnt vmcnt(0)")
    a("v_cmp_gt_u32 vcc, 64, v9")
    a(f"s_cbranch_vccz {lk}")
    a("s_sleep 12")
    a(f"s_branch {lp}")
    a.label(lk)
    a.label(lw)
    a("s_barrier")
    if "w1rt" in WOPT: a("s_memtime s[94:95]"); a("s_waitcnt lgkmcnt(0)")
    if "w1full" in WOPT:
        a("s_memrealtime s[94:95]"); a("s_waitcnt lgkmcnt(0)"); a("s_sub_u32 s94, s94, s98")
    a(f"s_mul_i32 s{sDma}, s{sW}, 10240")
    a(f"s_mul_i32 s{sT0}, s{sSeg}, 40960")
    a(f"s_add_u32 s{sT0}, s{sT0}, s{sDma}")
    a(f"s_add_u32 s{sRow}, s{sT0}, {WS_XN}")
    a(f"s_add_u32 s{sLast}, s{sRow}, {15*40960}")
    def dma_list():
        G = []
        for q in range(10):
            g = []
            if q == 0: g.append(f"s_add_u32 s{sT1+4}, s{sSlotD}, s{sDma}")
            if q % 4 == 0:
                g.append(f"s_add_u32 s{sT1+5}, s{sRow}, {q*1024}")
                g.append(f"s_add_u32 m0, s{sT1+4}, {q*1024}")
            g.append(f"buffer_load_dwordx4 v{vL16}, {WS}, s{sT1+5} offen offset:{(q%4)*1024} sc1 lds")
            G.append(g)
        G[-1] += [f"s_add_u32 s{sRow}, s{sRow}, 40960", f"s_min_u32 s{sRow}, s{sRow}, s{sLast}",
                  f"s_add_u32 s{sSlotD}, s{sSlotD}, 40960", f"s_cmp_eq_u32 s{sSlotD}, 122880", f"s_cselect_b32 s{sSlotD}, 0, s{sSlotD}"]
        return G
    def dma():
        for g in dma_list():
            for x in g: a(x)
    def rot(r):
        a(f"s_add_u32 s{r}, s{r}, 40960")
        a(f"s_cmp_eq_u32 s{r}, 122880")
        a(f"s_cselect_b32 s{r}, 0, s{r}")
    def epilogue(par):
        L = []
        for T in range(2):
            A = ACC[par][T]
            for pp in range(2):
                o = 40 + 4 * pp
                if kind == "v":
                    src = [A + 4*pp + k for k in range(4)] + [A + 4*(pp+2) + k for k in range(4)]
                    off = T * 2048 + pp * 512
                else:
                    src = [A + 8*pp + k for k in range(8)]
                    off = T * 1024 + pp * 512
                if kind == "f":
                    bias = 160 + 8 * (2*T + pp)
                    for k0 in range(0, 8, 4):
                        ks = range(k0, k0 + 4)
                        t = lambda k: 48 + (k % 4) * 2
                        L += [f"v_add_f32 v{src[k]}, v{src[k]}, v{bias+k}" for k in ks]
                        L += [f"v_mul_f32 v{t(k)}, {fbits(math.log2(math.e)):#x}, v{src[k]}" for k in ks]
                        L += [f"v_min_f32 v{t(k)}, {fbits(30.0):#x}, v{t(k)}" for k in ks]
                        L += [f"v_exp_f32 v{t(k)}, v{t(k)}" for k in ks]
                        L += [f"v_add_f32 v{t(k)+1}, 2.0, v{t(k)}" for k in ks]
                        L += [f"v_mul_f32 v{t(k)}, v{t(k)}, v{t(k)+1}" for k in ks]
                        L += [f"v_add_f32 v{t(k)+1}, 2.0, v{t(k)}" for k in ks]
                        L += [f"v_rcp_f32 v{t(k)+1}, v{t(k)+1}" for k in ks]
                        L += [f"v_mul_f32 v{src[k]}, v{src[k]}, v{t(k)}" for k in ks]
                        L += [f"v_mul_f32 v{src[k]}, v{src[k]}, v{t(k)+1}" for k in ks]
                for r in range(4): L.append(f"v_cvt_pk_bf16_f32 v{o+r}, v{src[2*r]}, v{src[2*r+1]}")
                if "nost" in WOPT: L.append("s_nop 0")
                else: L.append(f"buffer_store_dwordx4 {vr(o,4)}, v{vE}, {WS}, s{sOutB} offen offset:{off}{'' if 'plainst' in WOPT else ' sc1'}")
        return L
    def publish(val):
        sk = a.newlabel("PB")
        a(f"s_cmp_lg_u32 s{sW}, 0"); a(f"s_cbranch_scc1 {sk}")
        a(f"v_mov_b32 v8, {val}")
        a(f"v_mov_b32 v9, s{sFlag}")
        a(f"buffer_store_dword v8, v9, {WS}, 0 offen sc1")
        a.label(sk)
    def out_base(delta):
        a(f"s_add_u32 s{sT0}, s{sSeg}, s{sN}")
        if delta: a(f"s_sub_u32 s{sT0}, s{sT0}, {delta}")
        if kind == "f": a(f"s_mul_i32 s{sOutB}, s{sT0}, {2*ACT_KK*1024}")
        else: a(f"s_lshl_b32 s{sOutB}, s{sT0}, 18")
        a(f"s_add_u32 s{sOutB}, s{sOutB}, s{sOutW}")
    def segment(par, with_epi, wait):
        if "nost" in WOPT: wait = 10
        a(f"s_waitcnt vmcnt({wait})")
        a("s_barrier")
        dg = dma_list()
        if with_epi:
            a(f"s_sub_u32 s{sT2}, s{sN}, 2")
            a(f"s_max_i32 s{sT2}, s{sT2}, 0")
            publish(f"s{sT2}")
            out_base(1)
        fill = epilogue(1 - par) if (with_epi and "noepi" not in WOPT) else []
        per = -(-len(fill) // 74) if fill else 0
        a(f"v_add_u32 v12, s{sSlot}, v{vL16}")
        rt = {}
        def rd(kk): rt[kk] = a.lg(f"ds_read_b128 {vr(FR[kk%4],4)}, v12 offset:{kk*1024}")
        rd(0); rd(1); rd(2)
        for kk in range(40):
            a.wait(rt[kk])
            for T in range(2):
                Dr = vr(ACC[par][T], 16); C = "0" if kk == 0 else Dr
                if kind == "v": a(f"v_mfma_f32_32x32x16_bf16 {Dr}, {vr(FR[kk%4],4)}, {wtile(kk,T)}, {C}")
                else: a(f"v_mfma_f32_32x32x16_bf16 {Dr}, {wtile(kk,T)}, {vr(FR[kk%4],4)}, {C}")
                if T == 0 and kk + 3 < 40: rd(kk + 3)
                if T == 1 and kk % (3 if (kind == "f" or "epi3" in WOPT) else 2) == 0 and dg:
                    for x in dg.pop(0): a(x)
                if kk >= (3 if (kind == "f" or "epi3" in WOPT) else 28):
                    for _ in range(per):
                        if fill: a(fill.pop(0))
        assert not dg
        for x in fill: a(x)
        rot(sSlot)
        a(f"s_add_u32 s{sN}, s{sN}, 1")
    a(f"s_mov_b32 s{sN}, 0")
    a(f"s_mov_b32 s{sSlot}, 0")
    a(f"s_mov_b32 s{sSlotD}, 0")
    a("s_barrier")
    dma(); dma()
    segment(0, False, 10)
    top = a.newlabel("W1T"); mid = a.newlabel("W1M"); done = a.newlabel("W1D")
    segment(1, True, 10)
    a.label(top)
    segment(0, True, 14)
    segment(1, True, 14)
    a(f"s_cmp_lt_u32 s{sN}, 16"); a(f"s_cbranch_scc1 {top}")
    out_base(1)
    for x in epilogue(1): a(x)
    a("s_waitcnt vmcnt(0)")
    a("s_barrier")
    publish("16")
    if "w1full" in WOPT:
        a("s_memrealtime s[90:91]"); a("s_waitcnt lgkmcnt(0)"); a("s_sub_u32 s90, s90, s98")
        a("v_mov_b32 v8, s92"); a("v_mov_b32 v9, s94"); a("v_mov_b32 v10, s90")
        a("s_lshl_b32 s90, s99, 4"); a(f"s_add_u32 s90, s90, {WS_STAMP + 0x40000}"); a("v_mov_b32 v11, 0")
        a(f"buffer_store_dwordx3 v[8:10], v11, {WS}, s90 offen")

def w1_role(a, confirm=None):
    a("; ==== projection GEMM role")
    lk, lv, lq, lf, go = (a.newlabel(x) for x in ("W1K", "W1V", "W1Q", "W1F", "W1G"))
    a(f"s_lshl_b32 s{sSeg}, s{sSplit}, 4")
    a(f"s_and_b32 s{sT2}, s{sBlk}, 15")
    a(f"s_lshl_b32 s{sCol}, s{sT2}, 9")
    a(f"s_movk_i32 s{sStride}, 8192")
    a(f"s_lshl_b32 s{sT0}, s{sT2}, 1")
    a(f"s_lshr_b32 s{sT1}, s{sW}, 1")
    a(f"s_add_u32 s{sT0}, s{sT0}, s{sT1}")
    a(f"s_lshl_b32 s{sT0}, s{sT0}, 13")
    a(f"s_and_b32 s{sT1}, s{sW}, 1")
    a(f"s_lshl_b32 s{sFlag}, s{sSplit}, 4")
    a(f"s_add_u32 s{sFlag}, s{sFlag}, s{sT2}")
    a(f"s_lshl_b32 s{sFlag}, s{sFlag}, 2")
    a(f"s_cmp_lt_u32 s{sBlk}, 16"); a(f"s_cbranch_scc1 {lk}")
    a(f"s_cmp_lt_u32 s{sBlk}, 32"); a(f"s_cbranch_scc1 {lv}")
    a(f"s_cmp_lt_u32 s{sBlk}, 48"); a(f"s_cbranch_scc1 {lq}")
    a.label(lf)
    a(f"s_sub_u32 s{sT2}, s{sBlk}, 48")
    a(f"s_lshl_b32 s{sCol}, s{sT2}, 9")
    a(f"s_movk_i32 s{sStride}, {F*2}")
    a(f"s_lshl_b32 s{sT0}, s{sT2}, 3")
    a(f"s_lshl_b32 s{sT1}, s{sW}, 1")
    a(f"s_add_u32 s{sT0}, s{sT0}, s{sT1}")
    a(f"s_lshl_b32 s{sT0}, s{sT0}, 10")
    a(f"s_add_u32 s{sOutW}, s{sT0}, {WS_ACT}")
    a(f"s_lshl_b32 s{sFlag}, s{sSplit}, 3")
    a(f"s_add_u32 s{sFlag}, s{sFlag}, s{sT2}")
    a(f"s_lshl_b32 s{sFlag}, s{sFlag}, 2")
    a(f"s_add_u32 s{sFlag}, s{sFlag}, {WS_FLAGS + FL_ACT}")
    srd(a, S_A, pW1, D * F * 2)
    a(f"s_mov_b32 s{sT3+1}, 1")
    w1_weights(a, sT3 + 1)
    w1_loop(a, "f", confirm)
    end = a.newlabel("W1E")
    a(f"s_branch {end}")
    for lab, ptr, base, fl in ((lk, pWk, WS_KX, FL_KV), (lq, pWq, WS_QX, FL_Q)):
        a.label(lab)
        a(f"s_lshl_b32 s{sT1}, s{sT1}, 11")
        a(f"s_add_u32 s{sOutW}, s{sT0}, s{sT1}")
        a(f"s_add_u32 s{sOutW}, s{sOutW}, {base}")
        a(f"s_add_u32 s{sFlag}, s{sFlag}, {WS_FLAGS + fl}")
        srd(a, S_A, ptr, D * H * DH * 2)
        if lab == lk: a(f"s_branch {go}")
    a.label(go)
    a(f"s_mov_b32 s{sT3+1}, 1")
    w1_weights(a, sT3 + 1)
    w1_loop(a, "kq", confirm)
    a(f"s_branch {end}")
    a.label(lv)
    a(f"s_lshl_b32 s{sT1}, s{sT1}, 12")
    a(f"s_add_u32 s{sOutW}, s{sT0}, s{sT1}")
    a(f"s_add_u32 s{sOutW}, s{sOutW}, {WS_VX}")
    a(f"s_add_u32 s{sFlag}, s{sFlag}, {WS_FLAGS + FL_KV + 256}")
    srd(a, S_A, pWv, D * H * DH * 2)
    a(f"s_mov_b32 s{sT3+1}, 0")
    w1_weights(a, sT3 + 1)
    w1_loop(a, "v", confirm)
    a.label(end)

sAi, sSegA, sHead, sBase = 20, 21, 22, 23
sMsk = 36
sLo32, sHi32 = 44, 52
sCc, sOnes, sHalf = 38 + 50, 39 + 50, 40 + 50
def softmax_lane_consts(a):
    c = fbits((128 ** -0.5) * math.log2(math.e))
    a(f"s_mov_b32 s{sCc}, {c:#x}"); a(f"s_mov_b32 s{sOnes}, 0x3f803f80"); a(f"s_mov_b32 s{sHalf}, 0x3f003f00")

def att_role(a):
    a("; ==== attention role")
    softmax_lane_consts(a)
    a("v_and_b32 v2, 63, v0")
    a(f"v_lshlrev_b32 v{vL16}, 4, v2")
    a("v_and_b32 v3, 15, v2")
    a("v_lshrrev_b32 v4, 4, v2")
    for jj in range(4):
        a(f"v_lshl_add_u32 v5, v4, 2, {jj}")
        a(f"v_cmp_le_u32 s[{sMsk+2*jj}:{sMsk+2*jj+1}], v5, v3")
    a(f"v_cmp_gt_u32 s[{sLo32}:{sLo32+1}], 32, v2")
    a(f"v_cmp_le_u32 s[{sHi32}:{sHi32+1}], 32, v2")
    a("v_lshrrev_b32 v5, 1, v4"); a("v_lshl_add_u32 v5, v5, 4, v3"); a("v_lshlrev_b32 v5, 4, v5")
    a("v_and_b32 v6, 1, v4"); a("v_lshl_add_u32 v6, v6, 3, v5")
    a(f"s_lshl_b32 s{sT0}, s{sW}, 11"); a(f"v_add_u32 v6, s{sT0}, v6")
    a("v_lshrrev_b32 v5, 2, v3"); a("v_lshl_add_u32 v5, v4, 3, v5"); a("v_lshlrev_b32 v5, 4, v5")
    a("v_and_b32 v7, 1, v3"); a("v_lshl_add_u32 v7, v7, 3, v5"); a(f"v_add_u32 v7, s{sT0}, v7")
    a(f"s_and_b32 s{sHead}, s{sAi}, 7"); a(f"s_lshl_b32 s{sHead}, s{sHead}, 2"); a(f"s_add_u32 s{sHead}, s{sHead}, s{sW}")
    a(f"s_lshr_b32 s{sSegA}, s{sAi}, 3")
    a("v_and_b32 v8, 3, v2")
    top = a.newlabel("ATT"); end = a.newlabel("ATE")
    a.label(top)
    a(f"s_lshr_b32 s{sT1}, s{sSegA}, 4"); a(f"s_lshl_b32 s{sT1}, s{sT1}, 6")
    a(f"s_lshr_b32 s{sT2}, s{sHead}, 1"); a(f"s_lshl_b32 s{sT2}, s{sT2}, 2"); a(f"s_add_u32 s{sT1}, s{sT1}, s{sT2}")
    a(f"s_add_u32 s{sT2}, s{sT1}, {WS_FLAGS + FL_KV}"); a(f"v_mov_b32 v9, s{sT2}")
    a(f"s_add_u32 s{sT2}, s{sT1}, {WS_FLAGS + FL_KV + 256}"); a(f"v_mov_b32 v10, s{sT2}")
    a("v_cmp_eq_u32 vcc, 2, v8"); a("v_cndmask_b32 v9, v9, v10, vcc")
    a(f"s_add_u32 s{sT2}, s{sT1}, {WS_FLAGS + FL_Q}"); a(f"v_mov_b32 v10, s{sT2}")
    a("v_cmp_eq_u32 vcc, 3, v8"); a("v_cndmask_b32 v9, v9, v10, vcc")
    a(f"s_and_b32 s{sT0}, s{sSegA}, 15"); a(f"s_add_u32 s{sT0}, s{sT0}, 1")
    pl = a.newlabel("ATP")
    a.label(pl)
    a(f"buffer_load_dword v10, v9, {WS}, 0 offen sc1")
    spin(a)
    a("s_waitcnt vmcnt(0)")
    a(f"v_cmp_gt_u32 vcc, s{sT0}, v10")
    backoff(a, pl)
    a(f"s_lshl_b32 s{sBase}, s{sSegA}, 5"); a(f"s_add_u32 s{sBase}, s{sBase}, s{sHead}")
    KV, Q, K, V = 16, 32, 64, 96
    a(f"s_lshl_b32 s{sT1}, s{sBase}, 13")
    def ld8(reg, base):
        toks = []
        for half in range(2):
            a(f"s_add_u32 s{sT0}, s{sT1}, {base + 4096*half}")
            for q in range(4):
                toks.append(a.vm(f"buffer_load_dwordx4 {vr(reg+16*half+4*q,4)}, v{vL16}, {WS}, s{sT0} offen offset:{1024*q} sc1"))
        return toks
    tq = ld8(Q, WS_QX); tk = ld8(K, WS_KX); tv = ld8(V, WS_VX)
    a.wait(tq[-1], tk[-1])
    XA = {0: (160, None), 1: (224, 228)}
    for qt in range(2):
        X0, X1 = XA[qt]
        for m in range(4):
            B = vr(Q + 16*qt + 4*m, 4)
            c = lambda r: "0" if m == 0 else vr(r, 4)
            a(f"v_mfma_f32_16x16x32_bf16 {vr(X0,4)}, {vr(K+4*m,4)}, {B}, {c(X0)}")
            if qt == 1: a(f"v_mfma_f32_16x16x32_bf16 {vr(X1,4)}, {vr(K+16+4*m,4)}, {B}, {c(X1)}")
    a.wait(tv[-1])
    a(f"s_lshl_b32 s{sT0}, s{sHead}, 7"); a(f"s_add_u32 s{sT0}, s{sT0}, {WS_FLAGS + FL_M}")
    a(f"s_add_u32 s{sT3}, s{sSegA}, 1")
    poll_ge(a, f"s{sT0}", f"s{sT3}", vt=9, label="ATM")
    a(f"s_lshl_b32 s{sT0}, s{sBase}, 12"); a(f"s_add_u32 s{sT0}, s{sT0}, {WS_KM}")
    tkv = [a.vm(f"buffer_load_dwordx4 {vr(KV+4*w,4)}, v{vL16}, {WS}, s{sT0} offen offset:{1024*w} sc1") for w in range(4)]
    KM = 128; VLO = 144; VHI = 152
    tw = None
    for w in range(4):
        a.wait(tkv[w])
        tw = a.lg(f"ds_write_b64 v6, {vr(KV+4*w,2)} offset:{512*w}")
        a(f"v_cndmask_b32 v{VLO+2*w}, 0, v{KV+4*w+2}, s[{sLo32}:{sLo32+1}]")
        a(f"v_cndmask_b32 v{VLO+2*w+1}, 0, v{KV+4*w+3}, s[{sLo32}:{sLo32+1}]")
        a(f"v_cndmask_b32 v{VHI+2*w}, 0, v{KV+4*w+2}, s[{sHi32}:{sHi32+1}]")
        a(f"v_cndmask_b32 v{VHI+2*w+1}, 0, v{KV+4*w+3}, s[{sHi32}:{sHi32+1}]")
    a.wait(tw)
    tkm = None
    for m in range(4):
        a.lg(f"ds_read_b64_tr_b16 {vr(KM+4*m,2)}, v7 offset:{512*m}")
        tkm = a.lg(f"ds_read_b64_tr_b16 {vr(KM+4*m+2,2)}, v7 offset:{512*m+64}")
    a.wait(tkm)
    NEG = fbits(-1e30)
    a(f"v_mov_b32 v15, {NEG:#x}")
    O = 192
    MMq = {0: 168, 1: 232}
    for m in range(4):
        for qt in range(2):
            a(f"v_mfma_f32_16x16x32_bf16 {vr(MMq[qt],4)}, {vr(KM+4*m,4)}, {vr(Q+16*qt+4*m,4)}, {'0' if m == 0 else vr(MMq[qt],4)}")
    for qt in range(2):
        X0, X1 = XA[qt]; MM = MMq[qt]
        diag = X0 if qt == 0 else X1
        for jj in range(4): a(f"v_cndmask_b32 v{diag+jj}, v15, v{diag+jj}, s[{sMsk+2*jj}:{sMsk+2*jj+1}]")
        vals = list(range(X0, X0+4)) + (list(range(X1, X1+4)) if qt == 1 else []) + list(range(MM, MM+4))
        m_, t_ = 172, 173
        a(f"v_max3_f32 v{m_}, v{vals[0]}, v{vals[1]}, v{vals[2]}")
        rest = vals[3:]
        while len(rest) >= 2: a(f"v_max3_f32 v{m_}, v{m_}, v{rest[0]}, v{rest[1]}"); rest = rest[2:]
        if rest: a(f"v_max_f32 v{m_}, v{m_}, v{rest[0]}")
        for p in ("32", "16"):
            a(f"v_mov_b32 v{t_}, v{m_}"); a(f"v_permlane{p}_swap_b32 v{m_}, v{t_}"); a(f"v_max_f32 v{m_}, v{m_}, v{t_}")
        a(f"v_mul_f32 v{m_}, s{sCc}, v{m_}")
        for r in vals: a(f"v_fma_f32 v{r}, v{r}, s{sCc}, -v{m_}")
        for r in vals: a(f"v_exp_f32 v{r}, v{r}")
        PX, PM = 176, 180
        a(f"v_cvt_pk_bf16_f32 v{PX}, v{X0}, v{X0+1}"); a(f"v_cvt_pk_bf16_f32 v{PX+1}, v{X0+2}, v{X0+3}")
        if qt == 1:
            a(f"v_cvt_pk_bf16_f32 v{PX+2}, v{X1}, v{X1+1}"); a(f"v_cvt_pk_bf16_f32 v{PX+3}, v{X1+2}, v{X1+3}")
        else:
            a(f"v_mov_b32 v{PX+2}, 0"); a(f"v_mov_b32 v{PX+3}, 0")
        a(f"v_cvt_pk_bf16_f32 v{PM}, v{MM}, v{MM+1}"); a(f"v_cvt_pk_bf16_f32 v{PM+1}, v{MM+2}, v{MM+3}")
        for et in range(8):
            a(f"v_mfma_f32_16x16x32_bf16 {vr(O+4*et,4)}, {vr(V+4*et,4)}, {vr(PX,4)}, 0")
        for et in range(8):
            w, t = et >> 1, et & 1
            A = (VLO if t == 0 else VHI) + 2 * w
            a(f"v_mfma_f32_16x16x16_bf16 {vr(O+4*et,4)}, {vr(A,2)}, {vr(PM,2)}, {vr(O+4*et,4)}")
        l_, u_ = 174, 175
        a(f"v_dot2_f32_bf16 v{l_}, v{PM}, s{sHalf}, 0"); a(f"v_dot2_f32_bf16 v{u_}, v{PX}, s{sOnes}, 0")
        a(f"v_dot2_f32_bf16 v{l_}, v{PM+1}, s{sHalf}, v{l_}"); a(f"v_dot2_f32_bf16 v{u_}, v{PX+1}, s{sOnes}, v{u_}")
        a(f"v_dot2_f32_bf16 v{l_}, v{PX+2}, s{sOnes}, v{l_}"); a(f"v_dot2_f32_bf16 v{u_}, v{PX+3}, s{sOnes}, v{u_}")
        a(f"v_add_f32 v{l_}, v{l_}, v{u_}")
        for p in ("32", "16"):
            a(f"v_mov_b32 v{u_}, v{l_}"); a(f"v_permlane{p}_swap_b32 v{l_}, v{u_}"); a(f"v_add_f32 v{l_}, v{l_}, v{u_}")
        a(f"v_rcp_f32 v{l_}, v{l_}")
        a(f"s_lshl_b32 s{sT0}, s{sSegA}, 1"); a(f"s_add_u32 s{sT0}, s{sT0}, {qt}")
        a(f"s_lshl_b32 s{sT0}, s{sT0}, 7"); a(f"s_lshl_b32 s{sT2}, s{sHead}, 2"); a(f"s_add_u32 s{sT0}, s{sT0}, s{sT2}")
        a(f"s_lshl_b32 s{sT0}, s{sT0}, 10"); a(f"s_add_u32 s{sT0}, s{sT0}, {WS_OX}")
        for m in range(4):
            b = O + 8*m
            for k in range(8): a(f"v_mul_f32 v{b+k}, v{b+k}, v{l_}")
            for r in range(4): a(f"v_cvt_pk_bf16_f32 v{b+r}, v{b+2*r}, v{b+2*r+1}")
            a.vm(f"buffer_store_dwordx4 {vr(b,4)}, v{vL16}, {WS}, s{sT0} offen offset:{1024*m} sc1")
    a.wait_all_vm()
    a(f"s_lshl_b32 s{sT0}, s{sSegA}, 7"); a(f"s_add_u32 s{sT0}, s{sT0}, {WS_FLAGS + FL_OX}")
    atomic_inc(a, f"s{sT0}", vt=12)
    a(f"s_add_u32 s{sSegA}, s{sSegA}, 4")
    a(f"s_cmp_lt_u32 s{sSegA}, {NSEG}"); a(f"s_cbranch_scc1 {top}")
    a("s_waitcnt vmcnt(0)")

sBi, sCb, sTT = 20, 21, 22
def bw(kk, T):
    return (ar(8*kk + 4*T, 4), ("a", 8*kk + 4*T)) if kk < 32 else (vr(144 + 8*(kk-32) + 4*T, 4), ("v", 144 + 8*(kk-32) + 4*T))
def out_role(a):
    a("; ==== output GEMM role")
    a(f"s_mul_i32 s{sT0}, s{sBi}, 13108"); a(f"s_lshr_b32 s{sTT}, s{sT0}, 18")
    a(f"s_mul_i32 s{sT0}, s{sTT}, 20"); a(f"s_sub_u32 s{sCb}, s{sBi}, s{sT0}")
    a("v_and_b32 v2, 63, v0")
    a(f"v_lshlrev_b32 v{vL16}, 4, v2")
    a("v_lshrrev_b32 v3, 2, v2")
    a("v_and_b32 v4, 3, v2")
    a("v_bfe_u32 v5, v3, 2, 1"); a("v_lshlrev_b32 v5, 4, v5")
    a("v_lshrrev_b32 v6, 3, v3"); a("v_lshl_add_u32 v5, v6, 2, v5")
    a("v_and_b32 v6, 3, v3"); a("v_add_u32 v5, v5, v6")
    a(f"s_movk_i32 s{sT0}, 1280")
    a(f"v_mul_lo_u32 v5, v5, s{sT0}"); a("v_lshl_add_u32 v5, v4, 4, v5")
    a(f"v_mul_lo_u32 v6, v3, s{sT0}"); a("v_lshl_add_u32 v6, v4, 4, v6")
    a("v_lshrrev_b32 v7, 4, v2"); a("v_lshlrev_b32 v7, 3, v7"); a("v_bfe_u32 v8, v2, 2, 2"); a("v_add_u32 v7, v7, v8")
    a("v_lshlrev_b32 v7, 6, v7"); a("v_and_b32 v8, 3, v2"); a("v_lshl_add_u32 v7, v8, 4, v7")
    sRing = 24
    a(f"s_lshl_b32 s{sRing}, s{sW}, 15"); a(f"v_add_u32 v7, s{sRing}, v7")
    srd(a, S_A, pWo, H * DH * D * 2)
    srd(a, S_B, pW2, F * D * 2)
    sBo, sB2 = 25, 26
    a(f"s_lshl_b32 s{sT0}, s{sCb}, 6")
    a(f"s_mul_i32 s{sBo}, s{sW}, {1024*1280}"); a(f"s_add_u32 s{sBo}, s{sBo}, s{sT0}")
    a(f"s_mul_i32 s{sB2}, s{sW}, {14*32*1280}"); a(f"s_add_u32 s{sB2}, s{sB2}, s{sT0}")
    toks = {}
    def issue(k):
        slot = k % 16
        for u in range(2):
            if k < 32:
                a(f"s_add_u32 s{sT0}, s{sBo}, {(32*k + 8*u)*1280}")
                a(f"s_add_u32 m0, s{sRing}, {slot*2048 + u*1024}")
                toks[(k, u)] = a.vm(f"buffer_load_dwordx4 v5, s[{S_A}:{S_A+3}], s{sT0} offen lds")
            else:
                a(f"s_add_u32 s{sT0}, s{sB2}, {(32*(k-32) + 16*u)*1280}")
                a(f"s_add_u32 m0, s{sRing}, {slot*2048 + u*1024}")
                toks[(k, u)] = a.vm(f"buffer_load_dwordx4 v6, s[{S_B}:{S_B+3}], s{sT0} offen lds")
    for k in range(16): issue(k)
    for k in range(46):
        a.wait(toks[(k, 1)])
        last = None
        for T in range(2):
            cls, b = bw(k, T)[1]
            a.lg(f"ds_read_b64_tr_b16 {cls}[{b}:{b+1}], v7 offset:{(k%16)*2048 + 8*T}")
            last = a.lg(f"ds_read_b64_tr_b16 {cls}[{b+2}:{b+3}], v7 offset:{(k%16)*2048 + 8*T + 256}")
        a.wait(last)
        if k + 16 < 46: issue(k + 16)
    a("s_barrier")
    srd(a, S_A, pX, S * D * 2)
    srd(a, S_B, pOut, S * D * 2)
    sGrp, sHf, sActOk = 30, 31, 32
    a(f"s_mov_b32 s{sGrp}, s{sTT}")
    a(f"s_mov_b32 s{sActOk}, 0")
    a("v_and_b32 v4, 7, v2"); a("v_min_u32 v4, 6, v4"); a("v_lshlrev_b32 v4, 2, v4")
    RED = 131072
    a(f"s_lshl_b32 s{sT0}, s{sW}, 12"); a(f"v_add_u32 v5, s{sT0}, v{vL16}"); a(f"v_add_u32 v5, {RED}, v5")
    a(f"v_add_u32 v6, {RED}, v{vL16}")
    sSg, sOx, sAc = 27, 28, 29
    AB, AA, FB = 32, 48, 64
    def lane_offsets(half):
        if not half:
            a("v_and_b32 v3, 15, v2"); a(f"s_movk_i32 s{sT0}, 1280"); a(f"v_mul_lo_u32 v3, v3, s{sT0}")
            a("v_lshrrev_b32 v8, 4, v2"); a("v_lshl_add_u32 v3, v8, 4, v3")
            a(f"s_lshl_b32 s{sT0}, s{sCb}, 6"); a(f"v_add_u32 v3, s{sT0}, v3")
            a("v_mov_b32 v7, v3"); a(f"v_mov_b32 v10, v{vL16}")
        else:
            a(f"s_and_b32 s{sHf}, s{sGrp}, 1")
            a("v_and_b32 v3, 7, v2"); a(f"s_lshl_b32 s{sT0}, s{sHf}, 3"); a(f"v_add_u32 v3, s{sT0}, v3")
            a(f"s_movk_i32 s{sT0}, 1280"); a(f"v_mul_lo_u32 v3, v3, s{sT0}")
            a("v_lshrrev_b32 v8, 4, v2"); a("v_lshl_add_u32 v3, v8, 4, v3")
            a(f"s_lshl_b32 s{sT0}, s{sCb}, 6"); a(f"v_add_u32 v3, s{sT0}, v3")
            a("v_bfe_u32 v8, v2, 3, 1"); a("v_lshlrev_b32 v8, 30, v8"); a("v_or_b32 v7, v3, v8")
            a("v_bfe_u32 v10, v2, 3, 1"); a("v_lshlrev_b32 v10, 10, v10")
            a("v_lshrrev_b32 v11, 4, v2"); a("v_lshl_add_u32 v10, v11, 8, v10")
            a("v_and_b32 v11, 7, v2"); a("v_lshl_add_u32 v10, v11, 4, v10")
            a(f"s_lshl_b32 s{sT0}, s{sHf}, 7"); a(f"v_add_u32 v10, s{sT0}, v10")
    def task(half):
        a(f"s_lshr_b32 s{sSg}, s{sTT}, 1")
        ok = a.newlabel("OPK")
        a(f"s_lshr_b32 s{sT0}, s{sSg}, 4"); a(f"s_add_u32 s{sT2}, s{sT0}, 1")
        a(f"s_cmp_ge_u32 s{sActOk}, s{sT2}"); a(f"s_cbranch_scc1 {ok}")
        a(f"s_lshl_b32 s{sT0}, s{sT0}, 5"); a(f"s_add_u32 s{sT0}, s{sT0}, {WS_FLAGS + FL_ACT}")
        a(f"v_add_u32 v8, s{sT0}, v4")
        a(f"s_and_b32 s{sT1}, s{sSg}, 15"); a(f"s_add_u32 s{sT1}, s{sT1}, 1")
        pl = a.newlabel("OP1")
        a.label(pl)
        a(f"buffer_load_dword v9, v8, {WS}, 0 offen sc1")
        spin(a)
        a("s_waitcnt vmcnt(0)")
        a(f"v_cmp_gt_u32 vcc, s{sT1}, v9")
        backoff(a, pl)
        a("v_cmp_gt_u32 vcc, 16, v9")
        a(f"s_cbranch_vccnz {ok}")
        a(f"s_mov_b32 s{sActOk}, s{sT2}")
        a.label(ok)
        a(f"s_mul_i32 s{sT0}, s{sTT}, {16*1280}")
        tx = a.vm(f"buffer_load_dwordx4 v[12:15], v3, s[{S_A}:{S_A+3}], s{sT0} offen")
        a(f"s_mul_i32 s{sAc}, s{sTT}, {ACT_KK*1024}"); a(f"s_add_u32 s{sAc}, s{sAc}, {WS_ACT}")
        np_ = 2 if half else 1
        def mm(acc, kk0, q, first):
            for par in range(np_):
                for T in range(2):
                    D_ = vr(acc+8*par+4*T, 4)
                    a(f"v_mfma_f32_16x16x32_bf16 {D_}, {bw(kk0+np_*q+par,T)[0]}, {vr(FB+4*(q%16),4)}, {'0' if first else D_}")
        ft = {}
        nq = 14 // np_
        for q in range(nq):
            a(f"s_mul_i32 s{sT0}, s{sW}, 14"); a(f"s_add_u32 s{sT0}, s{sT0}, {np_*q}"); a(f"s_min_u32 s{sT0}, s{sT0}, {54-np_}")
            a(f"s_lshl_b32 s{sT0}, s{sT0}, 10"); a(f"s_add_u32 s{sT0}, s{sT0}, s{sAc}")
            ft[q] = a.vm(f"buffer_load_dwordx4 {vr(FB+4*q,4)}, v10, {WS}, s{sT0} offen sc1")
        for q in range(nq):
            a.wait(ft[q]); mm(AB, 32, q, q == 0)
        a(f"s_lshl_b32 s{sT0}, s{sSg}, 7"); a(f"s_add_u32 s{sT0}, s{sT0}, {WS_FLAGS + FL_OX}")
        a(f"s_mov_b32 s{sT3}, 32")
        pw = a.newlabel("OPW")
        a(f"s_cmp_lg_u32 s{sW}, 0"); a(f"s_cbranch_scc1 {pw}")
        poll_ge(a, f"s{sT0}", f"s{sT3}", vt=8, label="OP2")
        a.label(pw)
        a("s_barrier")
        a(f"s_lshl_b32 s{sOx}, s{sTT}, 7"); a(f"s_lshl_b32 s{sT0}, s{sW}, 5"); a(f"s_add_u32 s{sOx}, s{sOx}, s{sT0}")
        a(f"s_lshl_b32 s{sOx}, s{sOx}, 10"); a(f"s_add_u32 s{sOx}, s{sOx}, {WS_OX}")
        ot = {}
        no = 32 // np_
        def ld_ox(q):
            st = 1024 * np_; per = 4 // np_
            a(f"s_add_u32 s{sT0}, s{sOx}, {(q//per)*per*st}")
            ot[q] = a.vm(f"buffer_load_dwordx4 {vr(FB+4*(q%16),4)}, v10, {WS}, s{sT0} offen offset:{(q%per)*st} sc1")
        for q in range(16): ld_ox(q)
        for q in range(no):
            a.wait(ot[q]); mm(AA, 0, q, q == 0)
            if q + 16 < no: ld_ox(q + 16)
        if half:
            for base in (AA, AB):
                for k in range(8):
                    a(f"v_add_f32_dpp v{base+k}, v{base+8+k}, v{base+k} row_ror:8 row_mask:0xf bank_mask:0xf")
        a("s_barrier")
        for k, r in enumerate((AA, AA+4, AB, AB+4)):
            a.lg(f"ds_write_b128 v5, {vr(r,4)} offset:{1024*k}")
        a.wait_all_lg()
        a("s_barrier")
        nx = a.newlabel("ONX")
        a(f"s_cmp_lg_u32 s{sW}, 0"); a(f"s_cbranch_scc1 {nx}")
        rd = []
        for w in range(1, 4):
            for k in range(4):
                rd.append(a.lg(f"ds_read_b128 {vr(FB+16*(w-1)+4*k,4)}, v6 offset:{4096*w + 1024*k}"))
        for w in range(1, 4):
            a.wait(rd[4*(w-1)+3])
            for k, r in enumerate((AA, AA+4, AB, AB+4)):
                for j in range(4): a(f"v_add_f32 v{r+j}, v{r+j}, v{FB+16*(w-1)+4*k+j}")
        a.wait(tx, force=True)
        for pr in range(4):
            A0, A1 = AA + 2*pr, AA + 2*pr + 1
            B0, B1 = AB + 2*pr, AB + 2*pr + 1
            a(f"v_cvt_pk_bf16_f32 v16, v{A0}, v{A1}")
            a(f"v_cvt_pk_bf16_f32 v17, v{B0}, v{B1}")
            a("v_lshlrev_b32 v18, 16, v16"); a("v_and_b32 v19, 0xffff0000, v16")
            a(f"v_lshlrev_b32 v20, 16, v{12+pr}"); a(f"v_and_b32 v21, 0xffff0000, v{12+pr}")
            a("v_add_f32 v18, v18, v20"); a("v_add_f32 v19, v19, v21")
            a("v_cvt_pk_bf16_f32 v16, v18, v19")
            a("v_lshlrev_b32 v18, 16, v16"); a("v_and_b32 v19, 0xffff0000, v16")
            a("v_lshlrev_b32 v20, 16, v17"); a("v_and_b32 v21, 0xffff0000, v17")
            a("v_add_f32 v18, v18, v20"); a("v_add_f32 v19, v19, v21")
            a(f"v_cvt_pk_bf16_f32 v{24+pr}, v18, v19")
        a(f"s_mul_i32 s{sT0}, s{sTT}, {16*1280}")
        a(f"buffer_store_dwordx4 v[24:27], v7, s[{S_B}:{S_B+3}], s{sT0} offen")
        a.label(nx)
    extra = a.newlabel("OUX"); fin = a.newlabel("OUF")
    a(f"s_cmp_ge_u32 s{sGrp}, 4"); a(f"s_cbranch_scc1 {extra}")
    lane_offsets(False)
    top = a.newlabel("OUT")
    a.label(top)
    task(False)
    a(f"s_add_u32 s{sTT}, s{sTT}, 4")
    a(f"s_cmp_lt_u32 s{sTT}, 124"); a(f"s_cbranch_scc1 {top}")
    a(f"s_branch {fin}")
    a.label(extra)
    lab = a.newlabel("OUW"); ok3 = a.newlabel("OUB")
    a(f"s_cmp_lg_u32 s{sW}, 0"); a(f"s_cbranch_scc1 {ok3}")
    a(f"v_mov_b32 v8, {WS_FLAGS + FL_OX + 59*128}")
    a.label(lab)
    a(f"buffer_load_dword v9, v8, {WS}, 0 offen sc1")
    spin(a)
    a("s_waitcnt vmcnt(0)")
    a("v_cmp_gt_u32 vcc, 32, v9")
    ok2 = a.newlabel("OUK")
    a(f"s_cbranch_vccz {ok2}")
    a("s_sleep 100")
    a(f"s_branch {lab}")
    a.label(ok2)
    a.label(ok3)
    a("s_barrier")
    a.label(fin)
    lane_offsets(True)
    a(f"s_lshr_b32 s{sTT}, s{sGrp}, 1"); a(f"s_add_u32 s{sTT}, s{sTT}, 124")
    task(True)
    a("s_waitcnt vmcnt(0)")
```

```python
from asmlib import *
from layout import *

LDS_M, LDS_TQ, LDS_TK, LDS_TO, LDS_KX, LDS_L = 0, 10240, 12288, 14336, 16384, 24576
LDS_TOTAL = 163840

S_WS = 4
S_W = 8
sH, sW, sStep, sTag = 12, 13, 14, 15
sMrd, sMwr, sMpo = 16, 17, 18
sP0, sP1, sPl = 19, 20, 21
sPrd, sRedM, sIsRed = 22, 23, 24
sKV, sKVM = 25, 26
sKM, sVM, sVX = 75, 27, 54
sFlK, sFlV, sPF, sKXb = 95, 71, 73, 72
sKMo, sFlM = 69, 26
sKX0, sFlagCur = 55, 96
sSWb = 90
sSel = 28
sLo32 = 36
sC, sOnes, sHalf, sFE = 38, 39, 40, 41
sW2560, sW512, sLb, sSW, sW2048 = 42, 43, 44, 45, 46
sT0, sT1, sT2, sT3 = 47, 48, 49, 50
sFlagOff = 51
sHi32 = 52
sWq, sWk, sWv, sWo, sMem0 = 56, 58, 60, 62, 64
sDbg = 76
sSpin = 74
def spin(a):
    a(f"s_sub_u32 s{sSpin}, s{sSpin}, 1")
    a("s_cbranch_scc1 L_TIMEOUT")
vL16, vAoff, vIdx, vTr, vTw, vPst, vLb, vFl = 0, 1, 2, 3, 4, 5, 6, 7

def vr(b, n): return f"v[{b}:{b+n-1}]"
def rtile(idx):
    if idx < 32: return f"a[{8*idx}:{8*idx+7}]", ("a", 8 * idx)
    b = 72 + 8 * (idx - 32)
    return f"v[{b}:{b+7}]", ("v", b)

S_TILES = [("q", 0), ("k", 0), ("q", 6), ("k", 7), ("q", 13), ("k", 15), ("q", 18), ("k", 19)]
L_TILES = [("k", j) for j in (2, 4, 6, 8, 10, 12, 14, 16)] + \
          [("o", n // 4, n % 4) for n in (1, 3, 5, 7, 9, 11, 13, 15, 17)]
ALL_TILES = [("q", j) for j in range(20)] + [("k", j) for j in range(20)] + [("v", j) for j in range(20)] + \
            [("o", p, m) for p in range(5) for m in range(4)]
R_TILES = [t for t in ALL_TILES if t not in S_TILES and t not in L_TILES]
assert len(R_TILES) == 55 and len(L_TILES) == 17 and len(S_TILES) == 8
FIRST_ROUND = {("q", 0): 40, ("k", 0): 48, ("q", 6): 56}
R_IDX = {t: i for i, t in enumerate(R_TILES)}
L_IDX = {t: i for i, t in enumerate(L_TILES)}
S_IDX = {t: i for i, t in enumerate(S_TILES)}

def srd(a, s, lo, nbytes):
    a(f"s_mov_b32 s{s}, s{lo}")
    a(f"s_and_b32 s{s+1}, s{lo+1}, 0xffff")
    a(f"s_mov_b32 s{s+2}, {nbytes}")
    a(f"s_mov_b32 s{s+3}, 0x20000")

def lane_consts(a):
    a("v_and_b32 v8, 63, v0")
    a("v_and_b32 v9, 15, v8")
    a("v_lshrrev_b32 v10, 4, v8")
    a(f"v_lshlrev_b32 v{vL16}, 4, v8")
    a("v_and_b32 v11, 7, v9")
    a("v_lshl_add_u32 v11, v10, 3, v11")
    a(f"v_lshlrev_b32 v{vAoff}, 4, v11")
    a("v_mov_b32 v12, 0x4444")
    a("v_mov_b32 v13, 0xeeee")
    a("v_cmp_gt_u32 vcc, 8, v9")
    a(f"v_cndmask_b32 v{vIdx}, v13, v12, vcc")
    a("v_lshrrev_b32 v11, 2, v9")
    a("v_lshl_add_u32 v11, v10, 3, v11")
    a("v_lshlrev_b32 v11, 4, v11")
    a("v_and_b32 v12, 1, v9")
    a(f"v_lshl_add_u32 v{vTr}, v12, 3, v11")
    a("v_lshrrev_b32 v11, 1, v10")
    a("v_lshl_add_u32 v11, v11, 4, v9")
    a(f"s_lshl_b32 s{sT0}, s{sW}, 5")
    a(f"v_add_u32 v11, s{sT0}, v11")
    a("v_lshlrev_b32 v11, 4, v11")
    a("v_and_b32 v12, 1, v10")
    a(f"v_lshl_add_u32 v{vTw}, v12, 3, v11")
    a("v_lshlrev_b32 v11, 13, v10")
    a(f"v_lshl_add_u32 v{vPst}, v9, 4, v11")
    a("v_bfe_u32 v11, v9, 1, 2")
    for R in range(4):
        a(f"v_cmp_eq_u32 s[{sSel+2*R}:{sSel+2*R+1}], {R}, v11")
    a(f"v_cmp_gt_u32 s[{sLo32}:{sLo32+1}], 32, v8")
    a(f"v_cmp_le_u32 s[{sHi32}:{sHi32+1}], 32, v8")

def lone_off(a, dst, tmp):
    a(f"v_bfe_u32 v{tmp}, v{vPst}, 14, 1")
    a(f"v_and_b32 v{dst}, 0x20f0, v{vPst}")
    a(f"v_lshl_or_b32 v{dst}, v{tmp}, 3, v{dst}")

def scalar_consts(a):
    a(f"s_mul_i32 s{sW2560}, s{sW}, 2560")
    a(f"s_lshl_b32 s{sW512}, s{sW}, 9")
    a(f"s_lshl_b32 s{sW2048}, s{sW}, 11")
    a(f"s_add_u32 s{sLb}, s{sW2048}, {LDS_L}")
    a(f"s_lshl_b32 s{sT0}, s{sH}, 2")
    a(f"s_add_u32 s{sT0}, s{sT0}, s{sW}")
    a(f"s_mul_i32 s{sT0}, s{sT0}, {9*2048}")
    a(f"s_add_u32 s{sSW}, s{sT0}, {WS_SW}")
    for k in range(5): a(f"s_add_u32 s{sSWb+k}, s{sSW}, {k*4096}")
    a(f"s_lshl_b32 s{sT0}, s{sH}, 8")
    a(f"s_lshl_b32 s{sT1}, s{sW}, 16")
    a(f"s_add_u32 s{sP0}, s{sT0}, s{sT1}")
    a(f"s_add_u32 s{sP0}, s{sP0}, {WS_P}")
    a(f"s_add_u32 s{sP1}, s{sP0}, {4*8192}")
    a(f"s_lshl_b32 s{sT1}, s{sW}, 14")
    a(f"s_add_u32 s{sPl}, s{sT0}, s{sT1}")
    a(f"s_add_u32 s{sPl}, s{sPl}, {WS_P + 32*8192}")
    a(f"s_lshl_b32 s{sFlM}, s{sH}, 7")
    a(f"s_add_u32 s{sFlM}, s{sFlM}, {FL_M}")
    a(f"s_mov_b32 s{sIsRed}, 0")
    a(f"s_cmp_eq_u32 s{sW}, 0")
    a(f"s_cselect_b32 s{sIsRed}, 1, 0")
    a(f"s_cmp_lt_u32 s{sH}, 8")
    a(f"s_cselect_b32 s{sT1}, 1, 0")
    a(f"s_cmp_eq_u32 s{sW}, 1")
    a(f"s_cselect_b32 s{sT1}, s{sT1}, 0")
    a(f"s_or_b32 s{sIsRed}, s{sIsRed}, s{sT1}")
    a(f"s_add_u32 s{sT2}, s{sH}, 32")
    a(f"s_cmp_eq_u32 s{sW}, 0")
    a(f"s_cselect_b32 s{sT2}, s{sH}, s{sT2}")
    a(f"s_min_u32 s{sT2}, s{sT2}, 39")
    a(f"s_lshl_b32 s{sPrd}, s{sT2}, 13")
    a(f"s_add_u32 s{sPrd}, s{sPrd}, {WS_P}")
    a(f"s_lshr_b32 s{sT0}, s{sT2}, 3")
    a(f"s_mul_i32 s{sT0}, s{sT0}, 20")
    a(f"s_bfe_u32 s{sT1}, s{sT2}, 0x10002")
    a(f"s_lshl_b32 s{sT1}, s{sT1}, 3")
    a(f"s_add_u32 s{sT0}, s{sT0}, s{sT1}")
    a(f"s_bfe_u32 s{sT1}, s{sT2}, 0x10001")
    a(f"s_lshl_b32 s{sT1}, s{sT1}, 2")
    a(f"s_add_u32 s{sT0}, s{sT0}, s{sT1}")
    a(f"s_sub_u32 s{sT1}, s{sT2}, 32")
    a(f"s_lshr_b32 s{sT1}, s{sT1}, 1")
    a(f"s_mul_i32 s{sT1}, s{sT1}, 20")
    a(f"s_add_u32 s{sT1}, s{sT1}, 16")
    a(f"s_cmp_lt_u32 s{sT2}, 32")
    a(f"s_cselect_b32 s{sT0}, s{sT0}, s{sT1}")
    a(f"s_lshl_b32 s{sT0}, s{sT0}, 7")
    a(f"s_and_b32 s{sT1}, s{sT2}, 1")
    a(f"s_lshl_b32 s{sT1}, s{sT1}, 6")
    a(f"s_add_u32 s{sRedM}, s{sT0}, s{sT1}")
    import struct, math
    c = struct.unpack("<I", struct.pack("<f", (128 ** -0.5) * math.log2(math.e)))[0]
    a(f"s_mov_b32 s{sC}, {c:#x}")
    a(f"s_mov_b32 s{sOnes}, 0x3f803f80")
    a(f"s_mov_b32 s{sHalf}, 0x3f003f00")
    a(f"s_mov_b32 s{sFE}, 0xfffffffe")

def unit_src(t):
    if t[0] in "qkv":
        base, X = kstep_base(t[1])
        return {"q": sWq, "k": sWk, "v": sWv}[t[0]], [(base + uu * X) * 8192 for uu in range(2)], False
    p, m = t[1], t[2]
    return sWo, [(32 * m + 16 * uu) * 1280 + 256 * p for uu in range(2)], True

def weights_prologue(a, hook=None):
    vG, vGo, vTa, vTmp = 8, 9, 10, 12
    a(f"v_lshrrev_b32 v11, 4, v{vL16}")
    a("v_lshrrev_b32 v20, 4, v11")
    a("v_and_b32 v21, 15, v11")
    a(f"v_lshlrev_b32 v{vG}, 13, v20")
    a(f"v_lshl_add_u32 v{vG}, v21, 4, v{vG}")
    a("s_movk_i32 s47, 1280")
    a(f"v_mul_lo_u32 v{vGo}, v20, s47")
    a(f"v_lshl_add_u32 v{vGo}, v21, 4, v{vGo}")
    a("v_lshrrev_b32 v22, 2, v21")
    a("v_and_b32 v23, 1, v22")
    a("v_lshl_add_u32 v23, v20, 2, v23")
    a("v_lshlrev_b32 v23, 8, v23")
    a("v_lshrrev_b32 v22, 1, v22")
    a("v_lshl_add_u32 v23, v22, 5, v23")
    a("v_and_b32 v22, 3, v21")
    a("v_lshl_add_u32 v23, v22, 3, v23")
    a(f"s_lshl_b32 s{sT0}, s{sW}, 6")
    a(f"v_add_u32 v{vTa}, s{sT0}, v23")
    sBq, sBo = 96, 97
    a(f"s_lshl_b32 s{sT0}, s{sW}, 15")
    a(f"s_lshl_b32 s{sT1}, s{sH}, 8")
    a(f"s_add_u32 s{sBq}, s{sT0}, s{sT1}")
    a(f"s_lshl_b32 s{sT0}, s{sH}, 7")
    a(f"s_lshl_b32 s{sT1}, s{sW}, 2")
    a(f"s_add_u32 s{sT0}, s{sT0}, s{sT1}")
    a(f"s_mul_i32 s{sBo}, s{sT0}, 1280")
    order = R_TILES + S_TILES + L_TILES
    n = len(order)
    slot = {}
    for k in range(n - 1, -1, -1):
        slot[k] = L_IDX[order[k]] if k >= n - 17 else slot[k + 17]
    cur_ptr = [None]
    toks = {}
    def issue(k):
        t = order[k]
        ptr, offs, is_wo = unit_src(t)
        if cur_ptr[0] != ptr:
            srd(a, S_W, ptr, 5242880); cur_ptr[0] = ptr
        for uu in range(2):
            a(f"s_add_u32 s{sT0}, s{sBo if is_wo else sBq}, {offs[uu]}")
            a(f"s_add_u32 m0, s{sW2048}, {LDS_L + slot[k]*8192 + uu*1024}")
            toks[(k, uu)] = a.vm(f"buffer_load_dwordx4 v{vGo if is_wo else vG}, s[{S_W}:{S_W+3}], s{sT0} offen{WMOD} lds")
    DEPTH = 17
    for k in range(DEPTH): issue(k)
    pendL = None
    for k in range(n):
        t = order[k]
        if hook: hook(k)
        a.wait(toks[(k, 1)])
        a("s_barrier")
        if pendL is not None:
            pk, pb = pendL
            a(f"v_add_u32 v11, s{sLb}, v{vL16}")
            a(f"v_add_u32 v11, {slot[pk]*8192}, v11")
            a.lg(f"ds_write_b128 v11, {vr(pb,4)}")
            a.lg(f"ds_write_b128 v11, {vr(pb+4,4)} offset:1024")
            pendL = None
        if k >= 1 and k - 1 + 17 < n: issue(k - 1 + 17)
        a(f"v_add_u32 v11, {LDS_L + slot[k]*8192}, v{vTa}")
        if t in R_IDX:
            _, (cls, b) = rtile(R_IDX[t])
        elif t in FIRST_ROUND:
            cls, b = "v", FIRST_ROUND[t]
        else:
            cls, b = "v", (vTmp if k % 2 == 0 else vTmp + 8)
        last = None
        for q, off in enumerate((0, 512, 4096, 4608)):
            last = a.lg(f"ds_read_b64_tr_b16 {cls}[{b+2*q}:{b+2*q+1}], v11 offset:{off}")
        a.wait(last)
        if t in S_IDX:
            si = S_IDX[t]
            a(f"s_add_u32 s{sT1}, s{sSW}, {si*2048}")
            a.vm(f"buffer_store_dwordx4 {vr(b,4)}, v{vL16}, s[{S_WS}:{S_WS+3}], s{sT1} offen")
            a.vm(f"buffer_store_dwordx4 {vr(b+4,4)}, v{vL16}, s[{S_WS}:{S_WS+3}], s{sT1} offen offset:1024")
        if t in L_IDX: pendL = (k, b)
    a("s_barrier")
    pk, pb = pendL
    a(f"v_add_u32 v11, s{sLb}, v{vL16}")
    a(f"v_add_u32 v11, {slot[pk]*8192}, v11")
    a.lg(f"ds_write_b128 v11, {vr(pb,4)}")
    a.lg(f"ds_write_b128 v11, {vr(pb+4,4)} offset:1024")
    a.wait_all()

S_M0 = 80
def mem0_loads(a):
    a("; ---- mem0 loads")
    srd(a, S_M0, sMem0, 8 * 1280)
    T = 44
    a(f"v_lshrrev_b32 v{T+9}, 4, v{vL16}")
    a(f"s_lshl_b32 s{sT0}, s{sW}, 6")
    a(f"v_add_u32 v{T+9}, s{sT0}, v{T+9}")
    a(f"s_mov_b32 s{sT1}, 13108")
    toks = []
    for n in range(5):
        q = 28 + n; b = T - 1
        a(f"v_add_u32 v{q}, {256*n}, v{T+9}")
        a(f"v_lshrrev_b32 v{b+1}, 4, v{q}")
        a(f"v_lshrrev_b32 v{b+2}, 2, v{b+1}")
        a(f"v_and_b32 v{b+3}, 3, v{b+1}")
        a(f"v_mul_u32_u24 v{b+4}, s{sT1}, v{b+2}")
        a(f"v_lshrrev_b32 v{b+4}, 16, v{b+4}")
        a(f"v_mul_u32_u24 v{b+5}, 5, v{b+4}")
        a(f"v_sub_u32 v{b+5}, v{b+2}, v{b+5}")
        a(f"v_and_b32 v{b+6}, 1, v{q}")
        a(f"v_lshrrev_b32 v{b+7}, 1, v{b+5}")
        a(f"v_lshlrev_b32 v{b+7}, 8, v{b+7}")
        a(f"v_and_b32 v{b+8}, 1, v{b+5}")
        a(f"v_lshl_add_u32 v{b+7}, v{b+8}, 4, v{b+7}")
        a(f"v_lshlrev_b32 v{b+8}, 7, v{b+6}")
        a(f"v_lshlrev_b32 v{b+9}, 4, v{b+6}")
        a(f"v_cmp_eq_u32 vcc, 4, v{b+5}")
        a(f"v_cndmask_b32 v{b+8}, v{b+8}, v{b+9}, vcc")
        a(f"v_add_u32 v{b+7}, v{b+7}, v{b+8}")
        a(f"v_lshl_add_u32 v{b+7}, v{b+4}, 5, v{b+7}")
        a(f"v_lshl_add_u32 v{b+7}, v{b+3}, 2, v{b+7}")
        a(f"v_bfe_u32 v{b+8}, v{q}, 1, 3")
        a(f"s_movk_i32 s{sT2}, 1280")
        a(f"v_mul_lo_u32 v{b+8}, v{b+8}, s{sT2}")
        a(f"v_lshl_add_u32 v{b+8}, v{b+7}, 1, v{b+8}")
        toks.append(a.vm(f"buffer_load_dwordx2 {vr(34+2*n,2)}, v{b+8}, s[{S_M0}:{S_M0+3}], 0 offen"))
        a(f"v_lshlrev_b32 v{q}, 3, v{q}")
    return toks
def mem0_writes(a, toks):
    for n in range(5):
        a.wait(toks[n])
        a.lg(f"ds_write_b64 v{28+n}, {vr(34+2*n,2)} offset:{LDS_M}")

def init_exchange(a, sc):
    a("; ---- init exchange buffers")
    for k in range(54, 58): a(f"v_mov_b32 v{k}, 1")
    a.vm(f"buffer_store_dwordx4 v[54:57], v{vPst}, s[{S_WS}:{S_WS+3}], s{sP0} offen{sc}")
    a.vm(f"buffer_store_dwordx4 v[54:57], v{vPst}, s[{S_WS}:{S_WS+3}], s{sP1} offen{sc}")
    lone_off(a, 58, 59)
    a.vm(f"buffer_store_dwordx2 v[54:55], v58, s[{S_WS}:{S_WS+3}], s{sPl} offen{sc}")
    skip = a.newlabel("IX")
    a(f"s_cmp_eq_u32 s{sIsRed}, 0")
    a(f"s_cbranch_scc1 {skip}")
    red_moff(a, 58, 59)
    a("v_mov_b32 v60, -1"); a("v_mov_b32 v61, -1")
    for sl in range(4):
        a(f"s_add_u32 s{sT0}, s{sRedM}, {WS_M + sl*MSLOT}")
        a(f"buffer_store_dwordx2 v[60:61], v58, s[{S_WS}:{S_WS+3}], s{sT0} offen{sc}")
    a.label(skip)

def red_moff(a, dst, tmp):
    a(f"v_lshrrev_b32 v{dst}, 8, v{vL16}")
    a(f"v_lshlrev_b32 v{dst}, 7, v{dst}")
    a(f"v_and_b32 v{tmp}, 0x30, v{vL16}")
    a(f"v_add_u32 v{dst}, v{dst}, v{tmp}")
    a(f"v_bfe_u32 v{tmp}, v{vL16}, 6, 1")
    a(f"v_lshl_add_u32 v{dst}, v{tmp}, 3, v{dst}")

def flag_off(a):
    a(f"s_mov_b32 s{sFlagCur}, s{sFlagOff}")
    a(f"s_add_u32 s{sT0}, s{sStep}, 1")
    a(f"s_lshr_b32 s{sT0}, s{sT0}, 4")
    a(f"s_min_u32 s{sT0}, s{sT0}, 3")
    a(f"s_lshl_b32 s{sT0}, s{sT0}, 6")
    a(f"s_lshr_b32 s{sT1}, s{sH}, 1")
    a(f"s_lshl_b32 s{sT1}, s{sT1}, 2")
    a(f"s_add_u32 s{sFlagOff}, s{sT0}, s{sT1}")
    a(f"s_add_u32 s{sFlagOff}, s{sFlagOff}, {FL_KV}")

PF_DIST = 1
WMOD = ' nt'
KXNT = ' nt'
OPTS = set()
NT = ''
def step_offsets(a):
    a(f"s_lshl_b32 s{sT0}, s{sStep}, 5")
    a(f"s_add_u32 s{sT0}, s{sT0}, s{sH}")
    a(f"s_lshl_b32 s{sT1}, s{sT0 if 'samekv' not in OPTS else sH}, 12")
    a(f"s_lshl_b32 s{sT2}, s{sW}, 10")
    a(f"s_add_u32 s{sT1}, s{sT1}, s{sT2}")
    a(f"s_add_u32 s{sKM}, s{sT1}, {WS_KM}")
    if 'samex' in OPTS: a(f"s_mov_b32 s{sT0}, s{sH}")
    a(f"s_lshl_b32 s{sT1}, s{sT0}, 13")
    a(f"s_add_u32 s{sT1}, s{sT1}, s{sW2048}")
    a(f"s_add_u32 s{sVX}, s{sT1}, {WS_VX}")
    a(f"s_sub_u32 s{sKX0}, s{sVX}, {WS_VX - WS_KX}")
    a(f"s_lshl_b32 s{sT1}, s{sT0}, 13")
    a(f"s_add_u32 s{sKXb}, s{sT1}, {WS_KX + 32*8192}")
    a(f"s_add_u32 s{sPF}, s{sKXb}, 0")
    a(f"s_add_u32 s{sT2}, s{sKXb}, {WS_VX - WS_KX}")
    a(f"s_cmp_lt_u32 s{sW}, 2")
    a(f"s_cselect_b32 s{sPF}, s{sPF}, s{sT2}")
    a(f"s_and_b32 s{sT2}, s{sW}, 1")
    a(f"s_lshl_b32 s{sT2}, s{sT2}, 12")
    a(f"s_add_u32 s{sPF}, s{sPF}, s{sT2}")
    flag_off(a)
    a(f"s_and_b32 s{sT0}, s{sStep}, 3")
    a(f"s_mul_i32 s{sT0}, s{sT0}, {MSLOT}")
    a(f"s_add_u32 s{sMrd}, s{sT0}, s{sW2560}")
    a(f"s_add_u32 s{sMrd}, s{sMrd}, {WS_M}")
    a(f"s_add_u32 s{sMwr}, s{sT0}, s{sRedM}")
    a(f"s_add_u32 s{sMwr}, s{sMwr}, {WS_M}")
    a(f"s_add_u32 s{sT0}, s{sStep}, 2")
    a(f"s_and_b32 s{sT0}, s{sT0}, 3")
    a(f"s_mul_i32 s{sT0}, s{sT0}, {MSLOT}")
    a(f"s_add_u32 s{sMpo}, s{sT0}, s{sRedM}")
    a(f"s_add_u32 s{sMpo}, s{sMpo}, {WS_M}")

def team_barrier(a, off, sc):
    a.wait_all_vm()
    a("s_barrier")
    lab = a.newlabel("TB")
    a(f"s_lshl_b32 s{sT0}, s{sH}, 2")
    a(f"v_mov_b32 v8, s{sT0}")
    a("v_mov_b32 v9, 1")
    skip = a.newlabel("TBs")
    a(f"s_cmp_lg_u32 s{sW}, 0")
    a(f"s_cbranch_scc1 {skip}")
    a(f"buffer_store_dword v9, v8, s[{S_WS}:{S_WS+3}], 0 offen offset:{off}{sc}")
    a.label(skip)
    a(f"v_lshrrev_b32 v8, 2, v{vL16}")
    a("v_and_b32 v8, 0x7c, v8")
    a.label(lab)
    a(f"buffer_load_dword v9, v8, s[{S_WS}:{S_WS+3}], 0 offen offset:{off} sc1")
    spin(a)
    a("s_waitcnt vmcnt(0)")
    a("v_cmp_eq_u32 vcc, 0, v9")
    a(f"s_cbranch_vccnz {lab}")

STAMP_REGS = [66, 78, 80, 82, 84, 86, 88, 56, 58, 60, 62]
class Step:
    def __init__(self, a, fast, stamp=None, opt=()):
        self.a = a
        self.opt = set(opt)
        self.sc = "" if fast else " sc1"
        self.stamp = stamp
        self.outofline = []
        self.nv1 = 14
        for o in self.opt:
            if o.startswith("nv"): self.nv1 = int(o[2:])
    def ws(self): return f"s[{S_WS}:{S_WS+3}]"
    def btile(self, t): return rtile(R_IDX[t])[0]
    def smf(self, acc, A, B):
        self.a(f"v_smfmac_f32_16x16x64_bf16 {vr(acc,4)}, {vr(A,4)}, {B}, v{vIdx}")
    def ld_s_half(self, t, dst, hf):
        if "noS" in self.opt: return None
        si = S_IDX[t]
        off = (si % 2) * 2048 + hf * 1024
        mod = ""
        for o in self.opt:
            if o.startswith("l1=") and si >= int(o[3:]): mod = " sc1"
            if o.startswith("l1nt=") and si >= int(o[5:]): mod = " nt"
        return self.a.vm(f"buffer_load_dwordx4 {vr(dst+4*hf,4)}, v{vL16}, {self.ws()}, s{sSWb + si//2} offen offset:{off}{mod}")
    def ld_s(self, t, dst):
        self.ld_s_half(t, dst, 0)
        return self.ld_s_half(t, dst, 1)
    def ld_l(self, t, dst, bases, base9=None):
        a = self.a
        if "noL" in self.opt: return None
        x = L_IDX[t]
        if base9 is not None: vb = base9; off = (x - 9) * 8192
        else: vb = bases[x // 8]; off = (x % 8) * 8192
        assert 0 <= off < 65536 - 1024
        a.lg(f"ds_read_b128 {vr(dst,4)}, v{vb} offset:{off}")
        return a.lg(f"ds_read_b128 {vr(dst+4,4)}, v{vb} offset:{off+1024}")

    def pre_poll(self):
        a = self.a
        a(f"v_and_b32 v32, 0x1f0, v{vL16}")
        a(f"v_add_u32 v33, s{sW2560}, v{vL16}")
        a(f"v_add_u32 v34, s{sW2560}, v32")
        for k in range(8, 20, 2): a(f"v_mov_b64 v[{k}:{k+1}], 0")
        a(f"v_bfe_u32 v36, v{vL16}, 8, 1")
        a(f"v_lshlrev_b32 v36, 8, v36")
        a(f"v_add_u32 v36, s{sFlagOff}, v36")
        a(f"v_lshlrev_b32 v37, 3, v{vL16}")
        a(f"v_add_u32 v37, s{sPF}, v37")
        a(f"v_cndmask_b32 v{vFl}, v36, v37, s[{sLo32}:{sLo32+1}]")

    def early_a(self):
        self.stok = {}
        self.stok[("q", 0)] = self.ld_s(("q", 0), 40)
        self.stok[("k", 0)] = self.ld_s(("k", 0), 48)
        if "q6e" in self.opt: self.stok[("q", 6)] = self.ld_s(("q", 6), 56)

    def m_loads(self):
        a = self.a
        a.vm(f"buffer_load_dwordx4 v[20:23], v{vL16}, {self.ws()}, s{sMrd} offen sc1")
        a.vm(f"buffer_load_dwordx4 v[24:27], v{vL16}, {self.ws()}, s{sMrd} offen offset:1024 sc1")
        return a.vm(f"buffer_load_dwordx4 v[28:31], v32, {self.ws()}, s{sMrd} offen offset:2048 sc1")
    def m_check(self):
        a = self.a
        a("v_max3_u32 v35, v21, v23, v25")
        a("v_max3_u32 v35, v35, v27, v29")
        a("v_max_u32 v35, v35, v31")
        a("v_cmp_eq_u32 vcc, -1, v35")

    def poll_m(self):
        a = self.a
        retry = a.newlabel("PMR"); ok = a.newlabel("PMK")
        tm = self.m_loads()
        if "eh" not in self.opt:
            if "nomb" not in self.opt: a("s_barrier")
            self.early_a()
            a.wait(tm, force=True)
        else:
            self.stok = {("q", 0): None, ("k", 0): None}
            a.wait_all_vm()
        self.m_check()
        a(f"s_cbranch_vccnz {retry}")
        a.label(ok)
        o = Asm(); o._lab = a._lab + 1000
        o.label(retry)
        st = Step(o, True, None, self.opt); st.sc = self.sc
        st.m_loads(); spin(o); o.wait_all_vm(); st.m_check()
        o(f"s_cbranch_vccnz {retry}")
        o(f"s_branch {ok}")
        self.outofline += o.lines
        self.stamp_at(1)
        if self.stamp: a(f"s_mov_b32 s64, s{sSpin}")
        a.lg(f"ds_write_b128 v33, v[20:23] offset:{LDS_M}")
        a.lg(f"ds_write_b128 v33, v[24:27] offset:{LDS_M+1024}")
        a.lg(f"ds_write_b128 v34, v[28:31] offset:{LDS_M+2048}")

    def stamp_at(self, i, red=False):
        if red and "rst" not in self.opt: return
        if "rst" in self.opt and i in (3, 4, 5) and not red: return
        if self.stamp: self.a(f"s_memtime s[{STAMP_REGS[i]}:{STAMP_REGS[i]+1}]")
    def dump_stamps(self):
        if not self.stamp: return
        a = self.a
        a("s_waitcnt lgkmcnt(0)")
        for i in range(11):
            r = STAMP_REGS[i]
            a(f"v_writelane_b32 v59, s{r}, {i}")
        for i, r in enumerate((64, 65, 68)): a(f"v_writelane_b32 v59, s{r}, {11+i}")
        a(f"s_lshl_b32 s{sT0}, s{sH}, 2")
        a(f"s_add_u32 s{sT0}, s{sT0}, s{sW}")
        a(f"s_lshl_b32 s{sT0}, s{sT0}, 12")
        a(f"s_lshl_b32 s{sT1}, s{sStep}, 6")
        a(f"s_add_u32 s{sT0}, s{sT0}, s{sT1}")
        a(f"s_add_u32 s{sT0}, s{sT0}, {WS_STAMP}")
        a(f"v_lshrrev_b32 v58, 2, v{vL16}")
        a("s_mov_b64 s[48:49], exec")
        a("s_mov_b64 exec, 0x3fff")
        a(f"buffer_store_dword v59, v58, {self.ws()}, s{sT0} offen")
        a("s_mov_b64 exec, s[48:49]")

    def body(self, entry_label):
        a = self.a
        self.stamp_at(0)
        if "rt" in self.opt:
            a("s_memrealtime s[88:89]"); a("s_memtime s[86:87]"); a("s_waitcnt lgkmcnt(0)")
            a(f"v_mov_b32 v8, s88"); a(f"v_mov_b32 v9, s86")
            a(f"s_lshl_b32 s89, s{sH}, 2"); a(f"s_add_u32 s89, s89, s{sW}"); a("s_lshl_b32 s89, s89, 9")
            a(f"s_lshl_b32 s88, s{sStep}, 3"); a("s_add_u32 s89, s89, s88"); a(f"s_add_u32 s89, s89, {WS_STAMP + 0x20000}")
            a("v_mov_b32 v10, 0")
            a(f"buffer_store_dwordx2 v[8:9], v10, {self.ws()}, s89 offen")
        self.pre_poll()
        self.poll_m()
        stok = self.stok
        sq = {("q",0):40, ("k",0):48, ("q",6):56, ("k",7):64, ("q",13):40, ("k",15):48, ("q",18):56, ("k",19):64}
        if "q6e" not in self.opt: stok[("q",6)] = self.ld_s(("q",6), 56)
        a.label(entry_label)
        a.wait_all_lg()
        a("s_barrier")
        self.stamp_at(2)
        La = [20, 24, 28]; Lb = 32
        accQ, accK, accV = 8, 12, 16
        atok = {}
        def rdA(j):
            if j < 20: atok[j] = a.lg(f"ds_read_b128 {vr(La[j%3],4)}, v{vAoff} offset:{LDS_M + 512*j}")
        ltiles = [t for t in L_TILES if t[0] != "o"]
        ltok = {}
        def rdL(x):
            if x < len(ltiles): ltok[ltiles[x]] = self.ld_l(ltiles[x], Lb, [vLb])
        rdA(0); rdA(1); rdL(0)
        pos = [0, 1, 3, 4, 5, 7, 8, 9, 11, 12]
        dj = 14
        for o in self.opt:
            if o.startswith("late="): pos = [int(x) for x in o[5:].split(",")]
            if o.startswith("dma="): dj = int(o[4:])
        late = {}
        for (t, hf), j in zip([(("k",7),0), (("k",7),1), (("q",13),0), (("q",13),1), (("k",15),0), (("k",15),1),
                               (("q",18),0), (("q",18),1), (("k",19),0), (("k",19),1)], pos):
            late.setdefault(j, []).append((t, hf))
        assert pos[2] >= 1 and pos[4] >= 1 and pos[6] >= 6 and pos[8] >= 8
        dma = {}
        nl = 0
        def vmf(j): self.smf(accV, La[j % 3], self.btile(("v", j)))
        for j in range(20):
            waits = [atok[j]]
            for mat in "qk":
                t = (mat, j)
                if t in L_IDX: waits.append(ltok[t])
                if t in S_IDX and "nows" not in self.opt: waits.append(stok[t])
            a.wait(*waits)
            tq_, tk_ = ("q", j), ("k", j)
            self.smf(accQ, La[j % 3], vr(sq[tq_], 8) if tq_ in S_IDX else self.btile(tq_))
            if j != 18: rdA(j + 2)
            for t, hf in late.get(j, []):
                x = self.ld_s_half(t, sq[t], hf)
                if hf == 1: stok[t] = x
            if j in (dj, dj + 1) and "noKX" not in self.opt:
                if j == dj: a(f"s_add_u32 m0, s{sW2048}, {LDS_KX}")
                dma[j - dj] = a.vm(f"buffer_load_dwordx4 v{vL16}, {self.ws()}, s{sKX0} offen offset:{(j-dj)*1024} sc1{NT} lds")
            if tk_ in L_IDX: B = vr(Lb, 8)
            elif tk_ in S_IDX: B = vr(sq[tk_], 8)
            else: B = self.btile(tk_)
            self.smf(accK, La[j % 3], B)
            if tk_ in L_IDX:
                nl += 1; rdL(nl)
            if j < 18: vmf(j)
        vmf(18); vmf(19)
        self.stamp_at(3)
        OB = [40, 56]
        def rd_kx(m, tile):
            return a.lg(f"ds_read_b128 {vr(OB[m%2]+8+4*tile,4)}, v{vL16} offset:{LDS_KX + (4*tile+m)*1024}")
        def rd_t(m, which):
            b = OB[m % 2] + 4 * which; base = (LDS_TQ, LDS_TK)[which] + m * 512
            a.lg(f"ds_read_b64_tr_b16 {vr(b,2)}, v{vTr} offset:{base}")
            return a.lg(f"ds_read_b64_tr_b16 {vr(b+2,2)}, v{vTr} offset:{base + 64}")
        kx = {}
        a(f"v_mov_b32 v38, s{sStep}")
        a(f"v_mov_b32 v39, 0")
        a("v_cvt_pk_bf16_f32 v34, v8, v9")
        a("v_cvt_pk_bf16_f32 v35, v10, v11")
        tq = a.lg(f"ds_write_b64 v{vTw}, v[34:35] offset:{LDS_TQ}")
        a("v_cvt_pk_bf16_f32 v32, v12, v13")
        a("v_cvt_pk_bf16_f32 v33, v14, v15")
        tk = a.lg(f"ds_write_b64 v{vTw}, v[32:33] offset:{LDS_TK}")
        VX0, VX1 = 8, 12
        vxs = {"t": None}
        vxpos = "c0"
        for o in self.opt:
            if o.startswith("vx@"): vxpos = o[3:]
        def vx_at(pos):
            if pos == vxpos and "noVX" not in self.opt:
                a.vm(f"buffer_load_dwordx4 {vr(VX0,4)}, v{vL16}, {self.ws()}, s{sVX} offen sc1{NT}")
                vxs["t"] = a.vm(f"buffer_load_dwordx4 {vr(VX1,4)}, v{vL16}, {self.ws()}, s{sVX} offen offset:1024 sc1{NT}")
        vx_at("c0")
        a("v_cvt_pk_bf16_f32 v34, v16, v17")
        a("v_cvt_pk_bf16_f32 v35, v18, v19")
        def pf():
            self.pf_tok = None
            if "noPF" not in self.opt:
                self.pf_tok = a.vm(f"buffer_load_dword v{vFl}, v{vFl}, {self.ws()}, 0 offen sc1")
            else: a(f"v_mov_b32 v{vFl}, 1000")
        def kv():
            if "noKV" not in self.opt:
                a.vm(f"buffer_store_dwordx4 v[32:35], v{vL16}, {self.ws()}, s{sKM} offen sc1")
            if "noFL" not in self.opt:
                a.vm(f"buffer_store_dword v38, v39, {self.ws()}, s{sFlM} offen sc1")
        pfpos = "d3"
        for o in self.opt:
            if o.startswith("pf@"): pfpos = o[3:]
        kvpos = "c1"
        for o in self.opt:
            if o.startswith("kv@"): kvpos = o[3:]
        def kv_at(pos):
            if pos == kvpos: kv()
        def batch(at_c):
            if at_c: kv_at("c0")
        def pf_at(pos):
            if pos == pfpos: pf()
        a(f"s_cmp_eq_u32 s{sStep}, {NSEG-1}")
        a(f"s_cbranch_scc1 {self.exit_label}")
        batch(True)
        a(f"v_cndmask_b32 v16, 0, v34, s[{sLo32}:{sLo32+1}]")
        a(f"v_cndmask_b32 v17, 0, v35, s[{sLo32}:{sLo32+1}]")
        a(f"v_cndmask_b32 v18, 0, v34, s[{sHi32}:{sHi32+1}]")
        a(f"v_cndmask_b32 v19, 0, v35, s[{sHi32}:{sHi32+1}]")
        a.wait(tk, dma.get(1))
        a("s_barrier")
        self.stamp_at(4)
        tt = {}
        tt[(0,0)] = rd_t(0, 0); kx[(0,0)] = rd_kx(0, 0); kx[(0,1)] = rd_kx(0, 1); tt[(0,1)] = rd_t(0, 1)
        tt[(1,0)] = rd_t(1, 0); kx[(1,0)] = rd_kx(1, 0); kx[(1,1)] = rd_kx(1, 1); tt[(1,1)] = rd_t(1, 1)
        vx_at("c1")
        kv_at("c1")
        vx_at("c2")
        X0, X1, MM = 20, 24, 28
        def sc(m, which):
            b = OB[m % 2]
            D = (X0, X1, MM)[which]; A = (b + 8, b + 12, b + 4)[which]
            need = [tt[(m, 0)], kx[(m, which)] if which < 2 else tt[(m, 1)]]
            a.wait(*need)
            a(f"v_mfma_f32_16x16x32_bf16 {vr(D,4)}, {vr(A,4)}, {vr(b,4)}, {'0' if m == 0 else vr(D,4)}")
        for m in range(4):
            sc(m, 0)
            if m < 2: kx[(m+2, 0)] = rd_kx(m + 2, 0)
            if m >= 1 and m <= 2: tt[(m+1, 1)] = rd_t(m + 1, 1)
            sc(m, 1)
            if m < 2: kx[(m+2, 1)] = rd_kx(m + 2, 1)
            sc(m, 2)
            if m < 2: tt[(m+2, 0)] = rd_t(m + 2, 0)
            if m < 3: vx_at(f"d{m}"); kv_at(f"d{m}"); pf_at(f"d{m}")
        pf_at("d3")
        self.stamp_at(5)
        otiles = [t for t in L_TILES if t[0] == "o"]
        slots = [48, 56, 64]
        a(f"v_add_u32 v38, 0x10000, v{vLb}")
        lt = {}
        for k in range(3): lt[otiles[k]] = self.ld_l(otiles[k], slots[k], [vLb, 38])
        m_, t_ = 36, 37
        a(f"v_max3_f32 v{m_}, v20, v21, v22")
        a(f"v_max3_f32 v{t_}, v23, v24, v25")
        a(f"v_max3_f32 v{m_}, v{m_}, v26, v27")
        a(f"v_max3_f32 v{t_}, v{t_}, v28, v29")
        a(f"v_max3_f32 v{m_}, v{m_}, v30, v31")
        a(f"v_max_f32 v{m_}, v{m_}, v{t_}")
        a(f"v_mov_b32 v{t_}, v{m_}")
        a(f"v_permlane32_swap_b32 v{m_}, v{t_}")
        a(f"v_max_f32 v{m_}, v{m_}, v{t_}")
        a(f"v_mov_b32 v{t_}, v{m_}")
        a(f"v_permlane16_swap_b32 v{m_}, v{t_}")
        a(f"v_max_f32 v{m_}, v{m_}, v{t_}")
        a(f"v_mul_f32 v{m_}, s{sC}, v{m_}")
        pf_at("e1")
        for r in range(20, 32, 2):
            a(f"v_pk_fma_f32 v[{r}:{r+1}], v[{r}:{r+1}], s[{sC}:{sC+1}], v[{m_}:{m_+1}] op_sel_hi:[1,0,0] neg_lo:[0,0,1] neg_hi:[0,0,1]")
        for r in range(20, 32): a(f"v_exp_f32 v{r}, v{r}")
        a("v_cvt_pk_bf16_f32 v20, v20, v21")
        a("v_cvt_pk_bf16_f32 v21, v22, v23")
        a("v_cvt_pk_bf16_f32 v22, v24, v25")
        a("v_cvt_pk_bf16_f32 v23, v26, v27")
        a("v_cvt_pk_bf16_f32 v28, v28, v29")
        a("v_cvt_pk_bf16_f32 v29, v30, v31")
        pf_at("e2")
        self.stamp_at(6)
        O0, O1 = 24, 32
        a.wait(vxs["t"])
        a(f"v_mfma_f32_16x16x32_bf16 {vr(O0,4)}, {vr(VX0,4)}, v[20:23], 0")
        a(f"v_dot2_f32_bf16 v36, v28, s{sHalf}, 0")
        a(f"v_dot2_f32_bf16 v37, v20, s{sOnes}, 0")
        a(f"v_mfma_f32_16x16x32_bf16 {vr(O1,4)}, {vr(VX1,4)}, v[20:23], 0")
        a(f"v_dot2_f32_bf16 v36, v29, s{sHalf}, v36")
        a(f"v_dot2_f32_bf16 v37, v21, s{sOnes}, v37")
        a(f"v_mfma_f32_16x16x16_bf16 {vr(O0,4)}, v[16:17], v[28:29], {vr(O0,4)}")
        a(f"v_dot2_f32_bf16 v36, v22, s{sOnes}, v36")
        a(f"v_dot2_f32_bf16 v37, v23, s{sOnes}, v37")
        a(f"v_mfma_f32_16x16x16_bf16 {vr(O1,4)}, v[18:19], v[28:29], {vr(O1,4)}")
        pf_at("f")
        a(f"v_add_u32 v39, s{sW512}, v{vAoff}")
        vLo, vLone = 44, 45
        a(f"v_add_u32 v{vLo}, {9*8192}, v{vLb}")
        a("v_add_f32 v36, v36, v37")
        a("v_mov_b32 v37, v36")
        a("v_permlane32_swap_b32 v36, v37")
        a("v_add_f32 v36, v36, v37")
        a("v_mov_b32 v37, v36")
        a("v_permlane16_swap_b32 v36, v37")
        a("v_add_f32 v36, v36, v37")
        a("v_rcp_f32 v36, v36")
        lone_off(a, vLone, 46)
        for r in (O0, O0+2, O1, O1+2):
            a(f"v_pk_mul_f32 v[{r}:{r+1}], v[{r}:{r+1}], v[36:37] op_sel_hi:[1,0]")
        a(f"v_cvt_pk_bf16_f32 v24, v24, v25")
        a(f"v_cvt_pk_bf16_f32 v25, v26, v27")
        a(f"v_cvt_pk_bf16_f32 v26, v32, v33")
        a(f"v_cvt_pk_bf16_f32 v27, v34, v35")
        two = a.lg(f"ds_write_b128 v39, v[24:27] offset:{LDS_TO}")
        for k in range(8, 24, 2): a(f"v_mov_b64 v[{k}:{k+1}], 0")
        a.wait(two)
        a("s_barrier")
        self.stamp_at(7)
        AO = [28, 32, 36, 40]
        aot = [a.lg(f"ds_read_b128 {vr(AO[m],4)}, v{vAoff} offset:{LDS_TO + 512*m}") for m in range(4)]
        a("v_mov_b64 v[24:25], 0"); a("v_mov_b64 v[26:27], 0")
        acc = [8, 12, 16, 20, 24]
        def pst(b, soff, lone=False):
            if not lone:
                return [f"v_cvt_pk_bf16_f32 v{b}, v{b}, v{b+1}", f"v_cvt_pk_bf16_f32 v{b+1}, v{b+2}, v{b+3}",
                        f"v_cvt_pk_bf16_f32 v{b+2}, v{b+4}, v{b+5}", f"v_cvt_pk_bf16_f32 v{b+3}, v{b+6}, v{b+7}",
                        f"v_bfi_b32 v{b}, 1, s{sTag}, v{b}", f"v_bfi_b32 v{b+2}, 1, s{sTag}, v{b+2}",
                        f"@buffer_store_dwordx4 {vr(b,4)}, v{vPst}, {self.ws()}, s{soff} offen{self.sc}"]
            return [f"v_cvt_pk_bf16_f32 v{b}, v{b}, v{b+1}", f"v_cvt_pk_bf16_f32 v{b+1}, v{b+2}, v{b+3}",
                    f"v_bfi_b32 v{b}, 1, s{sTag}, v{b}",
                    f"@buffer_store_dwordx2 {vr(b,2)}, v{vLone}, {self.ws()}, s{soff} offen{self.sc}"]
        fill = []
        def emit(n):
            for _ in range(n):
                if not fill: return
                x = fill.pop(0)
                if x.startswith("@"): a.vm(x[1:])
                else: a(x)
        nlo = 0
        for n in range(20):
            p, m = divmod(n, 4)
            t = ("o", p, m)
            w = [aot[m]]
            if t in L_IDX: w.append(lt[t]); B = vr(slots[nlo % 3], 8)
            else: B = self.btile(t)
            a.wait(*w)
            self.smf(acc[p], AO[m], B)
            used = 0
            if t in L_IDX:
                nlo += 1
                if nlo + 2 < len(otiles):
                    lt[otiles[nlo+2]] = self.ld_l(otiles[nlo+2], slots[(nlo+2) % 3], None, base9=vLo); used = 2
            if n == 9: fill += pst(8, sP0)
            if n == 17: fill += pst(16, sP1)
            emit(2 - used)
        emit(99)
        fill += pst(24, sPl, lone=True); emit(99)
        self.stamp_at(8)
        if self.stamp: a(f"s_mov_b32 s65, s{sSpin}")
        a(f"s_add_u32 s{sStep}, s{sStep}, 1")
        step_offsets(a)
        nored = a.newlabel("NR")
        a(f"s_cmp_eq_u32 s{sIsRed}, 0")
        a(f"s_cbranch_scc1 {nored}")
        self.reducer()
        a.label(nored)
        a(f"s_waitcnt vmcnt(3)")
        a(f"v_readlane_b32 s{sFlK}, v{vFl}, 32")
        a(f"v_readlane_b32 s{sFlV}, v{vFl}, 48")
        self.check_flag()
        self.stamp_at(9)
        if self.stamp: a(f"s_mov_b32 s68, s{sSpin}")
        a("s_barrier")
        self.stamp_at(10)
        self.dump_stamps()
        a(f"s_xor_b32 s{sTag}, s{sTag}, 1")

    def reducer(self):
        a = self.a
        SEL, ACC, MO, TG, OUT, PO = 40, 44, 48, 49, 50, 52
        a(f"s_add_u32 s{sT1}, s{sPrd}, 4096")
        rd = 2
        for o in self.opt:
            if o.startswith("rd"): rd = int(o[2:])
        if rd: a(f"s_sleep {rd}")
        def setup():
            a(f"v_mov_b32 v54, 0x3f80")
            a(f"v_mov_b32 v55, 0x3f800000")
            a(f"v_bfe_u32 v{TG}, v{vL16}, 4, 1")
            a(f"v_cmp_eq_u32 vcc, 1, v{TG}")
            a(f"v_cndmask_b32 v54, v54, v55, vcc")
            for R in range(4): a(f"v_cndmask_b32 v{SEL+R}, 0, v54, s[{sSel+2*R}:{sSel+2*R+1}]")
            red_moff(a, MO, 54)
            a(f"v_mov_b32 v{PO}, -1"); a(f"v_mov_b32 v{PO+1}, -1")
        def polls():
            toks = []
            for k in range(8):
                sb = sPrd if k < 4 else sT1
                toks.append(a.vm(f"buffer_load_dwordx4 {vr(8+4*k,4)}, v{vL16}, {self.ws()}, s{sb} offen offset:{(k%4)*1024} sc1"))
            return toks
        def reduce(toks, tag):
            a(f"v_mov_b32 v{TG}, {0 if tag == 0 else -1}")
            for k in range(8):
                a.wait(toks[k], force=True)
                if k == 0: self.stamp_at(4, True)
                if k == 7: self.stamp_at(5, True)
                b = 8 + 4 * k
                if tag == 0: a(f"v_or3_b32 v{TG}, v{TG}, v{b}, v{b+2}")
                else:
                    a(f"v_and_b32 v{TG}, v{TG}, v{b}"); a(f"v_and_b32 v{TG}, v{TG}, v{b+2}")
                a(f"v_mfma_f32_16x16x32_bf16 {vr(ACC,4)}, {vr(b,4)}, {vr(SEL,4)}, {'0' if k == 0 else vr(ACC,4)}")
            a(f"v_and_b32 v{TG}, 1, v{TG}")
            a(f"v_cmp_ne_u32 vcc, {tag}, v{TG}")
        self.stamp_at(3, True)
        if "postsetup" not in self.opt: setup()
        toks = polls()
        if "postsetup" in self.opt: setup()
        odd = a.newlabel("RO"); fin = a.newlabel("RF")
        a(f"s_cmp_eq_u32 s{sTag}, 1")
        a(f"s_cbranch_scc1 {odd}")
        base = a.state()
        for tag in (0, 1):
            a.set_state(base)
            if tag == 1: a.label(odd)
            retry = a.newlabel("RR"); ok = a.newlabel("RK")
            reduce(toks, tag)
            a(f"s_cbranch_vccnz {retry}")
            a.label(ok)
            if tag == 0: a(f"s_branch {fin}")
            o = Asm(); o._lab = a._lab + 2000 + tag
            o.label(retry)
            sv = self.a; self.a = o; a_ = a; a = o
            self.stamp_at(3, True)
            t2 = polls(); spin(o); reduce(t2, tag)
            o(f"s_cbranch_vccnz {retry}")
            o(f"s_branch {ok}")
            a = a_; self.a = sv
            self.outofline += o.lines
        a.label(fin)
        a(f"v_cvt_pk_bf16_f32 v{OUT}, v{ACC}, v{ACC+1}")
        a(f"v_cvt_pk_bf16_f32 v{OUT+1}, v{ACC+2}, v{ACC+3}")
        a(f"v_min_u32 v{OUT+1}, s{sFE}, v{OUT+1}")
        a.vm(f"buffer_store_dwordx2 v[{OUT}:{OUT+1}], v{MO}, {self.ws()}, s{sMwr} offen{self.sc}")
        a.vm(f"buffer_store_dwordx2 v[{PO}:{PO+1}], v{MO}, {self.ws()}, s{sMpo} offen{self.sc}")

    def check_flag(self):
        a = self.a
        ok = a.newlabel("FK"); lab = a.newlabel("FS")
        a.label(lab)
        a(f"s_min_u32 s{sT0}, s{sFlK}, s{sFlV}")
        a(f"s_and_b32 s{sT1}, s{sStep}, 15")
        a(f"s_cmp_gt_u32 s{sT0}, s{sT1}")
        a(f"s_cbranch_scc1 {ok}")
        a(f"v_bfe_u32 v56, v{vL16}, 8, 1")
        a(f"v_lshlrev_b32 v56, 8, v56")
        a(f"v_add_u32 v56, s{sFlagCur}, v56")
        a(f"buffer_load_dword v57, v56, {self.ws()}, 0 offen sc1")
        spin(a)
        a("s_waitcnt vmcnt(0)")
        a(f"v_readlane_b32 s{sFlK}, v57, 0")
        a(f"v_readlane_b32 s{sFlV}, v57, 16")
        a(f"s_branch {lab}")
        a.label(ok)


def chain_main(a, fast=True, name="C", stamp=False, timing=False, opt=(), confirm=None):
    global PF_DIST, NT, OPTS, KXNT, WMOD
    WMOD = '' if 'wplain' in opt else ' nt'
    KXNT = '' if 'kxplain' in opt else ' nt'
    OPTS = set(opt)
    PF_DIST = 2 if "pf2" in opt else 1
    NT = "" if "xplain" in opt else " nt"
    def rts(i):
        if "rt" in opt:
            a("s_memrealtime s[88:89]"); a("s_waitcnt lgkmcnt(0)")
            a("s_sub_u32 s88, s88, s98")
            a("v_mov_b32 v8, s88"); a(f"s_lshl_b32 s89, s{sH}, 6"); a(f"s_add_u32 s89, s89, {WS_STAMP + 0x10000 + 4*i}")
            a("v_mov_b32 v9, s89")
            a(f"buffer_store_dword v8, v9, s[{S_WS}:{S_WS+3}], 0 offen")
    rts(0)
    if "rt" in opt:
        a("v_mov_b32 v8, s98"); a(f"s_lshl_b32 s89, s{sH}, 6"); a(f"s_add_u32 s89, s89, {WS_STAMP + 0x10000 + 60}")
        a("v_mov_b32 v9, s89"); a(f"buffer_store_dword v8, v9, s[{S_WS}:{S_WS+3}], 0 offen")
    scalar_consts(a)
    lane_consts(a)
    a(f"v_add_u32 v{vLb}, s{sLb}, v{vL16}")
    st = {}
    def hook(k):
        if k == 1: st["m0"] = mem0_loads(a)
        if k == 12: mem0_writes(a, st["m0"])
        if k == 50:
            if confirm: confirm(a)
            init_exchange(a, "" if fast else " sc1")
        if k == 64:
            early = "xksc"
            for o in opt:
                if o.startswith("we="): early = o[3:]
            warm_early(early)
    def warm(what):
        a(f"v_lshlrev_b32 v28, 3, v{vL16}")
        if "x" in what:
            a(f"s_lshl_b32 s{sT0}, s{sH}, 13"); a(f"s_lshl_b32 s{sT1}, s{sW}, 11"); a(f"s_add_u32 s{sT0}, s{sT0}, s{sT1}")
            a(f"s_add_u32 s{sT1}, s{sT0}, {WS_KX}"); a(f"s_add_u32 s{sT0}, s{sT0}, {WS_VX}")
            a("s_mov_b64 exec, 0xffff")
            a(f"buffer_load_dword v29, v28, s[{S_WS}:{S_WS+3}], s{sT1} offen sc1")
            a(f"buffer_load_dword v30, v28, s[{S_WS}:{S_WS+3}], s{sT0} offen sc1")
            a("s_mov_b64 exec, -1")
        if "s" in what:
            for k in range(2):
                a(f"s_add_u32 s{sT0}, s{sSW}, {3*2048 + k*8192}")
                if k == 1: a("s_mov_b64 exec, 0xffff")
                a(f"buffer_load_dword v{31+k}, v28, s[{S_WS}:{S_WS+3}], s{sT0} offen")
            a("s_mov_b64 exec, -1")
        if "k" in what:
            a(f"s_lshl_b32 s{sT0}, s{sH}, 12"); a(f"s_add_u32 s{sT0}, s{sT0}, {WS_KM}")
            a(f"buffer_load_dword v33, v{vL16}, s[{S_WS}:{S_WS+3}], s{sT0} offen sc1")
        if "c" in what:
            pcl = a.newlabel("PC")
            a("s_getpc_b64 s[48:49]")
            a.label(pcl)
            a(f"s_add_u32 s48, s48, {name}_TOP-{pcl}")
            a("s_addc_u32 s49, s49, 0")
            a("global_load_dword v34, v28, s[48:49]")
    warm_early = warm
    rts(1)
    weights_prologue(a, hook)
    rts(2)
    a(f"s_mov_b32 s{sStep}, 0")
    a(f"s_mov_b32 s{sTag}, 0")
    a(f"s_lshr_b32 s{sT1}, s{sH}, 1")
    a(f"s_lshl_b32 s{sT1}, s{sT1}, 2")
    a(f"s_add_u32 s{sFlagOff}, s{sT1}, {FL_KV}")
    lab = a.newlabel("W0")
    a(f"v_bfe_u32 v35, v{vL16}, 8, 1")
    a(f"v_lshlrev_b32 v35, 8, v35")
    a(f"v_add_u32 v35, s{sFlagOff}, v35")
    a.label(lab)
    a(f"buffer_load_dword v{vFl}, v35, s[{S_WS}:{S_WS+3}], 0 offen sc1")
    spin(a)
    a("s_waitcnt vmcnt(0)")
    a(f"v_cmp_eq_u32 vcc, 0, v{vFl}")
    a(f"s_cbranch_vccnz {lab}")
    step_offsets(a)
    late = "x"
    for o in opt:
        if o.startswith("wl="): late = o[3:]
    rts(6)
    warm(late)
    if "rt" in opt:
        a.wait_all_vm()
        rts(7)
    team_barrier(a, FL_TEAM, "" if fast else " sc1")
    rts(3)
    rts(4)
    st0 = Step(a, fast, None, opt)
    st0.pre_poll()
    a.wait_all()
    entry = f"{name}_ENTRY"; top = f"{name}_TOP"; ex = f"{name}_EXIT"
    if timing:
        a("s_memtime s[98:99]"); a("s_waitcnt lgkmcnt(0)")
    a(f"s_branch {entry}")
    a(".p2align 6")
    for o in opt:
        if o.startswith("pad"):
            for _ in range(int(o[3:])): a("s_nop 0")
    a.label(top)
    st = Step(a, fast, stamp, opt)
    st.exit_label = ex
    st.body(entry)
    a(f"s_branch {top}")
    a.lines += st.outofline
    a.label(ex)
    a(f"buffer_store_dwordx4 v[32:35], v{vL16}, s[{S_WS}:{S_WS+3}], s{sKM} offen sc1")
    a(f"v_mov_b32 v38, {NSEG-1}")
    a("v_mov_b32 v39, 0")
    a(f"buffer_store_dword v38, v39, s[{S_WS}:{S_WS+3}], s{sFlM} offen sc1")
    rts(5)
    a.wait_all()
    a("s_barrier")
    a(f"s_lshl_b32 s{sT0}, s{sH}, 7")
    a(f"s_add_u32 s{sT0}, s{sT0}, {FL_M}")
    a(f"v_mov_b32 v43, {NSEG}")
    a(f"v_mov_b32 v40, 0")
    a(f"buffer_store_dword v43, v40, s[{S_WS}:{S_WS+3}], s{sT0} offen sc1")
    a("s_waitcnt vmcnt(0)")
```

```python
from asmlib import *
from layout import *

LDS_M, LDS_TQ, LDS_TK, LDS_TO, LDS_KX, LDS_L = 0, 10240, 12288, 14336, 16384, 24576
LDS_TOTAL = 163840

S_WS = 4
S_W = 8
sH, sW, sStep, sTag = 12, 13, 14, 15
sMrd, sMwr, sMpo = 16, 17, 18
sP0, sP1, sPl = 19, 20, 21
sPrd, sRedM, sIsRed = 22, 23, 24
sKV, sKVM = 25, 26
sKM, sVM, sVX = 75, 27, 54
sFlK, sFlV, sPF, sKXb = 95, 71, 73, 72
sKMo, sFlM = 69, 26
sKX0, sFlagCur = 55, 96
sSWb = 90
sSel = 28
sLo32 = 36
sC, sOnes, sHalf, sFE = 38, 39, 40, 41
sW2560, sW512, sLb, sSW, sW2048 = 42, 43, 44, 45, 46
sT0, sT1, sT2, sT3 = 47, 48, 49, 50
sFlagOff = 51
sHi32 = 52
sWq, sWk, sWv, sWo, sMem0 = 56, 58, 60, 62, 64
sDbg = 76
sSpin = 74
def spin(a):
    a(f"s_sub_u32 s{sSpin}, s{sSpin}, 1")
    a("s_cbranch_scc1 L_TIMEOUT")
vL16, vAoff, vIdx, vTr, vTw, vPst, vLb, vFl = 0, 1, 2, 3, 4, 5, 6, 7

def vr(b, n): return f"v[{b}:{b+n-1}]"
def rtile(idx):
    if idx < 32: return f"a[{8*idx}:{8*idx+7}]", ("a", 8 * idx)
    b = 72 + 8 * (idx - 32)
    return f"v[{b}:{b+7}]", ("v", b)

S_TILES = [("q", 0), ("k", 0), ("q", 6), ("k", 7), ("q", 13), ("k", 15), ("q", 18), ("k", 19)]
L_TILES = [("k", j) for j in (2, 4, 6, 8, 10, 12, 14, 16)] + \
          [("o", n // 4, n % 4) for n in (1, 3, 5, 7, 9, 11, 13, 15, 17)]
ALL_TILES = [("q", j) for j in range(20)] + [("k", j) for j in range(20)] + [("v", j) for j in range(20)] + \
            [("o", p, m) for p in range(5) for m in range(4)]
R_TILES = [t for t in ALL_TILES if t not in S_TILES and t not in L_TILES]
assert len(R_TILES) == 55 and len(L_TILES) == 17 and len(S_TILES) == 8
FIRST_ROUND = {("q", 0): 40, ("k", 0): 48, ("q", 6): 56}
R_IDX = {t: i for i, t in enumerate(R_TILES)}
L_IDX = {t: i for i, t in enumerate(L_TILES)}
S_IDX = {t: i for i, t in enumerate(S_TILES)}

def srd(a, s, lo, nbytes):
    a(f"s_mov_b32 s{s}, s{lo}")
    a(f"s_and_b32 s{s+1}, s{lo+1}, 0xffff")
    a(f"s_mov_b32 s{s+2}, {nbytes}")
    a(f"s_mov_b32 s{s+3}, 0x20000")

def lane_consts(a):
    a("v_and_b32 v8, 63, v0")
    a("v_and_b32 v9, 15, v8")
    a("v_lshrrev_b32 v10, 4, v8")
    a(f"v_lshlrev_b32 v{vL16}, 4, v8")
    a("v_and_b32 v11, 7, v9")
    a("v_lshl_add_u32 v11, v10, 3, v11")
    a(f"v_lshlrev_b32 v{vAoff}, 4, v11")
    a("v_mov_b32 v12, 0x4444")
    a("v_mov_b32 v13, 0xeeee")
    a("v_cmp_gt_u32 vcc, 8, v9")
    a(f"v_cndmask_b32 v{vIdx}, v13, v12, vcc")
    a("v_lshrrev_b32 v11, 2, v9")
    a("v_lshl_add_u32 v11, v10, 3, v11")
    a("v_lshlrev_b32 v11, 4, v11")
    a("v_and_b32 v12, 1, v9")
    a(f"v_lshl_add_u32 v{vTr}, v12, 3, v11")
    a("v_lshrrev_b32 v11, 1, v10")
    a("v_lshl_add_u32 v11, v11, 4, v9")
    a(f"s_lshl_b32 s{sT0}, s{sW}, 5")
    a(f"v_add_u32 v11, s{sT0}, v11")
    a("v_lshlrev_b32 v11, 4, v11")
    a("v_and_b32 v12, 1, v10")
    a(f"v_lshl_add_u32 v{vTw}, v12, 3, v11")
    a("v_lshlrev_b32 v11, 13, v10")
    a(f"v_lshl_add_u32 v{vPst}, v9, 4, v11")
    a("v_bfe_u32 v11, v9, 1, 2")
    for R in range(4):
        a(f"v_cmp_eq_u32 s[{sSel+2*R}:{sSel+2*R+1}], {R}, v11")
    a(f"v_cmp_gt_u32 s[{sLo32}:{sLo32+1}], 32, v8")
    a(f"v_cmp_le_u32 s[{sHi32}:{sHi32+1}], 32, v8")

def lone_off(a, dst, tmp):
    a(f"v_bfe_u32 v{tmp}, v{vPst}, 14, 1")
    a(f"v_and_b32 v{dst}, 0x20f0, v{vPst}")
    a(f"v_lshl_or_b32 v{dst}, v{tmp}, 3, v{dst}")

def scalar_consts(a):
    a(f"s_mul_i32 s{sW2560}, s{sW}, 2560")
    a(f"s_lshl_b32 s{sW512}, s{sW}, 9")
    a(f"s_lshl_b32 s{sW2048}, s{sW}, 11")
    a(f"s_add_u32 s{sLb}, s{sW2048}, {LDS_L}")
    a(f"s_lshl_b32 s{sT0}, s{sH}, 2")
    a(f"s_add_u32 s{sT0}, s{sT0}, s{sW}")
    a(f"s_mul_i32 s{sT0}, s{sT0}, {9*2048}")
    a(f"s_add_u32 s{sSW}, s{sT0}, {WS_SW}")
    for k in range(5): a(f"s_add_u32 s{sSWb+k}, s{sSW}, {k*4096}")
    a(f"s_lshl_b32 s{sT0}, s{sH}, 8")
    a(f"s_lshl_b32 s{sT1}, s{sW}, 16")
    a(f"s_add_u32 s{sP0}, s{sT0}, s{sT1}")
    a(f"s_add_u32 s{sP0}, s{sP0}, {WS_P}")
    a(f"s_add_u32 s{sP1}, s{sP0}, {4*8192}")
    a(f"s_lshl_b32 s{sT1}, s{sW}, 14")
    a(f"s_add_u32 s{sPl}, s{sT0}, s{sT1}")
    a(f"s_add_u32 s{sPl}, s{sPl}, {WS_P + 32*8192}")
    a(f"s_lshl_b32 s{sFlM}, s{sH}, 7")
    a(f"s_add_u32 s{sFlM}, s{sFlM}, {FL_M}")
    a(f"s_mov_b32 s{sIsRed}, 0")
    a(f"s_cmp_eq_u32 s{sW}, 0")
    a(f"s_cselect_b32 s{sIsRed}, 1, 0")
    a(f"s_cmp_lt_u32 s{sH}, 8")
    a(f"s_cselect_b32 s{sT1}, 1, 0")
    a(f"s_cmp_eq_u32 s{sW}, 1")
    a(f"s_cselect_b32 s{sT1}, s{sT1}, 0")
    a(f"s_or_b32 s{sIsRed}, s{sIsRed}, s{sT1}")
    a(f"s_add_u32 s{sT2}, s{sH}, 32")
    a(f"s_cmp_eq_u32 s{sW}, 0")
    a(f"s_cselect_b32 s{sT2}, s{sH}, s{sT2}")
    a(f"s_min_u32 s{sT2}, s{sT2}, 39")
    a(f"s_lshl_b32 s{sPrd}, s{sT2}, 13")
    a(f"s_add_u32 s{sPrd}, s{sPrd}, {WS_P}")
    a(f"s_lshr_b32 s{sT0}, s{sT2}, 3")
    a(f"s_mul_i32 s{sT0}, s{sT0}, 20")
    a(f"s_bfe_u32 s{sT1}, s{sT2}, 0x10002")
    a(f"s_lshl_b32 s{sT1}, s{sT1}, 3")
    a(f"s_add_u32 s{sT0}, s{sT0}, s{sT1}")
    a(f"s_bfe_u32 s{sT1}, s{sT2}, 0x10001")
    a(f"s_lshl_b32 s{sT1}, s{sT1}, 2")
    a(f"s_add_u32 s{sT0}, s{sT0}, s{sT1}")
    a(f"s_sub_u32 s{sT1}, s{sT2}, 32")
    a(f"s_lshr_b32 s{sT1}, s{sT1}, 1")
    a(f"s_mul_i32 s{sT1}, s{sT1}, 20")
    a(f"s_add_u32 s{sT1}, s{sT1}, 16")
    a(f"s_cmp_lt_u32 s{sT2}, 32")
    a(f"s_cselect_b32 s{sT0}, s{sT0}, s{sT1}")
    a(f"s_lshl_b32 s{sT0}, s{sT0}, 7")
    a(f"s_and_b32 s{sT1}, s{sT2}, 1")
    a(f"s_lshl_b32 s{sT1}, s{sT1}, 6")
    a(f"s_add_u32 s{sRedM}, s{sT0}, s{sT1}")
    import struct, math
    c = struct.unpack("<I", struct.pack("<f", (128 ** -0.5) * math.log2(math.e)))[0]
    a(f"s_mov_b32 s{sC}, {c:#x}")
    a(f"s_mov_b32 s{sOnes}, 0x3f803f80")
    a(f"s_mov_b32 s{sHalf}, 0x3f003f00")
    a(f"s_mov_b32 s{sFE}, 0xfffffffe")

def unit_src(t):
    if t[0] in "qkv":
        base, X = kstep_base(t[1])
        return {"q": sWq, "k": sWk, "v": sWv}[t[0]], [(base + uu * X) * 8192 for uu in range(2)], False
    p, m = t[1], t[2]
    return sWo, [(32 * m + 16 * uu) * 1280 + 256 * p for uu in range(2)], True

def weights_prologue(a, hook=None):
    vG, vGo, vTa, vTmp = 8, 9, 10, 12
    a(f"v_lshrrev_b32 v11, 4, v{vL16}")
    a("v_lshrrev_b32 v20, 4, v11")
    a("v_and_b32 v21, 15, v11")
    a(f"v_lshlrev_b32 v{vG}, 13, v20")
    a(f"v_lshl_add_u32 v{vG}, v21, 4, v{vG}")
    a("s_movk_i32 s47, 1280")
    a(f"v_mul_lo_u32 v{vGo}, v20, s47")
    a(f"v_lshl_add_u32 v{vGo}, v21, 4, v{vGo}")
    a("v_lshrrev_b32 v22, 2, v21")
    a("v_and_b32 v23, 1, v22")
    a("v_lshl_add_u32 v23, v20, 2, v23")
    a("v_lshlrev_b32 v23, 8, v23")
    a("v_lshrrev_b32 v22, 1, v22")
    a("v_lshl_add_u32 v23, v22, 5, v23")
    a("v_and_b32 v22, 3, v21")
    a("v_lshl_add_u32 v23, v22, 3, v23")
    a(f"s_lshl_b32 s{sT0}, s{sW}, 6")
    a(f"v_add_u32 v{vTa}, s{sT0}, v23")
    sBq, sBo = 96, 97
    a(f"s_lshl_b32 s{sT0}, s{sW}, 15")
    a(f"s_lshl_b32 s{sT1}, s{sH}, 8")
    a(f"s_add_u32 s{sBq}, s{sT0}, s{sT1}")
    a(f"s_lshl_b32 s{sT0}, s{sH}, 7")
    a(f"s_lshl_b32 s{sT1}, s{sW}, 2")
    a(f"s_add_u32 s{sT0}, s{sT0}, s{sT1}")
    a(f"s_mul_i32 s{sBo}, s{sT0}, 1280")
    order = R_TILES + S_TILES + L_TILES
    n = len(order)
    slot = {}
    for k in range(n - 1, -1, -1):
        slot[k] = L_IDX[order[k]] if k >= n - 17 else slot[k + 17]
    cur_ptr = [None]
    toks = {}
    def issue(k):
        t = order[k]
        ptr, offs, is_wo = unit_src(t)
        if cur_ptr[0] != ptr:
            srd(a, S_W, ptr, 5242880); cur_ptr[0] = ptr
        for uu in range(2):
            a(f"s_add_u32 s{sT0}, s{sBo if is_wo else sBq}, {offs[uu]}")
            a(f"s_add_u32 m0, s{sW2048}, {LDS_L + slot[k]*8192 + uu*1024}")
            toks[(k, uu)] = a.vm(f"buffer_load_dwordx4 v{vGo if is_wo else vG}, s[{S_W}:{S_W+3}], s{sT0} offen{WMOD} lds")
    LEAD = 25
    for o in OPTS:
        if o.startswith("lead"): LEAD = int(o[4:])
    helpers = "help" in OPTS
    sHelp, sBqT, S_PF = 16, 17, 84
    if helpers:
        a(f"s_and_b32 s{sT0}, s{sH}, 3")
        a(f"s_sub_u32 s{sHelp}, s{sT0}, 1"); a(f"s_cmp_eq_u32 s{sT0}, 0"); a(f"s_cselect_b32 s{sHelp}, 0, s{sHelp}")
        a(f"s_cmp_eq_u32 s{sT0}, 1"); a(f"s_cselect_b32 s{sHelp}, 9, s{sHelp}")
        a(f"s_andn2_b32 s{sT0}, s{sH}, 3"); a(f"s_or_b32 s{sT0}, s{sT0}, 1"); a(f"s_lshl_b32 s{sT0}, s{sT0}, 8")
        a(f"s_lshl_b32 s{sT1}, s{sW}, 15"); a(f"s_add_u32 s{sBqT}, s{sT0}, s{sT1}")
        a(f"v_lshrrev_b32 v67, 5, v{vL16}"); a("v_lshlrev_b32 v67, 13, v67")
        a(f"v_bfe_u32 v66, v{vL16}, 4, 1"); a("v_lshl_add_u32 v67, v66, 7, v67")
    def help_fetch(u):
        if not helpers or u >= n or order[u][0] not in "qkv": return
        ptr, offs, _ = unit_src(order[u])
        sk = a.newlabel("HP")
        a(f"s_cmp_lg_u32 s{sHelp}, {u % 3}"); a(f"s_cbranch_scc1 {sk}")
        srd(a, S_PF, ptr, 5242880)
        a("s_mov_b64 exec, 0xff")
        for uu in range(2):
            a(f"s_add_u32 s{sT0}, s{sBqT}, {offs[uu]}")
            a(f"buffer_load_dword v66, v67, s[{S_PF}:{S_PF+3}], s{sT0} offen{WMOD}")
        a("s_mov_b64 exec, -1")
        a.label(sk)
    DEPTH = 17
    for k in range(DEPTH): issue(k)
    pendL = None
    for k in range(n):
        t = order[k]
        if hook: hook(k)
        a.wait(toks[(k, 1)])
        a("s_barrier")
        if pendL is not None:
            pk, pb = pendL
            a(f"v_add_u32 v11, s{sLb}, v{vL16}")
            a(f"v_add_u32 v11, {slot[pk]*8192}, v11")
            a.lg(f"ds_write_b128 v11, {vr(pb,4)}")
            a.lg(f"ds_write_b128 v11, {vr(pb+4,4)} offset:1024")
            pendL = None
        if k >= 1 and k - 1 + 17 < n: issue(k - 1 + 17)
        help_fetch(k + LEAD)
        a(f"v_add_u32 v11, {LDS_L + slot[k]*8192}, v{vTa}")
        if t in R_IDX:
            _, (cls, b) = rtile(R_IDX[t])
        elif t in FIRST_ROUND:
            cls, b = "v", FIRST_ROUND[t]
        else:
            cls, b = "v", (vTmp if k % 2 == 0 else vTmp + 8)
        last = None
        for q, off in enumerate((0, 512, 4096, 4608)):
            last = a.lg(f"ds_read_b64_tr_b16 {cls}[{b+2*q}:{b+2*q+1}], v11 offset:{off}")
        a.wait(last)
        if t in S_IDX:
            si = S_IDX[t]
            a(f"s_add_u32 s{sT1}, s{sSW}, {si*2048}")
            a.vm(f"buffer_store_dwordx4 {vr(b,4)}, v{vL16}, s[{S_WS}:{S_WS+3}], s{sT1} offen")
            a.vm(f"buffer_store_dwordx4 {vr(b+4,4)}, v{vL16}, s[{S_WS}:{S_WS+3}], s{sT1} offen offset:1024")
        if t in L_IDX: pendL = (k, b)
    a("s_barrier")
    pk, pb = pendL
    a(f"v_add_u32 v11, s{sLb}, v{vL16}")
    a(f"v_add_u32 v11, {slot[pk]*8192}, v11")
    a.lg(f"ds_write_b128 v11, {vr(pb,4)}")
    a.lg(f"ds_write_b128 v11, {vr(pb+4,4)} offset:1024")
    a.wait_all()

S_M0 = 80
def mem0_loads(a):
    a("; ---- mem0 loads")
    srd(a, S_M0, sMem0, 8 * 1280)
    T = 44
    a(f"v_lshrrev_b32 v{T+9}, 4, v{vL16}")
    a(f"s_lshl_b32 s{sT0}, s{sW}, 6")
    a(f"v_add_u32 v{T+9}, s{sT0}, v{T+9}")
    a(f"s_mov_b32 s{sT1}, 13108")
    toks = []
    for n in range(5):
        q = 28 + n; b = T - 1
        a(f"v_add_u32 v{q}, {256*n}, v{T+9}")
        a(f"v_lshrrev_b32 v{b+1}, 4, v{q}")
        a(f"v_lshrrev_b32 v{b+2}, 2, v{b+1}")
        a(f"v_and_b32 v{b+3}, 3, v{b+1}")
        a(f"v_mul_u32_u24 v{b+4}, s{sT1}, v{b+2}")
        a(f"v_lshrrev_b32 v{b+4}, 16, v{b+4}")
        a(f"v_mul_u32_u24 v{b+5}, 5, v{b+4}")
        a(f"v_sub_u32 v{b+5}, v{b+2}, v{b+5}")
        a(f"v_and_b32 v{b+6}, 1, v{q}")
        a(f"v_lshrrev_b32 v{b+7}, 1, v{b+5}")
        a(f"v_lshlrev_b32 v{b+7}, 8, v{b+7}")
        a(f"v_and_b32 v{b+8}, 1, v{b+5}")
        a(f"v_lshl_add_u32 v{b+7}, v{b+8}, 4, v{b+7}")
        a(f"v_lshlrev_b32 v{b+8}, 7, v{b+6}")
        a(f"v_lshlrev_b32 v{b+9}, 4, v{b+6}")
        a(f"v_cmp_eq_u32 vcc, 4, v{b+5}")
        a(f"v_cndmask_b32 v{b+8}, v{b+8}, v{b+9}, vcc")
        a(f"v_add_u32 v{b+7}, v{b+7}, v{b+8}")
        a(f"v_lshl_add_u32 v{b+7}, v{b+4}, 5, v{b+7}")
        a(f"v_lshl_add_u32 v{b+7}, v{b+3}, 2, v{b+7}")
        a(f"v_bfe_u32 v{b+8}, v{q}, 1, 3")
        a(f"s_movk_i32 s{sT2}, 1280")
        a(f"v_mul_lo_u32 v{b+8}, v{b+8}, s{sT2}")
        a(f"v_lshl_add_u32 v{b+8}, v{b+7}, 1, v{b+8}")
        toks.append(a.vm(f"buffer_load_dwordx2 {vr(34+2*n,2)}, v{b+8}, s[{S_M0}:{S_M0+3}], 0 offen"))
        a(f"v_lshlrev_b32 v{q}, 3, v{q}")
    return toks
def mem0_writes(a, toks):
    for n in range(5):
        a.wait(toks[n])
        a.lg(f"ds_write_b64 v{28+n}, {vr(34+2*n,2)} offset:{LDS_M}")

def init_exchange(a, sc):
    a("; ---- init exchange buffers")
    for k in range(54, 58): a(f"v_mov_b32 v{k}, 1")
    a.vm(f"buffer_store_dwordx4 v[54:57], v{vPst}, s[{S_WS}:{S_WS+3}], s{sP0} offen{sc}")
    a.vm(f"buffer_store_dwordx4 v[54:57], v{vPst}, s[{S_WS}:{S_WS+3}], s{sP1} offen{sc}")
    lone_off(a, 58, 59)
    a.vm(f"buffer_store_dwordx2 v[54:55], v58, s[{S_WS}:{S_WS+3}], s{sPl} offen{sc}")
    skip = a.newlabel("IX")
    a(f"s_cmp_eq_u32 s{sIsRed}, 0")
    a(f"s_cbranch_scc1 {skip}")
    red_moff(a, 58, 59)
    a("v_mov_b32 v60, -1"); a("v_mov_b32 v61, -1")
    for sl in range(4):
        a(f"s_add_u32 s{sT0}, s{sRedM}, {WS_M + sl*MSLOT}")
        a(f"buffer_store_dwordx2 v[60:61], v58, s[{S_WS}:{S_WS+3}], s{sT0} offen{sc}")
    a.label(skip)

def red_moff(a, dst, tmp):
    a(f"v_lshrrev_b32 v{dst}, 8, v{vL16}")
    a(f"v_lshlrev_b32 v{dst}, 7, v{dst}")
    a(f"v_and_b32 v{tmp}, 0x30, v{vL16}")
    a(f"v_add_u32 v{dst}, v{dst}, v{tmp}")
    a(f"v_bfe_u32 v{tmp}, v{vL16}, 6, 1")
    a(f"v_lshl_add_u32 v{dst}, v{tmp}, 3, v{dst}")

def flag_off(a):
    a(f"s_mov_b32 s{sFlagCur}, s{sFlagOff}")
    a(f"s_add_u32 s{sT0}, s{sStep}, 1")
    a(f"s_lshr_b32 s{sT0}, s{sT0}, 4")
    a(f"s_min_u32 s{sT0}, s{sT0}, 3")
    a(f"s_lshl_b32 s{sT0}, s{sT0}, 6")
    a(f"s_lshr_b32 s{sT1}, s{sH}, 1")
    a(f"s_lshl_b32 s{sT1}, s{sT1}, 2")
    a(f"s_add_u32 s{sFlagOff}, s{sT0}, s{sT1}")
    a(f"s_add_u32 s{sFlagOff}, s{sFlagOff}, {FL_KV}")

PF_DIST = 1
WMOD = ' nt'
KXNT = ' nt'
OPTS = set()
NT = ''
def step_offsets(a):
    a(f"s_lshl_b32 s{sT0}, s{sStep}, 5")
    a(f"s_add_u32 s{sT0}, s{sT0}, s{sH}")
    a(f"s_lshl_b32 s{sT1}, s{sT0 if 'samekv' not in OPTS else sH}, 12")
    a(f"s_lshl_b32 s{sT2}, s{sW}, 10")
    a(f"s_add_u32 s{sT1}, s{sT1}, s{sT2}")
    a(f"s_add_u32 s{sKM}, s{sT1}, {WS_KM}")
    if 'samex' in OPTS: a(f"s_mov_b32 s{sT0}, s{sH}")
    a(f"s_lshl_b32 s{sT1}, s{sT0}, 13")
    a(f"s_add_u32 s{sT1}, s{sT1}, s{sW2048}")
    a(f"s_add_u32 s{sVX}, s{sT1}, {WS_VX}")
    a(f"s_sub_u32 s{sKX0}, s{sVX}, {WS_VX - WS_KX}")
    a(f"s_lshl_b32 s{sT1}, s{sT0}, 13")
    a(f"s_add_u32 s{sKXb}, s{sT1}, {WS_KX + 32*8192}")
    a(f"s_add_u32 s{sPF}, s{sKXb}, 0")
    a(f"s_add_u32 s{sT2}, s{sKXb}, {WS_VX - WS_KX}")
    a(f"s_cmp_lt_u32 s{sW}, 2")
    a(f"s_cselect_b32 s{sPF}, s{sPF}, s{sT2}")
    a(f"s_and_b32 s{sT2}, s{sW}, 1")
    a(f"s_lshl_b32 s{sT2}, s{sT2}, 12")
    a(f"s_add_u32 s{sPF}, s{sPF}, s{sT2}")
    flag_off(a)
    a(f"s_and_b32 s{sT0}, s{sStep}, 3")
    a(f"s_mul_i32 s{sT0}, s{sT0}, {MSLOT}")
    a(f"s_add_u32 s{sMrd}, s{sT0}, s{sW2560}")
    a(f"s_add_u32 s{sMrd}, s{sMrd}, {WS_M}")
    a(f"s_add_u32 s{sMwr}, s{sT0}, s{sRedM}")
    a(f"s_add_u32 s{sMwr}, s{sMwr}, {WS_M}")
    a(f"s_add_u32 s{sT0}, s{sStep}, 2")
    a(f"s_and_b32 s{sT0}, s{sT0}, 3")
    a(f"s_mul_i32 s{sT0}, s{sT0}, {MSLOT}")
    a(f"s_add_u32 s{sMpo}, s{sT0}, s{sRedM}")
    a(f"s_add_u32 s{sMpo}, s{sMpo}, {WS_M}")

def team_arrive(a, off, sc):
    skip = a.newlabel("TBs")
    a(f"s_cmp_lg_u32 s{sW}, 0")
    a(f"s_cbranch_scc1 {skip}")
    a(f"s_lshl_b32 s{sT0}, s{sH}, 2")
    a(f"v_mov_b32 v36, s{sT0}")
    a("v_mov_b32 v37, 1")
    a(f"buffer_store_dword v37, v36, s[{S_WS}:{S_WS+3}], 0 offen offset:{off}{sc}")
    a.label(skip)
def team_look(a, off):
    a(f"v_lshrrev_b32 v36, 2, v{vL16}")
    a("v_and_b32 v36, 0x7c, v36")
    a.vm(f"buffer_load_dword v37, v36, s[{S_WS}:{S_WS+3}], 0 offen offset:{off} sc1")
def team_wait(a, off):
    lab = a.newlabel("TB"); ok = a.newlabel("TBk")
    a.label(lab)
    a("v_cmp_eq_u32 vcc, 0, v37")
    a(f"s_cbranch_vccz {ok}")
    a(f"buffer_load_dword v37, v36, s[{S_WS}:{S_WS+3}], 0 offen offset:{off} sc1")
    spin(a)
    a("s_waitcnt vmcnt(0)")
    a(f"s_branch {lab}")
    a.label(ok)

STAMP_REGS = [66, 78, 80, 82, 84, 86, 88, 56, 58, 60, 62]
class Step:
    def __init__(self, a, fast, stamp=None, opt=()):
        self.a = a
        self.opt = set(opt)
        self.sc = "" if fast else " sc1"
        self.stamp = stamp
        self.outofline = []
        self.nv1 = 14
        for o in self.opt:
            if o.startswith("nv"): self.nv1 = int(o[2:])
    def ws(self): return f"s[{S_WS}:{S_WS+3}]"
    def btile(self, t): return rtile(R_IDX[t])[0]
    def smf(self, acc, A, B):
        self.a(f"v_smfmac_f32_16x16x64_bf16 {vr(acc,4)}, {vr(A,4)}, {B}, v{vIdx}")
    def ld_s_half(self, t, dst, hf):
        if "noS" in self.opt: return None
        si = S_IDX[t]
        off = (si % 2) * 2048 + hf * 1024
        mod = ""
        for o in self.opt:
            if o.startswith("l1=") and si >= int(o[3:]): mod = " sc1"
            if o.startswith("l1nt=") and si >= int(o[5:]): mod = " nt"
        return self.a.vm(f"buffer_load_dwordx4 {vr(dst+4*hf,4)}, v{vL16}, {self.ws()}, s{sSWb + si//2} offen offset:{off}{mod}")
    def ld_s(self, t, dst):
        self.ld_s_half(t, dst, 0)
        return self.ld_s_half(t, dst, 1)
    def ld_l(self, t, dst, bases, base9=None):
        a = self.a
        if "noL" in self.opt: return None
        x = L_IDX[t]
        if base9 is not None: vb = base9; off = (x - 9) * 8192
        else: vb = bases[x // 8]; off = (x % 8) * 8192
        assert 0 <= off < 65536 - 1024
        a.lg(f"ds_read_b128 {vr(dst,4)}, v{vb} offset:{off}")
        return a.lg(f"ds_read_b128 {vr(dst+4,4)}, v{vb} offset:{off+1024}")

    def pre_poll(self):
        a = self.a
        a(f"v_and_b32 v32, 0x1f0, v{vL16}")
        a(f"v_add_u32 v33, s{sW2560}, v{vL16}")
        a(f"v_add_u32 v34, s{sW2560}, v32")
        for k in range(8, 20, 2): a(f"v_mov_b64 v[{k}:{k+1}], 0")
        a(f"v_bfe_u32 v36, v{vL16}, 8, 1")
        a(f"v_lshlrev_b32 v36, 8, v36")
        a(f"v_add_u32 v36, s{sFlagOff}, v36")
        a(f"v_lshlrev_b32 v37, 3, v{vL16}")
        a(f"v_add_u32 v37, s{sPF}, v37")
        a(f"v_cndmask_b32 v{vFl}, v36, v37, s[{sLo32}:{sLo32+1}]")

    def early_a(self):
        self.stok = {}
        self.stok[("q", 0)] = self.ld_s(("q", 0), 40)
        self.stok[("k", 0)] = self.ld_s(("k", 0), 48)
        if "q6e" in self.opt: self.stok[("q", 6)] = self.ld_s(("q", 6), 56)

    def m_loads(self):
        a = self.a
        a.vm(f"buffer_load_dwordx4 v[20:23], v{vL16}, {self.ws()}, s{sMrd} offen sc1")
        a.vm(f"buffer_load_dwordx4 v[24:27], v{vL16}, {self.ws()}, s{sMrd} offen offset:1024 sc1")
        return a.vm(f"buffer_load_dwordx4 v[28:31], v32, {self.ws()}, s{sMrd} offen offset:2048 sc1")
    def m_check(self):
        a = self.a
        a("v_max3_u32 v35, v21, v23, v25")
        a("v_max3_u32 v35, v35, v27, v29")
        a("v_max_u32 v35, v35, v31")
        a("v_cmp_eq_u32 vcc, -1, v35")

    def poll_m(self):
        a = self.a
        retry = a.newlabel("PMR"); ok = a.newlabel("PMK")
        tm = self.m_loads()
        if "eh" not in self.opt:
            if "nomb" not in self.opt: a("s_barrier")
            self.early_a()
            a.wait(tm, force=True)
        else:
            self.stok = {("q", 0): None, ("k", 0): None}
            a.wait_all_vm()
        self.m_check()
        a(f"s_cbranch_vccnz {retry}")
        a.label(ok)
        o = Asm(); o._lab = a._lab + 1000
        o.label(retry)
        st = Step(o, True, None, self.opt); st.sc = self.sc
        st.m_loads(); spin(o); o.wait_all_vm(); st.m_check()
        o(f"s_cbranch_vccnz {retry}")
        o(f"s_branch {ok}")
        self.outofline += o.lines
        self.stamp_at(1)
        if self.stamp: a(f"s_mov_b32 s64, s{sSpin}")
        a.lg(f"ds_write_b128 v33, v[20:23] offset:{LDS_M}")
        a.lg(f"ds_write_b128 v33, v[24:27] offset:{LDS_M+1024}")
        a.lg(f"ds_write_b128 v34, v[28:31] offset:{LDS_M+2048}")

    def stamp_at(self, i, red=False):
        if red and "rst" not in self.opt: return
        if "rst" in self.opt and i in (3, 4, 5) and not red: return
        if self.stamp: self.a(f"s_memtime s[{STAMP_REGS[i]}:{STAMP_REGS[i]+1}]")
    def dump_stamps(self):
        if not self.stamp: return
        a = self.a
        a("s_waitcnt lgkmcnt(0)")
        for i in range(11):
            r = STAMP_REGS[i]
            a(f"v_writelane_b32 v59, s{r}, {i}")
        for i, r in enumerate((64, 65, 68)): a(f"v_writelane_b32 v59, s{r}, {11+i}")
        a(f"s_lshl_b32 s{sT0}, s{sH}, 2")
        a(f"s_add_u32 s{sT0}, s{sT0}, s{sW}")
        a(f"s_lshl_b32 s{sT0}, s{sT0}, 12")
        a(f"s_lshl_b32 s{sT1}, s{sStep}, 6")
        a(f"s_add_u32 s{sT0}, s{sT0}, s{sT1}")
        a(f"s_add_u32 s{sT0}, s{sT0}, {WS_STAMP}")
        a(f"v_lshrrev_b32 v58, 2, v{vL16}")
        a("s_mov_b64 s[48:49], exec")
        a("s_mov_b64 exec, 0x3fff")
        a(f"buffer_store_dword v59, v58, {self.ws()}, s{sT0} offen")
        a("s_mov_b64 exec, s[48:49]")

    def body(self, entry_label):
        a = self.a
        self.stamp_at(0)
        if "rt" in self.opt:
            a("s_memrealtime s[88:89]"); a("s_memtime s[86:87]"); a("s_waitcnt lgkmcnt(0)")
            a(f"v_mov_b32 v8, s88"); a(f"v_mov_b32 v9, s86")
            a(f"s_lshl_b32 s89, s{sH}, 2"); a(f"s_add_u32 s89, s89, s{sW}"); a("s_lshl_b32 s89, s89, 9")
            a(f"s_lshl_b32 s88, s{sStep}, 3"); a("s_add_u32 s89, s89, s88"); a(f"s_add_u32 s89, s89, {WS_STAMP + 0x20000}")
            a("v_mov_b32 v10, 0")
            a(f"buffer_store_dwordx2 v[8:9], v10, {self.ws()}, s89 offen")
        self.pre_poll()
        self.poll_m()
        stok = self.stok
        sq = {("q",0):40, ("k",0):48, ("q",6):56, ("k",7):64, ("q",13):40, ("k",15):48, ("q",18):56, ("k",19):64}
        if "q6e" not in self.opt: stok[("q",6)] = self.ld_s(("q",6), 56)
        a.label(entry_label)
        a.wait_all_lg()
        a("s_barrier")
        self.stamp_at(2)
        La = [20, 24, 28]; Lb = 32
        accQ, accK, accV = 8, 12, 16
        atok = {}
        def rdA(j):
            if j < 20: atok[j] = a.lg(f"ds_read_b128 {vr(La[j%3],4)}, v{vAoff} offset:{LDS_M + 512*j}")
        ltiles = [t for t in L_TILES if t[0] != "o"]
        ltok = {}
        def rdL(x):
            if x < len(ltiles): ltok[ltiles[x]] = self.ld_l(ltiles[x], Lb, [vLb])
        rdA(0); rdA(1); rdL(0)
        pos = [0, 1, 3, 4, 5, 7, 8, 9, 11, 12]
        dj = 14
        for o in self.opt:
            if o.startswith("late="): pos = [int(x) for x in o[5:].split(",")]
            if o.startswith("dma="): dj = int(o[4:])
        late = {}
        for (t, hf), j in zip([(("k",7),0), (("k",7),1), (("q",13),0), (("q",13),1), (("k",15),0), (("k",15),1),
                               (("q",18),0), (("q",18),1), (("k",19),0), (("k",19),1)], pos):
            late.setdefault(j, []).append((t, hf))
        assert pos[2] >= 1 and pos[4] >= 1 and pos[6] >= 6 and pos[8] >= 8
        dma = {}
        nl = 0
        def vmf(j): self.smf(accV, La[j % 3], self.btile(("v", j)))
        for j in range(20):
            waits = [atok[j]]
            for mat in "qk":
                t = (mat, j)
                if t in L_IDX: waits.append(ltok[t])
                if t in S_IDX and "nows" not in self.opt: waits.append(stok[t])
            a.wait(*waits)
            tq_, tk_ = ("q", j), ("k", j)
            self.smf(accQ, La[j % 3], vr(sq[tq_], 8) if tq_ in S_IDX else self.btile(tq_))
            if j != 18: rdA(j + 2)
            for t, hf in late.get(j, []):
                x = self.ld_s_half(t, sq[t], hf)
                if hf == 1: stok[t] = x
            if j in (dj, dj + 1) and "noKX" not in self.opt:
                if j == dj: a(f"s_add_u32 m0, s{sW2048}, {LDS_KX}")
                dma[j - dj] = a.vm(f"buffer_load_dwordx4 v{vL16}, {self.ws()}, s{sKX0} offen offset:{(j-dj)*1024} sc1{NT} lds")
            if tk_ in L_IDX: B = vr(Lb, 8)
            elif tk_ in S_IDX: B = vr(sq[tk_], 8)
            else: B = self.btile(tk_)
            self.smf(accK, La[j % 3], B)
            if tk_ in L_IDX:
                nl += 1; rdL(nl)
            if j < 18: vmf(j)
        vmf(18); vmf(19)
        self.stamp_at(3)
        OB = [40, 56]
        def rd_kx(m, tile):
            return a.lg(f"ds_read_b128 {vr(OB[m%2]+8+4*tile,4)}, v{vL16} offset:{LDS_KX + (4*tile+m)*1024}")
        def rd_t(m, which):
            b = OB[m % 2] + 4 * which; base = (LDS_TQ, LDS_TK)[which] + m * 512
            a.lg(f"ds_read_b64_tr_b16 {vr(b,2)}, v{vTr} offset:{base}")
            return a.lg(f"ds_read_b64_tr_b16 {vr(b+2,2)}, v{vTr} offset:{base + 64}")
        kx = {}
        a(f"v_mov_b32 v38, s{sStep}")
        a(f"v_mov_b32 v39, 0")
        a("v_cvt_pk_bf16_f32 v34, v8, v9")
        a("v_cvt_pk_bf16_f32 v35, v10, v11")
        tq = a.lg(f"ds_write_b64 v{vTw}, v[34:35] offset:{LDS_TQ}")
        a("v_cvt_pk_bf16_f32 v32, v12, v13")
        a("v_cvt_pk_bf16_f32 v33, v14, v15")
        tk = a.lg(f"ds_write_b64 v{vTw}, v[32:33] offset:{LDS_TK}")
        VX0, VX1 = 8, 12
        vxs = {"t": None}
        vxpos = "c0"
        for o in self.opt:
            if o.startswith("vx@"): vxpos = o[3:]
        def vx_at(pos):
            if pos == vxpos and "noVX" not in self.opt:
                a.vm(f"buffer_load_dwordx4 {vr(VX0,4)}, v{vL16}, {self.ws()}, s{sVX} offen sc1{NT}")
                vxs["t"] = a.vm(f"buffer_load_dwordx4 {vr(VX1,4)}, v{vL16}, {self.ws()}, s{sVX} offen offset:1024 sc1{NT}")
        vx_at("c0")
        a("v_cvt_pk_bf16_f32 v34, v16, v17")
        a("v_cvt_pk_bf16_f32 v35, v18, v19")
        def pf():
            self.pf_tok = None
            if "noPF" not in self.opt:
                self.pf_tok = a.vm(f"buffer_load_dword v{vFl}, v{vFl}, {self.ws()}, 0 offen sc1")
            else: a(f"v_mov_b32 v{vFl}, 1000")
        def kv():
            if "noKV" not in self.opt:
                a.vm(f"buffer_store_dwordx4 v[32:35], v{vL16}, {self.ws()}, s{sKM} offen sc1")
            if "noFL" not in self.opt:
                a.vm(f"buffer_store_dword v38, v39, {self.ws()}, s{sFlM} offen sc1")
        pfpos = "d3"
        for o in self.opt:
            if o.startswith("pf@"): pfpos = o[3:]
        kvpos = "c1"
        for o in self.opt:
            if o.startswith("kv@"): kvpos = o[3:]
        def kv_at(pos):
            if pos == kvpos: kv()
        def batch(at_c):
            if at_c: kv_at("c0")
        def pf_at(pos):
            if pos == pfpos: pf()
        a(f"s_cmp_eq_u32 s{sStep}, {NSEG-1}")
        a(f"s_cbranch_scc1 {self.exit_label}")
        batch(True)
        a(f"v_cndmask_b32 v16, 0, v34, s[{sLo32}:{sLo32+1}]")
        a(f"v_cndmask_b32 v17, 0, v35, s[{sLo32}:{sLo32+1}]")
        a(f"v_cndmask_b32 v18, 0, v34, s[{sHi32}:{sHi32+1}]")
        a(f"v_cndmask_b32 v19, 0, v35, s[{sHi32}:{sHi32+1}]")
        a.wait(tk, dma.get(1))
        a("s_barrier")
        self.stamp_at(4)
        tt = {}
        tt[(0,0)] = rd_t(0, 0); kx[(0,0)] = rd_kx(0, 0); kx[(0,1)] = rd_kx(0, 1); tt[(0,1)] = rd_t(0, 1)
        tt[(1,0)] = rd_t(1, 0); kx[(1,0)] = rd_kx(1, 0); kx[(1,1)] = rd_kx(1, 1); tt[(1,1)] = rd_t(1, 1)
        vx_at("c1")
        kv_at("c1")
        vx_at("c2")
        X0, X1, MM = 20, 24, 28
        def sc(m, which):
            b = OB[m % 2]
            D = (X0, X1, MM)[which]; A = (b + 8, b + 12, b + 4)[which]
            need = [tt[(m, 0)], kx[(m, which)] if which < 2 else tt[(m, 1)]]
            a.wait(*need)
            a(f"v_mfma_f32_16x16x32_bf16 {vr(D,4)}, {vr(A,4)}, {vr(b,4)}, {'0' if m == 0 else vr(D,4)}")
        for m in range(4):
            sc(m, 0)
            if m < 2: kx[(m+2, 0)] = rd_kx(m + 2, 0)
            if m >= 1 and m <= 2: tt[(m+1, 1)] = rd_t(m + 1, 1)
            sc(m, 1)
            if m < 2: kx[(m+2, 1)] = rd_kx(m + 2, 1)
            sc(m, 2)
            if m < 2: tt[(m+2, 0)] = rd_t(m + 2, 0)
            if m < 3: vx_at(f"d{m}"); kv_at(f"d{m}"); pf_at(f"d{m}")
        pf_at("d3")
        self.stamp_at(5)
        otiles = [t for t in L_TILES if t[0] == "o"]
        slots = [48, 56, 64]
        a(f"v_add_u32 v38, 0x10000, v{vLb}")
        lt = {}
        for k in range(3): lt[otiles[k]] = self.ld_l(otiles[k], slots[k], [vLb, 38])
        m_, t_ = 36, 37
        a(f"v_max3_f32 v{m_}, v20, v21, v22")
        a(f"v_max3_f32 v{t_}, v23, v24, v25")
        a(f"v_max3_f32 v{m_}, v{m_}, v26, v27")
        a(f"v_max3_f32 v{t_}, v{t_}, v28, v29")
        a(f"v_max3_f32 v{m_}, v{m_}, v30, v31")
        a(f"v_max_f32 v{m_}, v{m_}, v{t_}")
        a(f"v_mov_b32 v{t_}, v{m_}")
        a(f"v_permlane32_swap_b32 v{m_}, v{t_}")
        a(f"v_max_f32 v{m_}, v{m_}, v{t_}")
        a(f"v_mov_b32 v{t_}, v{m_}")
        a(f"v_permlane16_swap_b32 v{m_}, v{t_}")
        a(f"v_max_f32 v{m_}, v{m_}, v{t_}")
        a(f"v_mul_f32 v{m_}, s{sC}, v{m_}")
        pf_at("e1")
        for r in range(20, 32, 2):
            a(f"v_pk_fma_f32 v[{r}:{r+1}], v[{r}:{r+1}], s[{sC}:{sC+1}], v[{m_}:{m_+1}] op_sel_hi:[1,0,0] neg_lo:[0,0,1] neg_hi:[0,0,1]")
        for r in range(20, 32): a(f"v_exp_f32 v{r}, v{r}")
        a("v_cvt_pk_bf16_f32 v20, v20, v21")
        a("v_cvt_pk_bf16_f32 v21, v22, v23")
        a("v_cvt_pk_bf16_f32 v22, v24, v25")
        a("v_cvt_pk_bf16_f32 v23, v26, v27")
        a("v_cvt_pk_bf16_f32 v28, v28, v29")
        a("v_cvt_pk_bf16_f32 v29, v30, v31")
        pf_at("e2")
        self.stamp_at(6)
        O0, O1 = 24, 32
        a.wait(vxs["t"])
        a(f"v_mfma_f32_16x16x32_bf16 {vr(O0,4)}, {vr(VX0,4)}, v[20:23], 0")
        a(f"v_dot2_f32_bf16 v36, v28, s{sHalf}, 0")
        a(f"v_dot2_f32_bf16 v37, v20, s{sOnes}, 0")
        a(f"v_mfma_f32_16x16x32_bf16 {vr(O1,4)}, {vr(VX1,4)}, v[20:23], 0")
        a(f"v_dot2_f32_bf16 v36, v29, s{sHalf}, v36")
        a(f"v_dot2_f32_bf16 v37, v21, s{sOnes}, v37")
        a(f"v_mfma_f32_16x16x16_bf16 {vr(O0,4)}, v[16:17], v[28:29], {vr(O0,4)}")
        a(f"v_dot2_f32_bf16 v36, v22, s{sOnes}, v36")
        a(f"v_dot2_f32_bf16 v37, v23, s{sOnes}, v37")
        a(f"v_mfma_f32_16x16x16_bf16 {vr(O1,4)}, v[18:19], v[28:29], {vr(O1,4)}")
        pf_at("f")
        a(f"v_add_u32 v39, s{sW512}, v{vAoff}")
        vLo, vLone = 44, 45
        a(f"v_add_u32 v{vLo}, {9*8192}, v{vLb}")
        a("v_add_f32 v36, v36, v37")
        a("v_mov_b32 v37, v36")
        a("v_permlane32_swap_b32 v36, v37")
        a("v_add_f32 v36, v36, v37")
        a("v_mov_b32 v37, v36")
        a("v_permlane16_swap_b32 v36, v37")
        a("v_add_f32 v36, v36, v37")
        a("v_rcp_f32 v36, v36")
        lone_off(a, vLone, 46)
        for r in (O0, O0+2, O1, O1+2):
            a(f"v_pk_mul_f32 v[{r}:{r+1}], v[{r}:{r+1}], v[36:37] op_sel_hi:[1,0]")
        a(f"v_cvt_pk_bf16_f32 v24, v24, v25")
        a(f"v_cvt_pk_bf16_f32 v25, v26, v27")
        a(f"v_cvt_pk_bf16_f32 v26, v32, v33")
        a(f"v_cvt_pk_bf16_f32 v27, v34, v35")
        two = a.lg(f"ds_write_b128 v39, v[24:27] offset:{LDS_TO}")
        for k in range(8, 24, 2): a(f"v_mov_b64 v[{k}:{k+1}], 0")
        a.wait(two)
        a("s_barrier")
        self.stamp_at(7)
        AO = [28, 32, 36, 40]
        aot = [a.lg(f"ds_read_b128 {vr(AO[m],4)}, v{vAoff} offset:{LDS_TO + 512*m}") for m in range(4)]
        a("v_mov_b64 v[24:25], 0"); a("v_mov_b64 v[26:27], 0")
        acc = [8, 12, 16, 20, 24]
        def pst(b, soff, lone=False):
            if not lone:
                return [f"v_cvt_pk_bf16_f32 v{b}, v{b}, v{b+1}", f"v_cvt_pk_bf16_f32 v{b+1}, v{b+2}, v{b+3}",
                        f"v_cvt_pk_bf16_f32 v{b+2}, v{b+4}, v{b+5}", f"v_cvt_pk_bf16_f32 v{b+3}, v{b+6}, v{b+7}",
                        f"v_bfi_b32 v{b}, 1, s{sTag}, v{b}", f"v_bfi_b32 v{b+2}, 1, s{sTag}, v{b+2}",
                        f"@buffer_store_dwordx4 {vr(b,4)}, v{vPst}, {self.ws()}, s{soff} offen{self.sc}"]
            return [f"v_cvt_pk_bf16_f32 v{b}, v{b}, v{b+1}", f"v_cvt_pk_bf16_f32 v{b+1}, v{b+2}, v{b+3}",
                    f"v_bfi_b32 v{b}, 1, s{sTag}, v{b}",
                    f"@buffer_store_dwordx2 {vr(b,2)}, v{vLone}, {self.ws()}, s{soff} offen{self.sc}"]
        fill = []
        def emit(n):
            for _ in range(n):
                if not fill: return
                x = fill.pop(0)
                if x.startswith("@"): a.vm(x[1:])
                else: a(x)
        nlo = 0
        for n in range(20):
            p, m = divmod(n, 4)
            t = ("o", p, m)
            w = [aot[m]]
            if t in L_IDX: w.append(lt[t]); B = vr(slots[nlo % 3], 8)
            else: B = self.btile(t)
            a.wait(*w)
            self.smf(acc[p], AO[m], B)
            used = 0
            if t in L_IDX:
                nlo += 1
                if nlo + 2 < len(otiles):
                    lt[otiles[nlo+2]] = self.ld_l(otiles[nlo+2], slots[(nlo+2) % 3], None, base9=vLo); used = 2
            if n == 9: fill += pst(8, sP0)
            if n == 17: fill += pst(16, sP1)
            emit(2 - used)
        emit(99)
        fill += pst(24, sPl, lone=True); emit(99)
        self.stamp_at(8)
        if self.stamp: a(f"s_mov_b32 s65, s{sSpin}")
        a(f"s_add_u32 s{sStep}, s{sStep}, 1")
        step_offsets(a)
        nored = a.newlabel("NR")
        a(f"s_cmp_eq_u32 s{sIsRed}, 0")
        a(f"s_cbranch_scc1 {nored}")
        self.reducer()
        a.label(nored)
        a(f"s_waitcnt vmcnt(3)")
        a(f"v_readlane_b32 s{sFlK}, v{vFl}, 32")
        a(f"v_readlane_b32 s{sFlV}, v{vFl}, 48")
        self.check_flag()
        self.stamp_at(9)
        if self.stamp: a(f"s_mov_b32 s68, s{sSpin}")
        a("s_barrier")
        self.stamp_at(10)
        self.dump_stamps()
        a(f"s_xor_b32 s{sTag}, s{sTag}, 1")

    def reducer(self):
        a = self.a
        SEL, ACC, MO, TG, OUT, PO = 40, 44, 48, 49, 50, 52
        a(f"s_add_u32 s{sT1}, s{sPrd}, 4096")
        rd = 2
        for o in self.opt:
            if o.startswith("rd"): rd = int(o[2:])
        if rd: a(f"s_sleep {rd}")
        def setup():
            a(f"v_mov_b32 v54, 0x3f80")
            a(f"v_mov_b32 v55, 0x3f800000")
            a(f"v_bfe_u32 v{TG}, v{vL16}, 4, 1")
            a(f"v_cmp_eq_u32 vcc, 1, v{TG}")
            a(f"v_cndmask_b32 v54, v54, v55, vcc")
            for R in range(4): a(f"v_cndmask_b32 v{SEL+R}, 0, v54, s[{sSel+2*R}:{sSel+2*R+1}]")
            red_moff(a, MO, 54)
            a(f"v_mov_b32 v{PO}, -1"); a(f"v_mov_b32 v{PO+1}, -1")
        def polls():
            toks = []
            for k in range(8):
                sb = sPrd if k < 4 else sT1
                toks.append(a.vm(f"buffer_load_dwordx4 {vr(8+4*k,4)}, v{vL16}, {self.ws()}, s{sb} offen offset:{(k%4)*1024} sc1"))
            return toks
        def reduce(toks, tag):
            a(f"v_mov_b32 v{TG}, {0 if tag == 0 else -1}")
            for k in range(8):
                a.wait(toks[k], force=True)
                if k == 0: self.stamp_at(4, True)
                if k == 7: self.stamp_at(5, True)
                b = 8 + 4 * k
                if tag == 0: a(f"v_or3_b32 v{TG}, v{TG}, v{b}, v{b+2}")
                else:
                    a(f"v_and_b32 v{TG}, v{TG}, v{b}"); a(f"v_and_b32 v{TG}, v{TG}, v{b+2}")
                a(f"v_mfma_f32_16x16x32_bf16 {vr(ACC,4)}, {vr(b,4)}, {vr(SEL,4)}, {'0' if k == 0 else vr(ACC,4)}")
            a(f"v_and_b32 v{TG}, 1, v{TG}")
            a(f"v_cmp_ne_u32 vcc, {tag}, v{TG}")
        self.stamp_at(3, True)
        if "postsetup" not in self.opt: setup()
        toks = polls()
        if "postsetup" in self.opt: setup()
        odd = a.newlabel("RO"); fin = a.newlabel("RF")
        a(f"s_cmp_eq_u32 s{sTag}, 1")
        a(f"s_cbranch_scc1 {odd}")
        base = a.state()
        for tag in (0, 1):
            a.set_state(base)
            if tag == 1: a.label(odd)
            retry = a.newlabel("RR"); ok = a.newlabel("RK")
            reduce(toks, tag)
            a(f"s_cbranch_vccnz {retry}")
            a.label(ok)
            if tag == 0: a(f"s_branch {fin}")
            o = Asm(); o._lab = a._lab + 2000 + tag
            o.label(retry)
            sv = self.a; self.a = o; a_ = a; a = o
            self.stamp_at(3, True)
            t2 = polls(); spin(o); reduce(t2, tag)
            o(f"s_cbranch_vccnz {retry}")
            o(f"s_branch {ok}")
            a = a_; self.a = sv
            self.outofline += o.lines
        a.label(fin)
        a(f"v_cvt_pk_bf16_f32 v{OUT}, v{ACC}, v{ACC+1}")
        a(f"v_cvt_pk_bf16_f32 v{OUT+1}, v{ACC+2}, v{ACC+3}")
        a(f"v_min_u32 v{OUT+1}, s{sFE}, v{OUT+1}")
        a.vm(f"buffer_store_dwordx2 v[{OUT}:{OUT+1}], v{MO}, {self.ws()}, s{sMwr} offen{self.sc}")
        a.vm(f"buffer_store_dwordx2 v[{PO}:{PO+1}], v{MO}, {self.ws()}, s{sMpo} offen{self.sc}")

    def check_flag(self):
        a = self.a
        ok = a.newlabel("FK"); lab = a.newlabel("FS")
        a.label(lab)
        a(f"s_min_u32 s{sT0}, s{sFlK}, s{sFlV}")
        a(f"s_and_b32 s{sT1}, s{sStep}, 15")
        a(f"s_cmp_gt_u32 s{sT0}, s{sT1}")
        a(f"s_cbranch_scc1 {ok}")
        a(f"v_bfe_u32 v56, v{vL16}, 8, 1")
        a(f"v_lshlrev_b32 v56, 8, v56")
        a(f"v_add_u32 v56, s{sFlagCur}, v56")
        a(f"buffer_load_dword v57, v56, {self.ws()}, 0 offen sc1")
        spin(a)
        a("s_waitcnt vmcnt(0)")
        a(f"v_readlane_b32 s{sFlK}, v57, 0")
        a(f"v_readlane_b32 s{sFlV}, v57, 16")
        a(f"s_branch {lab}")
        a.label(ok)


def chain_main(a, fast=True, name="C", stamp=False, timing=False, opt=(), confirm=None):
    global PF_DIST, NT, OPTS, KXNT, WMOD
    WMOD = '' if 'wplain' in opt else ' nt'
    KXNT = '' if 'kxplain' in opt else ' nt'
    OPTS = set(opt)
    PF_DIST = 2 if "pf2" in opt else 1
    NT = "" if "xplain" in opt else " nt"
    def rts(i):
        if "rt" in opt:
            a("s_memrealtime s[88:89]"); a("s_waitcnt lgkmcnt(0)")
            a("s_sub_u32 s88, s88, s98")
            a("v_mov_b32 v8, s88"); a(f"s_lshl_b32 s89, s{sH}, 6"); a(f"s_add_u32 s89, s89, {WS_STAMP + 0x10000 + 4*i}")
            a("v_mov_b32 v9, s89")
            a(f"buffer_store_dword v8, v9, s[{S_WS}:{S_WS+3}], 0 offen")
    rts(0)
    if "rt" in opt:
        a("v_mov_b32 v8, s98"); a(f"s_lshl_b32 s89, s{sH}, 6"); a(f"s_add_u32 s89, s89, {WS_STAMP + 0x10000 + 60}")
        a("v_mov_b32 v9, s89"); a(f"buffer_store_dword v8, v9, s[{S_WS}:{S_WS+3}], 0 offen")
    scalar_consts(a)
    lane_consts(a)
    a(f"v_add_u32 v{vLb}, s{sLb}, v{vL16}")
    st = {}
    def hook(k):
        if k == 1: st["m0"] = mem0_loads(a)
        if k == 12: mem0_writes(a, st["m0"])
        if k == 22:
            if confirm: confirm(a)
            init_exchange(a, "" if fast else " sc1")
        if k == 64:
            early = "ksc"
            for o in opt:
                if o.startswith("we="): early = o[3:]
            warm_early(early)
        if k == 41:
            team_arrive(a, FL_TEAM, "" if fast else " sc1")
        if k == 73:
            a(f"s_lshr_b32 s{sT1}, s{sH}, 1")
            a(f"s_lshl_b32 s{sT1}, s{sT1}, 2")
            a(f"s_add_u32 s{sFlagOff}, s{sT1}, {FL_KV}")
            a(f"v_bfe_u32 v35, v{vL16}, 8, 1")
            a(f"v_lshlrev_b32 v35, 8, v35")
            a(f"v_add_u32 v35, s{sFlagOff}, v35")
            a.vm(f"buffer_load_dword v{vFl}, v35, s[{S_WS}:{S_WS+3}], 0 offen sc1")
            warm_early("x")
            team_look(a, FL_TEAM)
    def warm(what):
        a(f"v_lshlrev_b32 v28, 3, v{vL16}")
        if "x" in what:
            a(f"s_lshl_b32 s{sT0}, s{sH}, 13"); a(f"s_lshl_b32 s{sT1}, s{sW}, 11"); a(f"s_add_u32 s{sT0}, s{sT0}, s{sT1}")
            a(f"s_add_u32 s{sT1}, s{sT0}, {WS_KX}"); a(f"s_add_u32 s{sT0}, s{sT0}, {WS_VX}")
            a("s_mov_b64 exec, 0xffff")
            a.vm(f"buffer_load_dword v29, v28, s[{S_WS}:{S_WS+3}], s{sT1} offen sc1")
            a.vm(f"buffer_load_dword v30, v28, s[{S_WS}:{S_WS+3}], s{sT0} offen sc1")
            a("s_mov_b64 exec, -1")
        if "s" in what:
            for k in range(2):
                a(f"s_add_u32 s{sT0}, s{sSW}, {3*2048 + k*8192}")
                if k == 1: a("s_mov_b64 exec, 0xffff")
                a.vm(f"buffer_load_dword v{31+k}, v28, s[{S_WS}:{S_WS+3}], s{sT0} offen")
            a("s_mov_b64 exec, -1")
        if "k" in what:
            a(f"s_lshl_b32 s{sT0}, s{sH}, 12"); a(f"s_add_u32 s{sT0}, s{sT0}, {WS_KM}")
            a.vm(f"buffer_load_dword v33, v{vL16}, s[{S_WS}:{S_WS+3}], s{sT0} offen sc1")
        if "c" in what:
            pcl = a.newlabel("PC")
            a("s_getpc_b64 s[48:49]")
            a.label(pcl)
            a(f"s_add_u32 s48, s48, {name}_TOP-{pcl}")
            a("s_addc_u32 s49, s49, 0")
            a.vm("global_load_dword v34, v28, s[48:49]")
    warm_early = warm
    rts(1)
    weights_prologue(a, hook)
    rts(2)
    a(f"s_mov_b32 s{sStep}, 0")
    a(f"s_mov_b32 s{sTag}, 0")
    lab = a.newlabel("W0"); ok0 = a.newlabel("W0K")
    a(f"v_cmp_eq_u32 vcc, 0, v{vFl}")
    a(f"s_cbranch_vccz {ok0}")
    a.label(lab)
    a(f"buffer_load_dword v{vFl}, v35, s[{S_WS}:{S_WS+3}], 0 offen sc1")
    spin(a)
    a("s_waitcnt vmcnt(0)")
    a(f"v_cmp_eq_u32 vcc, 0, v{vFl}")
    a(f"s_cbranch_vccnz {lab}")
    warm("x")
    a("s_waitcnt vmcnt(0)")
    a.label(ok0)
    step_offsets(a)
    rts(6)
    rts(7)
    team_wait(a, FL_TEAM)
    rts(3)
    rts(4)
    st0 = Step(a, fast, None, opt)
    st0.pre_poll()
    a.wait_all()
    entry = f"{name}_ENTRY"; top = f"{name}_TOP"; ex = f"{name}_EXIT"
    if timing:
        a("s_memtime s[98:99]"); a("s_waitcnt lgkmcnt(0)")
    a(f"s_branch {entry}")
    a(".p2align 6")
    for o in opt:
        if o.startswith("pad"):
            for _ in range(int(o[3:])): a("s_nop 0")
    a.label(top)
    st = Step(a, fast, stamp, opt)
    st.exit_label = ex
    st.body(entry)
    a(f"s_branch {top}")
    a.lines += st.outofline
    a.label(ex)
    a(f"buffer_store_dwordx4 v[32:35], v{vL16}, s[{S_WS}:{S_WS+3}], s{sKM} offen sc1")
    a(f"v_mov_b32 v38, {NSEG-1}")
    a("v_mov_b32 v39, 0")
    a(f"buffer_store_dword v38, v39, s[{S_WS}:{S_WS+3}], s{sFlM} offen sc1")
    rts(5)
    a.wait_all()
    a("s_barrier")
    a(f"s_lshl_b32 s{sT0}, s{sH}, 7")
    a(f"s_add_u32 s{sT0}, s{sT0}, {FL_M}")
    a(f"v_mov_b32 v43, {NSEG}")
    a(f"v_mov_b32 v40, 0")
    a(f"buffer_store_dword v43, v40, s[{S_WS}:{S_WS+3}], s{sT0} offen sc1")
    a("s_waitcnt vmcnt(0)")
```

```python
import sys
sys.path.insert(0, "gen")
from asmlib import *
from layout import *
import chain as C
import workers as W
NAME = "parallel_sum__memory_aug_recurrent_mem_tr__dense_activation_mish__prompt_kernel"
sX, sR = 84, 85
sMode = 86
sDbgP = 76
def header_comment():
    lines = open("cdna_kernels/" + NAME[:-7] + ".s.ref").read().split("\n")
    out = []
    for ln in lines:
        if ln.startswith("; @launch"): break
        if ln.startswith(";"): out.append(ln)
    return "\n".join(out)

sConf = 3
OUTLINE = []
OPTS = set()
def registration(a):
    a("; ==== registration: rank inside the XCD this workgroup runs on")
    WS = W.WS
    nz = a.newlabel("NZ")
    a("s_cmp_lg_u32 s2, 0"); a(f"s_cbranch_scc1 {nz}")
    a("v_lshlrev_b32 v1, 4, v0")
    for k in range(4): a(f"v_mov_b32 v{4+k}, 0")
    for k in range(FLAGS_BYTES // 4096):
        a(f"s_mov_b32 s47, {WS_FLAGS + 4096*k}")
        a(f"buffer_store_dwordx4 v[4:7], v1, {WS}, s47 offen sc1")
    a("s_waitcnt vmcnt(0)")
    a("s_barrier")
    a.label(nz)
    W.srd(a, 8, sDbgP, 256)
    a(f"s_getreg_b32 s{sX}, hwreg(HW_REG_XCC_ID, 0, 4)")
    if "fakexcc" in OPTS:
        a("s_mul_i32 s47, s2, 1639"); a(f"s_lshr_b32 s{sX}, s47, 16")
    a(f"s_and_b32 s47, s{sX}, 3"); a("s_lshl_b32 s47, s47, 2")
    a(f"s_lshr_b32 s48, s{sX}, 2"); a("s_lshl_b32 s48, s48, 7"); a("s_add_u32 s47, s47, s48")
    a("s_min_u32 s47, s47, 252")
    nw = a.newlabel("RW")
    a(f"s_cmp_lg_u32 s{W.sW}, 0"); a(f"s_cbranch_scc1 {nw}")
    a("v_mov_b32 v4, s47"); a("v_mov_b32 v5, 1")
    a("s_mov_b64 exec, 1")
    a("buffer_atomic_add v5, v4, s[8:11], 0 offen sc0")
    a("s_waitcnt vmcnt(0)")
    a("s_mov_b64 exec, -1")
    a("v_mov_b32 v6, 0")
    a("s_mov_b64 exec, 1")
    a("ds_write_b32 v6, v5")
    a("s_mov_b64 exec, -1")
    a("s_waitcnt lgkmcnt(0)")
    a.label(nw)
    a("s_barrier")
    a("v_mov_b32 v6, 0")
    a("ds_read_b32 v5, v6")
    a("s_waitcnt lgkmcnt(0)")
    a(f"v_readfirstlane_b32 s{sR}, v5")
    a("s_barrier")
    a(f"s_lshl_b32 s2, s{sX}, 8"); a(f"s_or_b32 s2, s2, s{sR}")
    a(f"s_mov_b32 s{sConf}, 0")
    a(f"s_mov_b32 s{sMode}, 1")

_cf = [0]
def confirm(a, vt, quads=None):
    _cf[0] += 1; n = _cf[0]
    if quads:
        q0, q1 = quads
        a(f"s_load_dwordx4 s[{q0}:{q0+3}], s[{sDbgP}:{sDbgP+1}], 0")
        a(f"s_load_dwordx4 s[{q1}:{q1+3}], s[{sDbgP}:{sDbgP+1}], 128")
        a("s_waitcnt lgkmcnt(0)")
        a("s_mov_b32 s88, 1")
        for k in range(4):
            a(f"s_cmp_eq_u32 s{q0+k}, 32"); a("s_cselect_b32 s88, s88, 0")
            a(f"s_cmp_eq_u32 s{q1+k}, 32"); a("s_cselect_b32 s88, s88, 0")
        a(f"s_or_b32 s{sConf}, s{sConf}, s88")
    a(f"s_cmp_eq_u32 s{sConf}, 0"); a(f"s_cbranch_scc1 L_CF{n}")
    a.label(f"L_CR{n}")
    o = Asm()
    o.label(f"L_CF{n}")
    o(f"v_mbcnt_lo_u32_b32 v{vt}, -1, 0"); o(f"v_mbcnt_hi_u32_b32 v{vt}, -1, v{vt}")
    o(f"v_and_b32 v{vt}, 7, v{vt}")
    o(f"v_and_b32 v{vt+1}, 3, v{vt}"); o(f"v_lshlrev_b32 v{vt+1}, 2, v{vt+1}")
    o(f"v_lshrrev_b32 v{vt}, 2, v{vt}"); o(f"v_lshl_add_u32 v{vt+1}, v{vt}, 7, v{vt+1}")
    o(f"v_mov_b32 v{vt}, 252")
    o.label(f"L_CP{n}")
    o(f"global_load_dword v{vt+2}, v{vt+1}, s[{sDbgP}:{sDbgP+1}] sc1")
    o(f"global_load_dword v{vt+3}, v{vt}, s[{sDbgP}:{sDbgP+1}] sc1")
    W.spin(o)
    o("s_waitcnt vmcnt(0)")
    o(f"v_readfirstlane_b32 s88, v{vt+3}")
    o(f"s_mov_b32 s{sMode}, 1")
    o("s_mov_b32 s100, 0")
    for k in range(8):
        o(f"v_readlane_b32 s89, v{vt+2}, {k}")
        o("s_add_u32 s88, s88, s89")
        o("s_cmp_eq_u32 s89, 32"); o(f"s_cselect_b32 s{sMode}, s{sMode}, 0")
        o(f"s_cmp_ge_u32 s2, {(k+1) << 8}"); o("s_cselect_b32 s89, s89, 0"); o("s_add_u32 s100, s100, s89")
    o("s_cmp_ge_u32 s88, 256"); o(f"s_cbranch_scc1 L_CK{n}")
    o("s_sleep 8")
    o(f"s_branch L_CP{n}")
    o.label(f"L_CK{n}")
    o(f"s_mov_b32 s{sConf}, 1")
    o(f"s_cmp_eq_u32 s{sMode}, 0"); o("s_cbranch_scc1 L_FALLBACK")
    o(f"s_branch L_CR{n}")
    OUTLINE.extend(o.lines)

def fallback(a):
    a.label("L_FALLBACK")
    a("s_waitcnt vmcnt(0) lgkmcnt(0)")
    a("s_barrier")
    a(f"s_mov_b32 s{sMode}, 0")
    a("s_and_b32 s88, s2, 255"); a("s_add_u32 s88, s88, s100")
    a(f"s_lshr_b32 s{sX}, s88, 5"); a(f"s_and_b32 s{sR}, s88, 31")
    a("v_mbcnt_lo_u32_b32 v0, -1, 0"); a("v_mbcnt_hi_u32_b32 v0, -1, v0")
    a(f"s_lshl_b32 s88, s{W.sW}, 6"); a("v_add_u32 v0, s88, v0")
    a("s_branch L_DISPATCH")

def load_pointers(a):
    for reg, off in ((W.pX, 0), (W.pWq, 16), (W.pWk, 24), (W.pWv, 32), (W.pWo, 40), (W.pW1, 64), (W.pB1, 72), (W.pW2, 80), (W.pOut, 88)):
        a(f"s_load_dwordx2 s[{reg}:{reg+1}], s[0:1], {off}")
    a("s_load_dwordx2 s[80:81], s[0:1], 8")
    a("s_waitcnt lgkmcnt(0)")

def build(timing=False, opt=()):
    for o in opt:
        if o.startswith('sleep'): W.SLEEP = int(o[5:])
    W.WOPT = set(opt)
    global OPTS
    OPTS = set(opt)
    OUTLINE.clear(); _cf[0] = 0
    a = Asm()
    a("s_cmp_ge_u32 s2, 256"); a("s_cbranch_scc1 L_END")
    a(f"s_load_dwordx2 s[{sDbgP}:{sDbgP+1}], s[0:1], 96")
    a("s_load_dwordx2 s[78:79], s[0:1], 104")
    a("v_lshrrev_b32 v8, 6, v0"); a("s_nop 1"); a(f"v_readfirstlane_b32 s{W.sW}, v8")
    a("s_waitcnt lgkmcnt(0)")
    W.srd(a, W.S_WS, 78, WS_SIZE)
    a(f"s_mov_b32 s{W.sSpin}, 0x400000")
    if timing:
        a("s_mov_b32 s97, s2")
        a("s_memrealtime s[98:99]"); a("s_waitcnt lgkmcnt(0)"); a("s_mov_b32 s99, s97")
    registration(a)
    if "forceslow" in opt:
        confirm(a, 8)
        a("s_branch L_FALLBACK")
    a(f"s_cmp_lt_u32 s{sR}, 32"); a(f"s_cselect_b32 s88, 1, 0")
    a(f"s_cmp_lt_u32 s{sX}, 8"); a(f"s_cselect_b32 s88, s88, 0")
    a("s_cmp_eq_u32 s88, 1"); a("s_cbranch_scc1 L_DISPATCH")
    confirm(a, 8)
    a.label("L_DISPATCH")
    load_pointers(a)
    cx = 3
    for o in opt:
        if o.startswith("cx="): cx = int(o[3:])
    if cx:
        a(f"s_add_u32 s{sX}, s{sX}, {8 - cx}"); a(f"s_and_b32 s{sX}, s{sX}, 7")
    wk = a.newlabel("WORKER")
    a(f"s_cmp_lg_u32 s{sX}, 0"); a(f"s_cbranch_scc1 {wk}")
    a(f"s_mov_b32 s{C.sH}, s{sR}")
    if "hrot" in opt:
        a(f"s_add_u32 s{C.sH}, s{C.sH}, 1"); a(f"s_and_b32 s{C.sH}, s{C.sH}, 31")
    a(f"s_mov_b64 s[82:83], s[{W.pWo}:{W.pWo+1}]")
    a(f"s_mov_b64 s[{C.sWq}:{C.sWq+1}], s[{W.pWq}:{W.pWq+1}]")
    a(f"s_mov_b64 s[{C.sWk}:{C.sWk+1}], s[{W.pWk}:{W.pWk+1}]")
    a(f"s_mov_b64 s[{C.sWv}:{C.sWv+1}], s[{W.pWv}:{W.pWv+1}]")
    a(f"s_mov_b64 s[{C.sWo}:{C.sWo+1}], s[82:83]")
    a(f"s_mov_b64 s[{C.sMem0}:{C.sMem0+1}], s[80:81]")
    slow = a.newlabel("CSLOW")
    a(f"s_cmp_eq_u32 s{sMode}, 0"); a(f"s_cbranch_scc1 {slow}")
    C.chain_main(a, True, "CF", stamp=("stamp" in opt), opt=opt, confirm=lambda x: confirm(x, 62, (64, 68)))
    a("s_branch L_DONE")
    a.label(slow)
    C.chain_main(a, False, "CS", opt=opt)
    a("s_branch L_DONE")
    a.label(wk)
    sWi = 87
    a(f"s_sub_u32 s{sX}, s{sX}, 1")
    a(f"s_lshl_b32 s{sWi}, s{sX}, 5"); a(f"s_add_u32 s{sWi}, s{sWi}, s{sR}")
    if "nowarm" not in opt:
        W.srd(a, W.S_A, W.pWo, H * DH * D * 2)
        a("v_lshlrev_b32 v1, 4, v0")
        a(f"s_mul_i32 s47, s{sWi}, 24576")
        for k in range(6):
            a(f"buffer_load_dwordx4 v[{160+4*k}:{163+4*k}], v1, s[{W.S_A}:{W.S_A+3}], s47 offen")
            a("s_add_u32 s47, s47, 4096")
    nl = a.newlabel("NLN")
    a(f"s_cmp_ge_u32 s{sWi}, 64"); a(f"s_cbranch_scc1 {nl}")
    W.ln_role(a, sWi, confirm=lambda x: confirm(x, 144))
    a.label(nl)
    n1 = a.newlabel("NW1"); n2 = a.newlabel("NW2")
    a(f"s_lshl_b32 s{W.sBlk}, s{sX}, 3"); a(f"s_lshr_b32 s47, s{sR}, 2"); a(f"s_add_u32 s{W.sBlk}, s{W.sBlk}, s47")
    if "swap" in opt:
        a(f"s_cmp_eq_u32 s{sX}, 5"); a(f"s_cselect_b32 s47, 8, 0"); a(f"s_add_u32 s{W.sBlk}, s{W.sBlk}, s47")
        a(f"s_cmp_eq_u32 s{sX}, 6"); a(f"s_cselect_b32 s47, 8, 0"); a(f"s_sub_u32 s{W.sBlk}, s{W.sBlk}, s47")
    a(f"s_and_b32 s{W.sSplit}, s{sR}, 3")
    a(f"s_cmp_ge_u32 s{W.sBlk}, {32 if 'kvonly' in opt else 55}"); a(f"s_cbranch_scc1 {n1}")
    W.w1_role(a, confirm=lambda x: confirm(x, 8))
    a(f"s_branch {n2}")
    a.label(n1)
    confirm(a, 8)
    a.label(n2)
    if 'noab' in opt: a("s_branch L_DONE")
    ra = a.newlabel("RA"); rb = a.newlabel("RB"); rx = a.newlabel("RX")
    a(f"s_cmp_ge_u32 s{sX}, 4"); a(f"s_cbranch_scc1 {rx}")
    a(f"s_cmp_ge_u32 s{sR}, 28"); a("s_cbranch_scc1 L_DONE")
    a(f"s_cmp_ge_u32 s{sR}, 20"); a(f"s_cbranch_scc1 {ra}")
    a(f"s_mul_i32 s{W.sBi}, s{sX}, 20"); a(f"s_add_u32 s{W.sBi}, s{W.sBi}, s{sR}")
    a(f"s_branch {rb}")
    a.label(rx)
    a(f"s_sub_u32 s47, s{sX}, 4"); a("s_lshl_b32 s47, s47, 5"); a(f"s_add_u32 s47, s47, s{sR}")
    a("s_cmp_ge_u32 s47, 80"); a("s_cbranch_scc1 L_DONE")
    a(f"s_add_u32 s{W.sBi}, s47, 80")
    a.label(rb)
    a("s_barrier")
    W.out_role(a)
    a("s_branch L_DONE")
    a.label(ra)
    a(f"s_lshl_b32 s{W.sAi}, s{sX}, 3"); a(f"s_add_u32 s{W.sAi}, s{W.sAi}, s{sR}"); a(f"s_sub_u32 s{W.sAi}, s{W.sAi}, 20")
    a("s_barrier")
    W.att_role(a)
    a.label("L_DONE")
    if timing:
        a("s_memrealtime s[96:97]"); a("s_waitcnt lgkmcnt(0)")
        a("s_sub_u32 s96, s96, s98")
        a("v_mov_b32 v8, s96"); a("s_lshl_b32 s47, s99, 3"); a("v_mov_b32 v9, s47")
        a(f"v_add_u32 v9, {WS_STAMP}, v9")
        a(f"buffer_store_dword v8, v9, {W.WS}, 0 offen")
        a(f"s_lshl_b32 s47, s{sX}, 8"); a(f"s_add_u32 s47, s47, s{sR}"); a("v_mov_b32 v8, s47")
        a(f"buffer_store_dword v8, v9, {W.WS}, 0 offen offset:4")
        a("s_waitcnt vmcnt(0)")
    a.label("L_END")
    a("s_endpgm")
    a.lines += OUTLINE
    fallback(a)
    a.label("L_TIMEOUT")
    a("v_mov_b32 v8, 0xdead"); a("v_mov_b32 v10, 64")
    a(f"global_store_dword v10, v8, s[{sDbgP}:{sDbgP+1}]")
    a("s_waitcnt vmcnt(0)")
    a("s_endpgm")
    hdr = header_comment() + f"""
; @launch grid=(256,1,1) block=(256,1,1) lds=163840
.amdgcn_target "amdgcn-amd-amdhsa--gfx950"
.text
.globl {NAME}
.p2align 8
.type {NAME},@function
{NAME}:
"""
    ftr = f"""
.section .rodata,"a"
.p2align 6
.amdhsa_kernel {NAME}
  .amdhsa_next_free_vgpr 512
  .amdhsa_next_free_sgpr 102
  .amdhsa_accum_offset 256
  .amdhsa_group_segment_fixed_size 0
  .amdhsa_kernarg_size 112
  .amdhsa_user_sgpr_count 2
  .amdhsa_user_sgpr_kernarg_segment_ptr 1
  .amdhsa_system_sgpr_workgroup_id_x 1
.end_amdhsa_kernel
"""
    return hdr + a.text() + ftr
if __name__ == "__main__":
    out = sys.argv[1] if len(sys.argv) > 1 else "cdna_kernels/" + NAME[:-7] + ".s"
    open(out, "w").write(build()); print("written", out)
```
